```python
import torch

def _softmax(x, axis=-1):
    return torch.softmax(x, dim=axis)
def _gelu(x):
    return torch.nn.functional.gelu(x, approximate="tanh")
def _silu(x):
    return torch.nn.functional.silu(x)
def _sigmoid(x):
    return torch.sigmoid(x)
def _layernorm(x, axis=-1, eps=1e-5):
    m = x.mean(dim=axis, keepdim=True)
    v = x.var(dim=axis, keepdim=True, unbiased=False)
    return (x - m) / torch.sqrt(v + eps)
def _scatter_add(tgt, idx, src, axis=0):
    return tgt.clone().index_add_(axis, idx, src)
def _segment_sum(src, seg, n):
    out = torch.zeros((n,) + src.shape[1:], dtype=src.dtype)
    return out.index_add_(0, seg, src)
def _pad(x, pw):
    flat = tuple(v for pair in reversed(pw) for v in pair)
    return torch.nn.functional.pad(x, flat)

kernel_name = 'sequential_preLN__gqa_block_cached__dense_activation_squared_relu__decode'

def setup_inputs():

    _w = (lambda a: (lambda t: t.to(torch.bfloat16) if t.is_floating_point() else t)(torch.as_tensor(a)))
    def _A_setup():
        B, Sq, D = 8, 1, 448
        Hq, Hkv, Sk, Dh = 16, 8, 4096, 256
        assert Hq % Hkv == 0, (Hq, Hkv)
        return {
            "x": _w((lambda *s: torch.randn(*s, dtype=torch.bfloat16) * 0.05)(B, Sq, D)),
            "k_cache": _w((lambda *s: torch.randn(*s, dtype=torch.bfloat16) * 3.2)(B, Hkv, Sk, Dh)),
            "v_cache": _w((lambda *s: torch.randn(*s, dtype=torch.bfloat16) * 0.4)(B, Hkv, Sk, Dh)),
            "wq": _w((lambda *s: torch.randn(*s, dtype=torch.bfloat16) * 3.2)(D, Hq * Dh) * (D ** -0.5)),
            "wo": _w((lambda *s: torch.randn(*s, dtype=torch.bfloat16) * 0.4)(Hq * Dh, D) * ((Hq * Dh) ** -0.5)),
        }
    _A_in = _A_setup()

    def _B_setup():
        B, S, D, F = 8, 1, 448, 1792
        return {
            "x": _w((lambda *s: torch.randn(*s, dtype=torch.bfloat16) * 0.05)(B, S, D)),
            "w1": _w((lambda *s: torch.randn(*s, dtype=torch.bfloat16) * 0.05)(D, F)),
            "b1": _w((lambda *s: torch.randn(*s, dtype=torch.bfloat16) * 0.8)(F)),
            "w2": _w((lambda *s: torch.randn(*s, dtype=torch.bfloat16) * 0.05)(F, D)),
            "b2": _w((lambda *s: torch.randn(*s, dtype=torch.bfloat16) * 3.2)(D)),
        }
    _B_in = _B_setup()

    return {
        "A_x": _A_in["x"],
        "A_k_cache": _A_in["k_cache"],
        "A_v_cache": _A_in["v_cache"],
        "A_wq": _A_in["wq"],
        "A_wo": _A_in["wo"],
        "B_x": _B_in["x"],
        "B_w1": _B_in["w1"],
        "B_b1": _B_in["b1"],
        "B_w2": _B_in["w2"],
        "B_b2": _B_in["b2"],
    }

def reference(A_x, A_k_cache, A_v_cache, A_wq, A_wo, B_x, B_w1, B_b1, B_w2, B_b2):
    def _A_ref(x, k_cache, v_cache, wq, wo):
        B, Sq, D = x.shape
        Hq, Dh = 16, 256
        Hkv = k_cache.shape[1]
        rep = Hq // Hkv
        q = (lambda x, *d: x.permute(*d))((x @ wq).reshape(B, Sq, Hq, Dh), 0, 2, 1, 3)
        k = (lambda x, n, axis: torch.repeat_interleave(x, n, dim=axis))(k_cache, rep, axis=1)
        v = (lambda x, n, axis: torch.repeat_interleave(x, n, dim=axis))(v_cache, rep, axis=1)
        scores = torch.einsum("bhqd,bhkd->bhqk", q, k) * (Dh ** -0.5)
        p = _softmax(scores, axis=-1)
        o = torch.einsum("bhqk,bhkd->bhqd", p, v)
        return (lambda x, *d: x.permute(*d))(o, 0, 2, 1, 3).reshape(B, Sq, Hq * Dh) @ wo

    def _B_ref(x, w1, b1, w2, b2):
        h = torch.einsum("bsd,df->bsf", x, w1) + b1
        zero = torch.zeros_like(h)
        r = torch.where(h > zero, h, zero)
        h = r * r
        out = torch.einsum("bsf,fd->bsd", h, w2) + b2
        return out

    x = A_x
    h = x + _A_ref(_layernorm(x, axis=-1), A_k_cache, A_v_cache, A_wq, A_wo)
    h2 = h + _B_ref(_layernorm(h, axis=-1), B_w1, B_b1, B_w2, B_b2)
    return h2
```

```python
import sys

NAME = "sequential_preLN__gqa_block_cached__dense_activation_squared_relu__decode"

HEADER = """; Kernarg layout for this problem (104 bytes, ptrs only, base s[0:1]):
"""

L_XN = 0x0000
L_Q = 0x1C00
L_SC = 0x2000
L_SCD = 0x3000
L_P = 0x4000
L_ZERO = 0x5000
L_ACC = 0x6000
L_O = 0x8000
L_T1 = 0x8400
L_HN = 0x8C00
L_H = 0x9000
L_R1 = 0x9800
L_H1 = 0x9C00
L_FLAG = 0x9E00
LDS_BYTES = 0xA000

W_QP = 0x000000
W_ST = 0x080000
W_OP = 0x090000
W_AP = 0x110000
W_FP = 0x130000
W_END = 0x200000
W_STAMP = 0x1000000


class Gen:
    def __init__(self, D=5, R=40, stamps=False, wnt="", knt="nt", poll_cap=200000):
        self.L = []
        self.D = D
        self.R = R
        self.stamps = stamps
        self.wnt = wnt
        self.knt = knt
        self.poll_cap = poll_cap
        self.nlabel = 0

    def A(self, s):
        self.L.append("    " + s)

    def C(self, s):
        self.L.append("    ; " + s)

    def label(self, name):
        self.L.append(name + ":")

    def newlabel(self, base):
        self.nlabel += 1
        return f"L_{base}_{self.nlabel}"

    def stamp(self, idx):
        if self.stamps:
            self.A(f"s_memrealtime s[{60 + 2 * idx}:{61 + 2 * idx}]")

    def dump_stamps(self, n, vbase):
        if not self.stamps:
            return
        A = self.A
        A("s_waitcnt lgkmcnt(0)")
        A("s_lshl_b32 s58, s2, 3")
        A("s_add_u32 s58, s58, s3")
        A("s_lshl_b32 s58, s58, 7")
        A(f"s_add_u32 s58, s58, {W_STAMP}")
        A("s_mov_b64 exec, 1")
        A(f"v_mov_b32 v{vbase}, s58")
        for i in range(n):
            A(f"v_mov_b32 v{vbase + 2}, s{60 + 2 * i}")
            A(f"v_mov_b32 v{vbase + 3}, s{61 + 2 * i}")
            A(f"global_store_dwordx2 v{vbase}, v[{vbase + 2}:{vbase + 3}], s[32:33] offset:{8 * i}")
            A("s_nop 1")
        A("s_mov_b64 exec, -1")

    def srd(self, d, ptr, size, off_sgpr=None):
        A = self.A
        if off_sgpr is None:
            A(f"s_mov_b32 s{d}, s{ptr}")
            A(f"s_mov_b32 s{d + 1}, s{ptr + 1}")
        else:
            A(f"s_add_u32 s{d}, s{ptr}, s{off_sgpr}")
            A(f"s_addc_u32 s{d + 1}, s{ptr + 1}, 0")
        A(f"s_mov_b32 s{d + 2}, {size}")
        A(f"s_mov_b32 s{d + 3}, 0x20000")

    def allreduce(self, op, regs, tmps):
        A = self.A
        for ctrl in ("quad_perm:[1,0,3,2]", "quad_perm:[2,3,0,1]", "row_half_mirror", "row_mirror"):
            A("s_nop 1")
            for r in regs:
                A(f"v_{op}_f32_dpp v{r}, v{r}, v{r} {ctrl} row_mask:0xf bank_mask:0xf")
        for sw in ("v_permlane16_swap_b32", "v_permlane32_swap_b32"):
            for r, t in zip(regs, tmps):
                A(f"v_mov_b32 v{t}, v{r}")
            A("s_nop 1")
            for r, t in zip(regs, tmps):
                A(f"{sw} v{r}, v{t}")
            A("s_nop 1")
            for r, t in zip(regs, tmps):
                A(f"v_{op}_f32 v{r}, v{r}, v{t}")

    def lds_spin(self, vaddr, off, target, vtmp, stmp):
        A = self.A
        l = self.newlabel("spin")
        d = self.newlabel("spun")
        A(f"s_mov_b32 s59, {self.poll_cap * 20}")
        self.label(l)
        A(f"ds_read_b32 v{vtmp}, v{vaddr} offset:{off}")
        A("s_waitcnt lgkmcnt(0)")
        A(f"v_readfirstlane_b32 s{stmp}, v{vtmp}")
        A("s_nop 0")
        A(f"s_cmp_eq_u32 s{stmp}, {target}")
        A(f"s_cbranch_scc1 {d}")
        A("s_sleep 1")
        A("s_sub_u32 s59, s59, 1")
        A("s_cmp_lg_u32 s59, 0")
        A(f"s_cbranch_scc1 {l}")
        self.label(d)

    def poll_sentinel(self, loads, regs, vtmp, scnt):
        A = self.A
        l = self.newlabel("poll")
        d = self.newlabel("polled")
        A(f"s_mov_b32 s{scnt}, {self.poll_cap}")
        self.label(l)
        for s in loads:
            A(s)
        A("s_waitcnt vmcnt(0)")
        A(f"v_max3_u32 v{vtmp}, v{regs[0]}, v{regs[1]}, v{regs[2]}")
        rest = regs[3:]
        while len(rest) >= 2:
            A(f"v_max3_u32 v{vtmp}, v{vtmp}, v{rest[0]}, v{rest[1]}")
            rest = rest[2:]
        if rest:
            A(f"v_max_u32 v{vtmp}, v{vtmp}, v{rest[0]}")
        A(f"v_cmp_eq_u32 vcc, -1, v{vtmp}")
        A(f"s_cbranch_vccz {d}")
        A(f"s_sub_u32 s{scnt}, s{scnt}, 1")
        A(f"s_cmp_lg_u32 s{scnt}, 0")
        A(f"s_cbranch_scc1 {l}")
        self.label(d)

    def layernorm(self, rows, smask, t):
        A = self.A
        n = len(rows)
        S = [t + i for i in range(n)]
        T = [t + n + i for i in range(n)]
        M = [t + 2 * n + i for i in range(n)]
        DD = t + 3 * n
        for k, (x, o) in enumerate(rows):
            A(f"v_add_f32 v{S[k]}, v{x[0]}, v{x[1]}")
            for e in range(2, 8):
                A(f"v_add_f32 v{S[k]}, v{S[k]}, v{x[e]}")
            A(f"v_cndmask_b32 v{S[k]}, 0, v{S[k]}, s[{smask}:{smask + 1}]")
        self.allreduce("add", S, T)
        for k, (x, o) in enumerate(rows):
            A(f"v_mul_f32 v{M[k]}, 0x3b124925, v{S[k]}")
        for k, (x, o) in enumerate(rows):
            for e in range(8):
                A(f"v_sub_f32 v{DD + e}, v{x[e]}, v{M[k]}")
            A(f"v_mul_f32 v{S[k]}, v{DD}, v{DD}")
            for e in range(1, 8):
                A(f"v_fmac_f32 v{S[k]}, v{DD + e}, v{DD + e}")
            A(f"v_cndmask_b32 v{S[k]}, 0, v{S[k]}, s[{smask}:{smask + 1}]")
        self.allreduce("add", S, T)
        for k, (x, o) in enumerate(rows):
            A(f"v_mul_f32 v{S[k]}, 0x3b124925, v{S[k]}")
            A(f"v_cvt_pk_bf16_f32 v{T[k]}, v{M[k]}, v{S[k]}")
            A(f"v_lshlrev_b32 v{M[k]}, 16, v{T[k]}")
            A(f"v_and_b32 v{S[k]}, 0xffff0000, v{T[k]}")
            A(f"v_add_f32 v{S[k]}, 0x3727c5ac, v{S[k]}")
            A(f"v_cvt_pk_bf16_f32 v{S[k]}, v{S[k]}, v{S[k]}")
            A(f"v_lshlrev_b32 v{S[k]}, 16, v{S[k]}")
            A(f"v_sqrt_f32 v{S[k]}, v{S[k]}")
            A("s_nop 0")
            A(f"v_cvt_pk_bf16_f32 v{S[k]}, v{S[k]}, v{S[k]}")
            A(f"v_lshlrev_b32 v{S[k]}, 16, v{S[k]}")
            A(f"v_rcp_f32 v{S[k]}, v{S[k]}")
            for e in range(8):
                A(f"v_sub_f32 v{DD + e}, v{x[e]}, v{M[k]}")
            for e in range(4):
                A(f"v_cvt_pk_bf16_f32 v{o + e}, v{DD + 2 * e}, v{DD + 2 * e + 1}")
            for e in range(4):
                A(f"v_lshlrev_b32 v{DD + 2 * e}, 16, v{o + e}")
                A(f"v_and_b32 v{DD + 2 * e + 1}, 0xffff0000, v{o + e}")
            for e in range(8):
                A(f"v_mul_f32 v{DD + e}, v{DD + e}, v{S[k]}")
            for e in range(4):
                A(f"v_cvt_pk_bf16_f32 v{o + e}, v{DD + 2 * e}, v{DD + 2 * e + 1}")

    def unpack8(self, src, dst):
        for e in range(4):
            self.A(f"v_lshlrev_b32 v{dst + 2 * e}, 16, v{src + e}")
            self.A(f"v_and_b32 v{dst + 2 * e + 1}, 0xffff0000, v{src + e}")

    def build(self):
        A, C = self.A, self.C
        D, R = self.D, self.R
        self.L.append(HEADER.rstrip())
        self.L.append(f"; @launch grid=(256,1,1) block=(512,1,1) lds={LDS_BYTES}")
        self.L.append('.amdgcn_target "amdgcn-amd-amdhsa--gfx950"')
        self.L.append(".text")
        self.L.append(f".globl {NAME}_kernel")
        self.L.append(".p2align 8")
        self.L.append(f".type {NAME}_kernel,@function")
        self.label(f"{NAME}_kernel")
        A("s_cmp_ge_u32 s2, 256")
        A("s_cbranch_scc1 L_end")
        self.stamp(0)
        A("s_load_dwordx16 s[8:23], s[0:1], 0")
        A("s_load_dwordx8 s[24:31], s[0:1], 64")
        A("s_load_dwordx2 s[32:33], s[0:1], 96")
        A("v_lshrrev_b32 v1, 6, v0")
        A("v_and_b32 v0, 63, v0")
        A("v_readfirstlane_b32 s3, v1")
        C("decode wg -> b (s4), hkv (s5), c (s6), pair (s7), f = hkv*4+c (s34)")
        A("s_lshr_b32 s4, s2, 3")
        A("s_lshr_b32 s5, s4, 3")
        A("s_and_b32 s4, s4, 7")
        A("s_lshl_b32 s5, s5, 1")
        A("s_bfe_u32 s6, s2, 0x10002")
        A("s_add_u32 s5, s5, s6")
        A("s_and_b32 s6, s2, 3")
        A("s_lshl_b32 s7, s4, 3")
        A("s_add_u32 s7, s7, s5")
        A("s_lshl_b32 s34, s5, 2")
        A("s_add_u32 s34, s34, s6")
        A("s_mov_b32 s56, 0x05040100")
        A("s_mov_b32 s57, 0x07060302")
        A("v_and_b32 v2, 15, v0")
        A("v_lshrrev_b32 v3, 4, v0")
        A("s_cmp_ge_u32 s3, 4")
        A("s_cbranch_scc1 L_service")
        self.stream()
        self.service()
        self.label("L_end")
        A("s_endpgm")
        self.L.append('.section .rodata,"a"')
        self.L.append(".p2align 6")
        self.L.append(f".amdhsa_kernel {NAME}_kernel")
        self.L.append("  .amdhsa_next_free_vgpr 256")
        self.L.append("  .amdhsa_next_free_sgpr 102")
        self.L.append("  .amdhsa_accum_offset 256")
        self.L.append("  .amdhsa_group_segment_fixed_size 0")
        self.L.append("  .amdhsa_kernarg_size 104")
        self.L.append("  .amdhsa_user_sgpr_count 2")
        self.L.append("  .amdhsa_user_sgpr_kernarg_segment_ptr 1")
        self.L.append("  .amdhsa_system_sgpr_workgroup_id_x 1")
        self.L.append("  .amdhsa_float_denorm_mode_32 3")
        self.L.append(".end_amdhsa_kernel")
        return "\n".join(self.L) + "\n"

    def stream(self):
        A, C = self.A, self.C
        D, R = self.D, self.R
        C("================= stream waves (0..3) =================")
        vK, vV, vSC, vP, vFL, vW2, vT = 4, 5, 6, 7, 8, 9, 10
        QF = 16
        DK = 32
        ACC = 16
        TP = 48
        PF = 64
        RING = 72
        assert RING + 4 * R <= 256
        A("v_and_b32 v10, 7, v0")
        A("v_lshrrev_b32 v11, 3, v0")
        A("v_lshlrev_b32 v4, 9, v10")
        A("v_lshl_add_u32 v4, v11, 4, v4")
        A("s_lshl_b32 s35, s3, 12")
        A("v_add_u32 v4, s35, v4")
        A("v_lshlrev_b32 v5, 4, v0")
        A("s_lshl_b32 s35, s3, 13")
        A("v_add_u32 v5, s35, v5")
        A("s_lshl_b32 s35, s7, 21")
        A("s_lshl_b32 s36, s6, 19")
        A("s_add_u32 s35, s35, s36")
        A("s_waitcnt lgkmcnt(0)")
        self.srd(36, 10, 0x80000, 35)
        self.srd(40, 12, 0x80000, 35)
        self.srd(44, 24, 1792 * 896)
        loads = []
        for nb in range(32):
            for j in range(4):
                loads.append(("K", nb, j))
        for nu in range(16):
            for i in range(8):
                loads.append(("V", nu, i))
        free = list(range(R))
        slot_of = {}
        order = []
        st = {"soff": None}

        def sreg(slot):
            return RING + 4 * slot

        def set_soff(val):
            if st["soff"] != val:
                A(f"s_mov_b32 s48, {val}")
                st["soff"] = val

        def pace():
            if len(order) >= D:
                A(f"s_waitcnt vmcnt({D - 1})")

        def issue(ld):
            pace()
            slot = free.pop(0)
            slot_of[ld] = slot
            r = sreg(slot)
            kind, a, b = ld
            if kind == "K":
                set_soff(a * 16384)
                A(f"buffer_load_dwordx4 v[{r}:{r + 3}], v{vK}, s[36:39], s48 offen offset:{b * 128} {self.knt}")
            elif kind == "V":
                set_soff(a * 32768 + (b >> 2) * 4096)
                A(f"buffer_load_dwordx4 v[{r}:{r + 3}], v{vV}, s[40:43], s48 offen offset:{(b & 3) * 1024} {self.knt}")
            elif kind == "W":
                A(f"s_add_u32 s48, s49, {(a * 32 + (b & 4)) * 896}")
                st["soff"] = None
                A(f"buffer_load_dwordx4 v[{r}:{r + 3}], v{vW2}, s[44:47], s48 offen offset:{(b & 3) * 896} {self.wnt}")
            order.append(ld)

        def waitfor(ld):
            n = len(order) - 1 - order.index(ld)
            A(f"s_waitcnt vmcnt({n})")

        nxt = [0]

        def issue_next(k=1):
            for _ in range(k):
                if nxt[0] < len(loads) and free:
                    issue(loads[nxt[0]])
                    nxt[0] += 1

        issue_next(D)
        C("score write address: lanes (l&15)<8 -> L_SC + (wave*8 + key)*4, others -> dummy")
        A("s_lshl_b32 s35, s3, 5")
        A(f"v_lshl_add_u32 v{vSC}, v2, 2, s35")
        A(f"v_add_u32 v{vSC}, {L_SC}, v{vSC}")
        A(f"v_mov_b32 v10, {L_SCD}")
        A("v_cmp_gt_u32 vcc, 8, v2")
        A("s_nop 1")
        A(f"v_cndmask_b32 v{vSC}, v10, v{vSC}, vcc")
        C("P frag address: combo = rho>>2 = 2*half+h ; active iff (g&1)==half")
        A("v_lshrrev_b32 v10, 2, v2")
        A("v_and_b32 v11, 1, v10")
        A("v_lshrrev_b32 v12, 1, v10")
        A("v_and_b32 v13, 1, v3")
        A("v_lshrrev_b32 v14, 1, v3")
        A("v_lshlrev_b32 v11, 5, v11")
        A("v_lshl_add_u32 v11, v14, 4, v11")
        A("s_lshl_b32 s35, s3, 6")
        A(f"s_add_u32 s35, s35, {L_P}")
        A(f"v_add_u32 v11, s35, v11")
        A(f"v_mov_b32 v10, {L_ZERO}")
        A("v_cmp_eq_u32 vcc, v12, v13")
        A("s_nop 1")
        A(f"v_cndmask_b32 v{vP}, v10, v11, vcc")
        A(f"v_mov_b32 v{vFL}, {L_FLAG}")
        C("w2 lane offset: g*8*896 + wave*256 + j*16 ; s49 = f*56*896")
        A(f"v_mul_u32_u24 v{vW2}, {8 * 896}, v3")
        A(f"v_lshl_add_u32 v{vW2}, v2, 4, v{vW2}")
        A("s_lshl_b32 s35, s3, 8")
        A(f"v_add_u32 v{vW2}, s35, v{vW2}")
        A(f"s_mul_i32 s49, s34, {56 * 896}")
        C("q frag address: (rho&1)*512 + g*32 + ((rho>>1)&1)*16")
        A("v_and_b32 v10, 1, v2")
        A("v_bfe_u32 v11, v2, 1, 1")
        A("v_lshlrev_b32 v10, 9, v10")
        A("v_lshl_add_u32 v10, v3, 5, v10")
        A("v_lshl_add_u32 v15, v11, 4, v10")
        A("s_barrier")
        issue_next(R)
        self.stamp(1)
        self.lds_spin(vFL, 4, 1, 10, 50)
        self.stamp(2)
        for j in range(4):
            A(f"ds_read_b128 v[{QF + 4 * j}:{QF + 4 * j + 3}], v15 offset:{L_Q + 128 * j}")
        A("s_waitcnt lgkmcnt(0)")

        def k_post(nb):
            d = DK + 4 * (nb & 1)
            A(f"v_add_f32_dpp v10, v{d + 2}, v{d} row_ror:8 row_mask:0xf bank_mask:0xf")
            A(f"v_add_f32_dpp v11, v{d + 3}, v{d + 1} row_ror:8 row_mask:0xf bank_mask:0xf")
            A("v_cvt_pk_bf16_f32 v10, v10, v11")
            A(f"ds_write_b32 v{vSC}, v10 offset:{nb * 128}")

        def k_block(nb):
            d = DK + 4 * (nb & 1)
            waitfor(("K", nb, 3))
            for j in range(4):
                r = sreg(slot_of[("K", nb, j)])
                c = "0" if j == 0 else f"v[{d}:{d + 3}]"
                A(f"v_mfma_f32_16x16x32_bf16 v[{d}:{d + 3}], v[{QF + 4 * j}:{QF + 4 * j + 3}], v[{r}:{r + 3}], {c}")
            if nb > 0:
                A("s_nop 4")
                k_post(nb - 1)
            for j in range(4):
                free.append(slot_of[("K", nb, j)])

        for nb in range(32):
            k_block(nb)
            backlog = nxt[0] - (nb + 1) * 4
            issue_next(max(1, min(4, D + 4 - backlog)))
        A("s_nop 7")
        A("s_nop 1")
        k_post(31)
        A("v_mov_b32 v10, 1")
        A("s_waitcnt lgkmcnt(0)")
        A("s_mov_b64 exec, 1")
        A(f"ds_add_u32 v{vFL}, v10 offset:8")
        A("s_mov_b64 exec, -1")
        self.stamp(3)
        issue_next(R)
        for r in range(32):
            A(f"v_mov_b32 v{ACC + r}, 0")
        self.stamp(4)
        self.lds_spin(vFL, 12, 1, 10, 50)
        self.stamp(5)
        A(f"ds_read_b128 v[{PF}:{PF + 3}], v{vP} offset:0")

        w2_loads = [("W", a, i) for a in range(2) for i in range(8)]
        w2_frag = {}

        def perm_group(srcs, c, dst):
            for r in range(4):
                A(f"v_perm_b32 v{dst + r}, v{srcs[2 * r + 1] + c}, v{srcs[2 * r] + c}, s56")
            for r in range(4):
                A(f"v_perm_b32 v{dst + 4 + r}, v{srcs[2 * r + 1] + c}, v{srcs[2 * r] + c}, s57")

        def v_unit(nu):
            pf = PF + 4 * (nu & 1)
            waitfor(("V", nu, 7))
            A("s_waitcnt lgkmcnt(0)")
            if nu + 1 < 16:
                pn = PF + 4 * ((nu + 1) & 1)
                A(f"ds_read_b128 v[{pn}:{pn + 3}], v{vP} offset:{(nu + 1) * 256}")
            srcs = [sreg(slot_of[("V", nu, i)]) for i in range(8)]

            def mm(c):
                t = TP + 8 * (c & 1)
                for u in range(2):
                    a = ACC + 4 * (2 * c + u)
                    A(f"v_mfma_f32_16x16x32_bf16 v[{a}:{a + 3}], v[{pf}:{pf + 3}], v[{t + 4 * u}:{t + 4 * u + 3}], v[{a}:{a + 3}]")
            for c in range(4):
                perm_group(srcs, c, TP + 8 * (c & 1))
                if c > 0:
                    mm(c - 1)
            A("s_nop 1")
            mm(3)
            for i in range(8):
                free.append(slot_of[("V", nu, i)])

        w2_state = 0
        for nu in range(16):
            v_unit(nu)
            backlog = nxt[0] - 128 - (nu + 1) * 8
            issue_next(max(2, min(8, D + 8 - backlog)))
            if backlog <= D + 2:
                if w2_state in (1, 3) and len(free) >= 8:
                    a = (w2_state - 1) // 2
                    waitfor(("W", a, 7))
                    srcs = [sreg(slot_of[("W", a, i)]) for i in range(8)]
                    outs = [free.pop(0) for _ in range(8)]
                    for c in range(4):
                        for u in range(2):
                            dst = sreg(outs[2 * c + u])
                            sel = "s56" if u == 0 else "s57"
                            for r in range(4):
                                A(f"v_perm_b32 v{dst + r}, v{srcs[2 * r + 1] + c}, v{srcs[2 * r] + c}, {sel}")
                            w2_frag[(a, 2 * c + u)] = dst
                    for i in range(8):
                        free.append(slot_of[("W", a, i)])
                    w2_state += 1
                elif w2_state in (0, 2) and len(free) >= 8:
                    a = w2_state // 2
                    for i in range(8):
                        issue(("W", a, i))
                    w2_state += 1
        assert w2_state == 4, w2_state
        self.stamp(6)
        C("---- tail: write acc to LDS: lane (j,g): combo g, cols j*8..+8 -> [h][256] layout")
        A("v_and_b32 v10, 1, v3")
        A("v_lshrrev_b32 v11, 1, v3")
        A("v_lshlrev_b32 v10, 10, v10")
        A("v_lshl_add_u32 v10, v11, 9, v10")
        A("v_lshl_add_u32 v10, v2, 5, v10")
        A("s_lshl_b32 s35, s3, 11")
        A("v_add_u32 v10, s35, v10")
        A("s_nop 2")
        for t in range(8):
            A(f"v_mov_b32 v{TP + t}, v{ACC + 4 * t}")
        A(f"ds_write_b128 v10, v[{TP}:{TP + 3}] offset:{L_ACC}")
        A(f"ds_write_b128 v10, v[{TP + 4}:{TP + 7}] offset:{L_ACC + 16}")
        A("s_waitcnt lgkmcnt(0)")
        A("s_barrier")
        C("P1/P2: waves 0,1: lane t=wave*64+l handles cols 4t..4t+3")
        A("s_cmp_ge_u32 s3, 2")
        A("s_cbranch_scc1 L_st_skip1")
        A("s_lshl_b32 s35, s3, 10")
        A("v_lshl_add_u32 v10, v0, 4, s35")
        for w in range(4):
            A(f"ds_read_b128 v[{ACC + 4 * w}:{ACC + 4 * w + 3}], v10 offset:{L_ACC + 2048 * w}")
        A("s_lshl_b32 s35, s7, 13")
        A(f"s_add_u32 s35, s35, {W_OP}")
        self.srd(36, 32, 0x2000, 35)
        A("s_lshl_b32 s48, s6, 11")
        A("s_waitcnt lgkmcnt(0)")
        for e in range(4):
            A(f"v_add_f32 v{ACC + e}, v{ACC + e}, v{ACC + 4 + e}")
            A(f"v_add_f32 v{ACC + 8 + e}, v{ACC + 8 + e}, v{ACC + 12 + e}")
        for e in range(4):
            A(f"v_add_f32 v{ACC + e}, v{ACC + e}, v{ACC + 8 + e}")
        for e in range(4):
            A(f"v_min_u32 v{ACC + e}, -2, v{ACC + e}")
        A(f"buffer_store_dwordx4 v[{ACC}:{ACC + 3}], v10, s[36:39], s48 offen sc1")
        A("v_add_u32 v11, 0x1000, v10")
        lds = []
        for cc in range(4):
            r = ACC + 16 + 4 * cc
            va = "v10" if cc < 2 else "v11"
            lds.append(f"buffer_load_dwordx4 v[{r}:{r + 3}], {va}, s[36:39], 0 offen offset:{(cc & 1) * 2048} sc1")
        self.poll_sentinel(lds, [ACC + 16 + i for i in range(16)], 12, 50)
        self.stamp(7)
        b = ACC + 16
        for e in range(4):
            A(f"v_add_f32 v{b + e}, v{b + e}, v{b + 4 + e}")
            A(f"v_add_f32 v{b + 8 + e}, v{b + 8 + e}, v{b + 12 + e}")
        for e in range(4):
            A(f"v_add_f32 v{b + e}, v{b + e}, v{b + 8 + e}")
        A(f"v_cvt_pk_bf16_f32 v12, v{b}, v{b + 1}")
        A(f"v_cvt_pk_bf16_f32 v13, v{b + 2}, v{b + 3}")
        A("v_lshrrev_b32 v10, 1, v10")
        A(f"ds_write_b64 v10, v[12:13] offset:{L_O}")
        A("s_waitcnt lgkmcnt(0)")
        self.label("L_st_skip1")
        A("s_barrier")
        C("b1 preload: lane k<56 b1[56f+k]")
        self.srd(36, 22, 1792 * 2)
        A(f"s_mul_i32 s48, s34, 112")
        A("v_lshlrev_b32 v10, 1, v0")
        A("buffer_load_ushort v14, v10, s[36:39], s48 offen")
        A("s_barrier")
        A("s_barrier")
        A("s_barrier")
        C("h1: lane k: sum R1[w][k], +b1, relu^2 -> private LDS row, then A frags")
        A("v_lshlrev_b32 v10, 2, v0")
        for w in range(4):
            A(f"ds_read_b32 v{ACC + w}, v10 offset:{L_R1 + 256 * w}")
        A("s_lshl_b32 s35, s3, 7")
        A(f"s_add_u32 s35, s35, {L_H1}")
        A("v_lshl_add_u32 v11, v0, 1, s35")
        A("v_lshl_add_u32 v12, v3, 4, s35")
        A("v_cmp_gt_u32 vcc, 56, v0")
        A("s_waitcnt vmcnt(0) lgkmcnt(0)")
        A(f"v_add_f32 v{ACC}, v{ACC}, v{ACC + 1}")
        A(f"v_add_f32 v{ACC + 2}, v{ACC + 2}, v{ACC + 3}")
        A(f"v_add_f32 v{ACC}, v{ACC}, v{ACC + 2}")
        A("v_lshlrev_b32 v14, 16, v14")
        A(f"v_cvt_pk_bf16_f32 v{ACC}, v{ACC}, v{ACC}")
        A(f"v_lshlrev_b32 v{ACC}, 16, v{ACC}")
        A(f"v_add_f32 v{ACC}, v{ACC}, v14")
        A(f"v_cvt_pk_bf16_f32 v{ACC}, v{ACC}, v{ACC}")
        A(f"v_lshlrev_b32 v{ACC}, 16, v{ACC}")
        A(f"v_max_f32 v{ACC}, 0, v{ACC}")
        A(f"v_mul_f32 v{ACC}, v{ACC}, v{ACC}")
        A(f"v_cvt_pk_bf16_f32 v{ACC}, v{ACC}, v{ACC}")
        A(f"v_cndmask_b32 v{ACC}, 0, v{ACC}, vcc")
        A(f"ds_write_b16 v11, v{ACC}")
        A("s_waitcnt lgkmcnt(0)")
        A(f"ds_read_b128 v[{PF}:{PF + 3}], v12")
        A(f"ds_read_b128 v[{PF + 4}:{PF + 7}], v12 offset:64")
        C("FP[b][f] row: 448 f32")
        A("s_lshl_b32 s35, s4, 5")
        A("s_add_u32 s35, s35, s34")
        A("s_mul_i32 s35, s35, 1792")
        A(f"s_add_u32 s35, s35, {W_FP}")
        self.srd(36, 32, 1792, 35)
        A("s_lshl_b32 s35, s3, 9")
        A("v_lshl_add_u32 v10, v2, 5, s35")
        A("s_waitcnt lgkmcnt(0)")
        for a in range(2):
            for t in range(8):
                d = ACC + 4 * t
                fr = w2_frag[(a, t)]
                c = "0" if a == 0 else f"v[{d}:{d + 3}]"
                A(f"v_mfma_f32_16x16x32_bf16 v[{d}:{d + 3}], v[{PF + 4 * a}:{PF + 4 * a + 3}], v[{fr}:{fr + 3}], {c}")
        A("s_nop 1")
        for t in range(8):
            A(f"v_min_u32 v{TP + t}, -2, v{ACC + 4 * t}")
            if t < 7:
                pass
        A("s_mov_b64 exec, 0xffff")
        A(f"buffer_store_dwordx4 v[{TP}:{TP + 3}], v10, s[36:39], 0 offen sc1")
        A(f"buffer_store_dwordx4 v[{TP + 4}:{TP + 7}], v10, s[36:39], 0 offen offset:16 sc1")
        A("s_mov_b64 exec, -1")
        self.stamp(8)
        self.dump_stamps(9, 10)
        A("s_endpgm")

    def service(self):
        A, C = self.A, self.C
        self.label("L_service")
        C("================= service waves (4..7), s3 -> 0..3 in s35 =================")
        WO = 64
        W1 = 192
        ST = 16
        A("s_sub_u32 s35, s3, 4")
        A("v_cmp_gt_u32 s[52:53], 56, v0")
        A("v_lshlrev_b32 v4, 4, v0")
        A(f"v_mov_b32 v5, {L_FLAG}")
        A("v_mov_b32 v8, 0")
        A("v_mov_b32 v9, 0")
        A("v_mov_b32 v10, 0")
        A("v_mov_b32 v11, 0")
        A("s_waitcnt lgkmcnt(0)")
        C("x rows 2s, 2s+1")
        self.srd(36, 8, 8 * 896)
        A("s_mul_i32 s48, s35, 1792")
        A(f"buffer_load_dwordx4 v[{ST}:{ST + 3}], v4, s[36:39], s48 offen")
        A(f"buffer_load_dwordx4 v[{ST + 4}:{ST + 7}], v4, s[36:39], s48 offen offset:896")
        C("S0: wq loads into WO area (free for now): 32 x dwordx2")
        A("s_cmp_lg_u32 s35, 0")
        A("s_cbranch_scc1 L_sv_nowq")
        self.srd(40, 14, 448 * 8192)
        A("v_lshlrev_b32 v6, 16, v3")
        A("v_lshl_add_u32 v6, v2, 3, v6")
        A(f"s_mul_i32 s48, s6, {112 * 8192}")
        A("s_lshl_b32 s49, s5, 10")
        A("s_add_u32 s48, s48, s49")
        A("s_lshl_b32 s49, s4, 7")
        A("s_add_u32 s48, s48, s49")
        for kk in range(4):
            for i in range(8):
                r = WO + kk * 16 + i * 2
                A(f"s_add_u32 s49, s48, {(kk * 32 + i) * 8192}")
                A(f"buffer_load_dwordx2 v[{r}:{r + 1}], v6, s[40:43], s49 offen nt")
        C("S0: clear own hand-off slots with the sentinel")
        A("v_mov_b32 v12, -1")
        A("v_mov_b32 v13, -1")
        A("v_mov_b32 v14, -1")
        A("v_mov_b32 v15, -1")
        A("s_lshl_b32 s48, s7, 13")
        A("s_lshl_b32 s49, s6, 11")
        A("s_add_u32 s48, s48, s49")
        A(f"s_add_u32 s48, s48, {W_OP}")
        self.srd(44, 32, 2048, 48)
        A("buffer_store_dwordx4 v[12:15], v4, s[44:47], 0 offen sc1")
        A("buffer_store_dwordx4 v[12:15], v4, s[44:47], 0 offen offset:1024 sc1")
        A("s_lshl_b32 s48, s7, 7")
        A("s_lshl_b32 s49, s6, 4")
        A("s_add_u32 s48, s48, s49")
        A(f"s_add_u32 s48, s48, {W_ST}")
        self.srd(44, 32, 16, 48)
        A("buffer_store_dwordx4 v[12:15], v4, s[44:47], 0 offen sc1")
        A("s_mul_i32 s48, s7, 1792")
        A("s_mul_i32 s49, s6, 448")
        A("s_add_u32 s48, s48, s49")
        A(f"s_add_u32 s48, s48, {W_AP}")
        self.srd(44, 32, 448, 48)
        A("buffer_store_dwordx4 v[12:15], v4, s[44:47], 0 offen sc1")
        A("s_lshl_b32 s48, s4, 5")
        A("s_add_u32 s48, s48, s34")
        A("s_mul_i32 s48, s48, 1792")
        A(f"s_add_u32 s48, s48, {W_FP}")
        self.srd(44, 32, 1792, 48)
        A("buffer_store_dwordx4 v[12:15], v4, s[44:47], 0 offen sc1")
        A("buffer_store_dwordx4 v[12:15], v4, s[44:47], 0 offen offset:1024 sc1")
        C("flags = 0, HN tail = 0")
        A("ds_write_b128 v5, v[8:11]")
        A(f"ds_write_b128 v4, v[8:11] offset:{L_HN}")
        self.label("L_sv_nowq")
        C("zero region: each service wave clears 1 KiB")
        A("s_lshl_b32 s48, s35, 10")
        A("v_add_u32 v6, s48, v4")
        A(f"ds_write_b128 v6, v[8:11] offset:{L_ZERO}")
        A("s_waitcnt lgkmcnt(0)")
        A("s_barrier")
        C("LN1 of 2 rows")
        A("s_cmp_lg_u32 s35, 0")
        A("s_cbranch_scc1 L_sv_w0")
        A("s_waitcnt vmcnt(38)")
        A("s_branch L_sv_w1")
        self.label("L_sv_w0")
        A("s_waitcnt vmcnt(0)")
        self.label("L_sv_w1")
        X0, X1 = 24, 32
        self.unpack8(ST, X0)
        self.unpack8(ST + 4, X1)
        self.layernorm([([X0 + e for e in range(8)], ST), ([X1 + e for e in range(8)], ST + 4)], 52, 40)
        A("s_mul_i32 s48, s35, 1792")
        A("v_add_u32 v6, s48, v4")
        A("s_mov_b64 exec, s[52:53]")
        A(f"ds_write_b128 v6, v[{ST}:{ST + 3}] offset:{L_XN}")
        A(f"ds_write_b128 v6, v[{ST + 4}:{ST + 7}] offset:{L_XN + 896}")
        A("v_mov_b32 v7, 1")
        A("s_waitcnt lgkmcnt(0)")
        A("s_mov_b64 exec, 1")
        A("ds_add_u32 v5, v7")
        A("s_mov_b64 exec, -1")
        A("s_cmp_lg_u32 s35, 0")
        A("s_cbranch_scc1 L_sv_weights")
        C("---- S0: q partial ----")
        QB = WO + 64
        A("s_waitcnt vmcnt(6)")
        for kk in range(4):
            for c in range(2):
                for u in range(2):
                    dst = QB + kk * 16 + (2 * c + u) * 4
                    sel = "s56" if u == 0 else "s57"
                    for r in range(4):
                        s0 = WO + kk * 16 + (2 * r + 1) * 2 + c
                        s1 = WO + kk * 16 + (2 * r) * 2 + c
                        A(f"v_perm_b32 v{dst + r}, v{s0}, v{s1}, {sel}")
        C("A frag address: (rho&7)*896 + c*224 + g*16 (+kk*64); kk=3,g>=2 -> zero region")
        A("v_and_b32 v6, 7, v2")
        A("v_mul_u32_u24 v6, 896, v6")
        A("v_lshl_add_u32 v6, v3, 4, v6")
        A("s_mul_i32 s48, s6, 224")
        A("v_add_u32 v6, s48, v6")
        A(f"v_add_u32 v7, {L_XN + 192}, v6")
        A(f"v_mov_b32 v12, {L_ZERO}")
        A("v_cmp_gt_u32 vcc, 2, v3")
        A("s_nop 1")
        A("v_cndmask_b32 v7, v12, v7, vcc")
        self.lds_spin(5, 0, 4, 12, 50)
        for kk in range(3):
            A(f"ds_read_b128 v[{ST + 4 * kk}:{ST + 4 * kk + 3}], v6 offset:{L_XN + 64 * kk}")
        A(f"ds_read_b128 v[{ST + 12}:{ST + 15}], v7")
        C("QP store addressing: QP[hkv][row b'][c][64b + 4j]; lane (j,g<2) rows 4g+r")
        A("s_lshl_b32 s48, s5, 16")
        A(f"s_add_u32 s48, s48, {W_QP}")
        self.srd(44, 32, 0x10000, 48)
        A("v_lshlrev_b32 v6, 15, v3")
        A("v_lshl_add_u32 v6, v2, 4, v6")
        A("s_lshl_b32 s48, s6, 11")
        A("s_lshl_b32 s49, s4, 8")
        A("s_add_u32 s48, s48, s49")
        A("s_waitcnt lgkmcnt(0)")
        DQ = 32
        for kk in range(4):
            for t in range(4):
                d = DQ + 4 * t
                fr = QB + kk * 16 + t * 4
                c = "0" if kk == 0 else f"v[{d}:{d + 3}]"
                A(f"v_mfma_f32_16x16x32_bf16 v[{d}:{d + 3}], v[{ST + 4 * kk}:{ST + 4 * kk + 3}], v[{fr}:{fr + 3}], {c}")
        A("s_nop 7")
        A("s_nop 1")
        for r in range(4):
            for t in range(4):
                A(f"v_mov_b32 v{48 + 4 * r + t}, v{DQ + 4 * t + r}")
        A("s_mov_b32 exec_hi, 0")
        for r in range(4):
            A(f"s_add_u32 s49, s48, {r * 8192}")
            A(f"buffer_store_dwordx4 v[{48 + 4 * r}:{48 + 4 * r + 3}], v6, s[44:47], s49 offen sc1")
        A("s_mov_b64 exec, 1")
        A("s_lshl_b32 s48, s5, 5")
        A("v_mov_b32 v6, s48")
        A("v_mov_b32 v7, 1")
        A("s_waitcnt vmcnt(0)")
        A("global_atomic_add v6, v7, s[30:31] sc1")
        self.stamp(1)
        C("poll counter[hkv] == 32")
        A(f"s_mov_b32 s51, {self.poll_cap}")
        self.label("L_sv_qpoll")
        A("global_load_dword v7, v6, s[30:31] sc1")
        A("s_waitcnt vmcnt(0)")
        A("v_readfirstlane_b32 s50, v7")
        A("s_nop 0")
        A("s_cmp_eq_u32 s50, 32")
        A("s_cbranch_scc1 L_sv_qok")
        A("s_sleep 2")
        A("s_sub_u32 s51, s51, 1")
        A("s_cmp_lg_u32 s51, 0")
        A("s_cbranch_scc1 L_sv_qpoll")
        self.label("L_sv_qok")
        A("s_mov_b64 exec, -1")
        self.stamp(2)
        C("gather q: QP[hkv][b][c'][8l..8l+8]")
        A("v_lshlrev_b32 v6, 5, v0")
        A("s_lshl_b32 s48, s4, 13")
        for cc in range(4):
            A(f"s_add_u32 s49, s48, {cc * 2048}")
            A(f"buffer_load_dwordx4 v[{ST + 8 * cc}:{ST + 8 * cc + 3}], v6, s[44:47], s49 offen sc1")
            A(f"buffer_load_dwordx4 v[{ST + 8 * cc + 4}:{ST + 8 * cc + 7}], v6, s[44:47], s49 offen offset:16 sc1")
        A("s_waitcnt vmcnt(0)")
        for e in range(8):
            A(f"v_add_f32 v{ST + e}, v{ST + e}, v{ST + 8 + e}")
            A(f"v_add_f32 v{ST + 16 + e}, v{ST + 16 + e}, v{ST + 24 + e}")
        for e in range(8):
            A(f"v_add_f32 v{ST + e}, v{ST + e}, v{ST + 16 + e}")
        for e in range(4):
            A(f"v_cvt_pk_bf16_f32 v{48 + e}, v{ST + 2 * e}, v{ST + 2 * e + 1}")
        A(f"ds_write_b128 v4, v[48:51] offset:{L_Q}")
        A("v_mov_b32 v7, 1")
        A("s_waitcnt lgkmcnt(0)")
        A("ds_write_b32 v5, v7 offset:4")
        self.stamp(3)
        self.label("L_sv_weights")
        C("---- weights: wo frags (4 ksteps), w1 frags (4 ksteps) ----")
        self.srd(40, 16, 4096 * 896)
        A(f"v_mul_u32_u24 v6, {8 * 896}, v3")
        A("v_lshl_add_u32 v6, v2, 4, v6")
        A("s_lshl_b32 s48, s5, 9")
        A("s_lshl_b32 s49, s35, 7")
        A("s_add_u32 s48, s48, s49")
        A("s_mul_i32 s48, s48, 896")
        A("s_mul_i32 s49, s6, 224")
        A("s_add_u32 s48, s48, s49")
        for kk in range(4):
            for i in range(8):
                if i % 4 == 0:
                    A(f"s_add_u32 s49, s48, {(kk * 32 + i) * 896}")
                r = ST + 4 * i
                A(f"buffer_load_dwordx4 v[{r}:{r + 3}], v6, s[40:43], s49 offen offset:{(i & 3) * 896} {self.wnt}")
            A("s_waitcnt vmcnt(0)")
            for c in range(4):
                for u in range(2):
                    dst = WO + kk * 32 + (2 * c + u) * 4
                    sel = "s56" if u == 0 else "s57"
                    for r in range(4):
                        A(f"v_perm_b32 v{dst + r}, v{ST + 4 * (2 * r + 1) + c}, v{ST + 4 * (2 * r) + c}, {sel}")
        self.srd(40, 20, 448 * 3584)
        A(f"v_mul_u32_u24 v6, {8 * 3584}, v3")
        A("v_lshl_add_u32 v6, v2, 3, v6")
        A(f"s_mul_i32 s48, s35, {32 * 3584}")
        A("s_mul_i32 s49, s34, 112")
        A("s_add_u32 s48, s48, s49")
        for kp in range(2):
            for kk in (2 * kp, 2 * kp + 1):
                for i in range(8):
                    if i % 2 == 0:
                        A(f"s_add_u32 s49, s48, {(kk * 128 + i) * 3584}")
                    r = ST + (kk & 1) * 16 + 2 * i
                    A(f"buffer_load_dwordx2 v[{r}:{r + 1}], v6, s[40:43], s49 offen offset:{(i & 1) * 3584} {self.wnt}")
            A("s_waitcnt vmcnt(0)")
            for kk in (2 * kp, 2 * kp + 1):
                base = ST + (kk & 1) * 16
                for c in range(2):
                    for u in range(2):
                        dst = W1 + kk * 16 + (2 * c + u) * 4
                        sel = "s56" if u == 0 else "s57"
                        for r in range(4):
                            A(f"v_perm_b32 v{dst + r}, v{base + 2 * (2 * r + 1) + c}, v{base + 2 * (2 * r) + c}, {sel}")
        A("s_cmp_lg_u32 s35, 0")
        A("s_cbranch_scc1 L_sv_tail")
        C("---- S0: softmax stats, exchange, P ----")
        self.stamp(4)
        self.lds_spin(5, 8, 4, 12, 50)
        self.stamp(5)
        A("v_lshlrev_b32 v6, 6, v0")
        for k in range(4):
            A(f"ds_read_b128 v[{48 + 4 * k}:{48 + 4 * k + 3}], v6 offset:{L_SC + 16 * k}")
        A("s_lshl_b32 s48, s7, 7")
        A(f"s_add_u32 s48, s48, {W_ST}")
        self.srd(44, 32, 64, 48)
        A("s_mov_b32 s50, 0x3db8aa3b")
        A("s_waitcnt lgkmcnt(0)")
        H0, H1 = 16, 32
        for k in range(16):
            A(f"v_lshlrev_b32 v{H0 + k}, 16, v{48 + k}")
            A(f"v_and_b32 v{H1 + k}, 0xffff0000, v{48 + k}")
        for h, base in ((0, H0), (1, H1)):
            m = 8 + h
            A(f"v_max3_f32 v{m}, v{base}, v{base + 1}, v{base + 2}")
            for k in range(3, 15, 2):
                A(f"v_max3_f32 v{m}, v{m}, v{base + k}, v{base + k + 1}")
            A(f"v_max_f32 v{m}, v{m}, v{base + 15}")
        self.allreduce("max", [8, 9], [12, 13])
        for h, base in ((0, H0), (1, H1)):
            m = 8 + h
            sreg = 10 + h
            for k in range(16):
                A(f"v_sub_f32 v{48 + k}, v{base + k}, v{m}")
            for k in range(16):
                A(f"v_mul_f32 v{48 + k}, s50, v{48 + k}")
            for k in range(16):
                A(f"v_exp_f32 v{48 + k}, v{48 + k}")
            A("s_nop 0")
            A(f"v_add_f32 v{sreg}, v48, v49")
            for k in range(2, 16):
                A(f"v_add_f32 v{sreg}, v{sreg}, v{48 + k}")
        self.allreduce("add", [10, 11], [12, 13])
        C("publish (m0, m1, l0, l1) = v8..v11")
        for k in range(4):
            A(f"v_min_u32 v{8 + k}, -2, v{8 + k}")
        A("s_lshl_b32 s48, s6, 4")
        A("v_mov_b32 v7, 0")
        A("s_mov_b64 exec, 1")
        A("buffer_store_dwordx4 v[8:11], v7, s[44:47], s48 offen sc1")
        A("s_mov_b64 exec, -1")
        lds = [f"buffer_load_dwordx4 v[{48 + 4 * cc}:{48 + 4 * cc + 3}], v7, s[44:47], 0 offen offset:{16 * cc} sc1" for cc in range(4)]
        self.poll_sentinel(lds, [48 + i for i in range(16)], 12, 51)
        self.stamp(6)
        for h in range(2):
            A(f"v_max3_f32 v{8 + h}, v{48 + h}, v{52 + h}, v{56 + h}")
            A(f"v_max_f32 v{8 + h}, v{8 + h}, v{60 + h}")
        for h in range(2):
            for cc in range(4):
                A(f"v_sub_f32 v{48 + 4 * cc + h}, v{48 + 4 * cc + h}, v{8 + h}")
                A(f"v_mul_f32 v{48 + 4 * cc + h}, s50, v{48 + 4 * cc + h}")
                A(f"v_exp_f32 v{48 + 4 * cc + h}, v{48 + 4 * cc + h}")
            A("s_nop 0")
            A(f"v_mul_f32 v{10 + h}, v{48 + h}, v{50 + h}")
            for cc in range(1, 4):
                A(f"v_fmac_f32 v{10 + h}, v{48 + 4 * cc + h}, v{50 + 4 * cc + h}")
            A(f"v_rcp_f32 v{10 + h}, v{10 + h}")
        for h, base in ((0, H0), (1, H1)):
            for k in range(16):
                A(f"v_sub_f32 v{base + k}, v{base + k}, v{8 + h}")
            for k in range(16):
                A(f"v_mul_f32 v{base + k}, s50, v{base + k}")
            for k in range(16):
                A(f"v_exp_f32 v{base + k}, v{base + k}")
            A("s_nop 0")
            for k in range(16):
                A(f"v_mul_f32 v{base + k}, v{base + k}, v{10 + h}")
            for par in range(2):
                for d in range(4):
                    A(f"v_cvt_pk_bf16_f32 v{48 + h * 8 + par * 4 + d}, v{base + 4 * d + par}, v{base + 4 * d + 2 + par}")
        for k in range(4):
            A(f"ds_write_b128 v6, v[{48 + 4 * k}:{48 + 4 * k + 3}] offset:{L_P + 16 * k}")
        A("v_mov_b32 v7, 1")
        A("s_waitcnt lgkmcnt(0)")
        A("ds_write_b32 v5, v7 offset:12")
        self.stamp(7)
        C("all 8 counters must read 32 (every workgroup has cleared its slots) before later hand-offs are polled")
        A("v_lshlrev_b32 v6, 5, v0")
        A("s_mov_b64 exec, 0xff")
        A(f"s_mov_b32 s51, {self.poll_cap}")
        self.label("L_sv_apoll")
        A("global_load_dword v7, v6, s[30:31] sc1")
        A("s_waitcnt vmcnt(0)")
        A("v_cmp_ne_u32 vcc, 32, v7")
        A("s_cbranch_vccz L_sv_aok")
        A("s_sleep 2")
        A("s_sub_u32 s51, s51, 1")
        A("s_cmp_lg_u32 s51, 0")
        A("s_cbranch_scc1 L_sv_apoll")
        self.label("L_sv_aok")
        A("s_mov_b64 exec, -1")
        C("preload x row b (for h) and b2")
        self.srd(36, 8, 8 * 896)
        A("s_mul_i32 s48, s4, 896")
        A("buffer_load_dwordx4 v[56:59], v4, s[36:39], s48 offen")
        self.srd(36, 26, 896)
        A("v_and_b32 v7, 3, v0")
        A("v_lshlrev_b32 v7, 3, v7")
        A("s_lshl_b32 s48, s34, 5")
        A("buffer_load_dwordx2 v[60:61], v7, s[36:39], s48 offen")
        self.label("L_sv_tail")
        C("---- tail ----")
        A("v_lshlrev_b32 v6, 4, v3")
        A("s_lshl_b32 s48, s35, 8")
        A("v_add_u32 v6, s48, v6")
        A("s_barrier")
        A("s_barrier")
        for kk in range(4):
            A(f"ds_read_b128 v[{ST + 4 * kk}:{ST + 4 * kk + 3}], v6 offset:{L_O + 64 * kk}")
        A("s_lshl_b32 s48, s35, 9")
        A("v_lshl_add_u32 v7, v2, 5, s48")
        DT = 24
        accs = [32, 36, 40, 44, 48, 52, 8, 12]
        for kk in range(4):
            A(f"s_waitcnt lgkmcnt({3 - kk})")
            for t in range(8):
                d = accs[t]
                fr = WO + kk * 32 + t * 4
                c = "0" if kk == 0 else f"v[{d}:{d + 3}]"
                A(f"v_mfma_f32_16x16x32_bf16 v[{d}:{d + 3}], v[{ST + 4 * kk}:{ST + 4 * kk + 3}], v[{fr}:{fr + 3}], {c}")
        A("s_nop 1")
        for t in range(8):
            A(f"v_mov_b32 v{ST + t}, v{accs[t]}")
        A(f"ds_write_b128 v7, v[{ST}:{ST + 3}] offset:{L_T1}")
        A(f"ds_write_b128 v7, v[{ST + 4}:{ST + 7}] offset:{L_T1 + 16}")
        A("s_waitcnt lgkmcnt(0)")
        A("s_barrier")
        A("s_cmp_lg_u32 s35, 0")
        A("s_cbranch_scc1 L_sv_skip2")
        self.stamp(8)
        C("S0: P4: lanes<28: sum 4 waves, publish AP[b][hkv][112c + 4l]")
        for w in range(4):
            A(f"ds_read_b128 v[{ST + 4 * w}:{ST + 4 * w + 3}], v4 offset:{L_T1 + 512 * w}")
        A("s_mul_i32 s48, s4, 14336")
        A(f"s_add_u32 s48, s48, {W_AP}")
        self.srd(44, 32, 14336, 48)
        A("s_mul_i32 s48, s5, 1792")
        A("s_mul_i32 s49, s6, 448")
        A("s_add_u32 s48, s48, s49")
        A("v_lshlrev_b32 v7, 5, v0")
        A("s_waitcnt lgkmcnt(0)")
        for e in range(4):
            A(f"v_add_f32 v{ST + e}, v{ST + e}, v{ST + 4 + e}")
            A(f"v_add_f32 v{ST + 8 + e}, v{ST + 8 + e}, v{ST + 12 + e}")
        for e in range(4):
            A(f"v_add_f32 v{ST + e}, v{ST + e}, v{ST + 8 + e}")
        for e in range(4):
            A(f"v_min_u32 v{ST + e}, -2, v{ST + e}")
        A("s_mov_b64 exec, 0xfffffff")
        A(f"buffer_store_dwordx4 v[{ST}:{ST + 3}], v4, s[44:47], s48 offen sc1")
        C("P5: lanes<56: gather AP[b][h'][8l..8l+8] (wo frags are dead now)")
        A("s_mov_b64 exec, s[52:53]")
        G = WO
        for hh in range(1, 4):
            A(f"s_mov_b32 s{40 + hh}, {hh * 3584}")
        lds = []
        for hh in range(8):
            so = "0" if hh < 2 else f"s{40 + hh // 2}"
            for u in range(2):
                r = G + hh * 8 + u * 4
                lds.append(f"buffer_load_dwordx4 v[{r}:{r + 3}], v7, s[44:47], {so} offen offset:{(hh & 1) * 1792 + 16 * u} sc1")
        self.poll_sentinel(lds, [G + i for i in range(64)], 12, 51)
        A("s_mov_b64 exec, -1")
        self.stamp(9)
        for e in range(8):
            for hh in range(0, 8, 2):
                A(f"v_add_f32 v{G + hh * 8 + e}, v{G + hh * 8 + e}, v{G + hh * 8 + 8 + e}")
        for e in range(8):
            A(f"v_add_f32 v{G + e}, v{G + e}, v{G + 16 + e}")
            A(f"v_add_f32 v{G + 32 + e}, v{G + 32 + e}, v{G + 48 + e}")
        for e in range(8):
            A(f"v_add_f32 v{G + e}, v{G + e}, v{G + 32 + e}")
        for e in range(4):
            A(f"v_cvt_pk_bf16_f32 v{ST + e}, v{G + 2 * e}, v{G + 2 * e + 1}")
        self.unpack8(ST, G)
        self.unpack8(56, G + 8)
        for e in range(8):
            A(f"v_add_f32 v{G + e}, v{G + e}, v{G + 8 + e}")
        for e in range(4):
            A(f"v_cvt_pk_bf16_f32 v{ST + e}, v{G + 2 * e}, v{G + 2 * e + 1}")
        self.unpack8(ST, G)
        self.layernorm([([G + e for e in range(8)], ST)], 52, G + 16)
        A("s_mov_b64 exec, s[52:53]")
        A(f"ds_write_b128 v4, v[{ST}:{ST + 3}] offset:{L_HN}")
        A(f"ds_write_b128 v7, v[{G}:{G + 3}] offset:{L_H}")
        A(f"ds_write_b128 v7, v[{G + 4}:{G + 7}] offset:{L_H + 16}")
        A("s_mov_b64 exec, -1")
        A("s_waitcnt lgkmcnt(0)")
        self.label("L_sv_skip2")
        A("s_barrier")
        C("T2a: ksteps s, s+4, s+8, s+12")
        A("v_lshlrev_b32 v6, 4, v3")
        A("s_lshl_b32 s48, s35, 6")
        A("v_add_u32 v6, s48, v6")
        for kk in range(4):
            A(f"ds_read_b128 v[{ST + 4 * kk}:{ST + 4 * kk + 3}], v6 offset:{L_HN + 256 * kk}")
        A("s_lshl_b32 s48, s35, 8")
        A("v_lshl_add_u32 v7, v2, 4, s48")
        for kk in range(4):
            A(f"s_waitcnt lgkmcnt({3 - kk})")
            for t in range(4):
                d = 32 + 4 * t
                fr = W1 + kk * 16 + t * 4
                c = "0" if kk == 0 else f"v[{d}:{d + 3}]"
                A(f"v_mfma_f32_16x16x32_bf16 v[{d}:{d + 3}], v[{ST + 4 * kk}:{ST + 4 * kk + 3}], v[{fr}:{fr + 3}], {c}")
        A("s_nop 5")
        for t in range(4):
            A(f"v_mov_b32 v{ST + t}, v{32 + 4 * t}")
        A(f"ds_write_b128 v7, v[{ST}:{ST + 3}] offset:{L_R1}")
        A("s_waitcnt lgkmcnt(0)")
        A("s_barrier")
        A("s_cmp_lg_u32 s35, 0")
        A("s_cbranch_scc1 L_end")
        self.stamp(10)
        A("s_cmp_ge_u32 s34, 28")
        A("s_cbranch_scc1 L_sv_fin")
        C("P8: final reduce: FP[b][src][16f + 4q]; lane l: src = l>>2 (+16), q = l&3")
        A("s_mul_i32 s48, s4, 57344")
        A(f"s_add_u32 s48, s48, {W_FP}")
        self.srd(44, 32, 57344, 48)
        A("v_lshrrev_b32 v6, 2, v0")
        A("v_mul_u32_u24 v6, 1792, v6")
        A("v_and_b32 v7, 3, v0")
        A("v_lshl_add_u32 v6, v7, 4, v6")
        A("s_lshl_b32 s48, s34, 6")
        A(f"s_add_u32 s49, s48, {16 * 1792}")
        A("v_lshl_add_u32 v8, v7, 4, s48")
        A(f"ds_read_b128 v[40:43], v8 offset:{L_H}")
        self.srd(36, 28, 7168)
        lds = [f"buffer_load_dwordx4 v[{ST}:{ST + 3}], v6, s[44:47], s48 offen sc1",
               f"buffer_load_dwordx4 v[{ST + 4}:{ST + 7}], v6, s[44:47], s49 offen sc1"]
        self.poll_sentinel(lds, [ST + i for i in range(8)], 12, 51)
        self.stamp(11)
        for e in range(4):
            A(f"v_add_f32 v{ST + e}, v{ST + e}, v{ST + 4 + e}")
        for ctrl in ("row_ror:4", "row_ror:8"):
            A("s_nop 1")
            for e in range(4):
                A(f"v_add_f32_dpp v{ST + e}, v{ST + e}, v{ST + e} {ctrl} row_mask:0xf bank_mask:0xf")
        for sw in ("v_permlane16_swap_b32", "v_permlane32_swap_b32"):
            for e in range(4):
                A(f"v_mov_b32 v{ST + 4 + e}, v{ST + e}")
            A("s_nop 1")
            for e in range(4):
                A(f"{sw} v{ST + e}, v{ST + 4 + e}")
            A("s_nop 1")
            for e in range(4):
                A(f"v_add_f32 v{ST + e}, v{ST + e}, v{ST + 4 + e}")
        A(f"v_cvt_pk_bf16_f32 v{ST + 4}, v{ST}, v{ST + 1}")
        A(f"v_cvt_pk_bf16_f32 v{ST + 5}, v{ST + 2}, v{ST + 3}")
        for e in range(2):
            A(f"v_lshlrev_b32 v{ST + 2 * e}, 16, v{ST + 4 + e}")
            A(f"v_and_b32 v{ST + 2 * e + 1}, 0xffff0000, v{ST + 4 + e}")
            A(f"v_lshlrev_b32 v{32 + 2 * e}, 16, v{60 + e}")
            A(f"v_and_b32 v{32 + 2 * e + 1}, 0xffff0000, v{60 + e}")
        for e in range(4):
            A(f"v_add_f32 v{ST + e}, v{ST + e}, v{32 + e}")
        A(f"v_cvt_pk_bf16_f32 v{ST + 4}, v{ST}, v{ST + 1}")
        A(f"v_cvt_pk_bf16_f32 v{ST + 5}, v{ST + 2}, v{ST + 3}")
        for e in range(2):
            A(f"v_lshlrev_b32 v{ST + 2 * e}, 16, v{ST + 4 + e}")
            A(f"v_and_b32 v{ST + 2 * e + 1}, 0xffff0000, v{ST + 4 + e}")
        A("s_waitcnt lgkmcnt(0)")
        for e in range(4):
            A(f"v_add_f32 v{ST + e}, v{ST + e}, v{40 + e}")
        A(f"v_cvt_pk_bf16_f32 v{ST + 4}, v{ST}, v{ST + 1}")
        A(f"v_cvt_pk_bf16_f32 v{ST + 5}, v{ST + 2}, v{ST + 3}")
        A("v_lshlrev_b32 v7, 3, v7")
        A("s_mul_i32 s48, s4, 896")
        A("s_lshl_b32 s49, s34, 5")
        A("s_add_u32 s48, s48, s49")
        A("s_mov_b64 exec, 0xf")
        A(f"buffer_store_dwordx2 v[{ST + 4}:{ST + 5}], v7, s[36:39], s48 offen")
        A("s_mov_b64 exec, -1")
        self.label("L_sv_fin")
        self.stamp(12)
        self.dump_stamps(13, 8)


if __name__ == "__main__":
    import argparse
    ap = argparse.ArgumentParser()
    ap.add_argument("-o", default=f"cdna_kernels/{NAME}.s")
    ap.add_argument("--D", type=int, default=5)
    ap.add_argument("--R", type=int, default=40)
    ap.add_argument("--stamps", action="store_true")
    ap.add_argument("--wnt", default="")
    ap.add_argument("--knt", default="nt")
    a = ap.parse_args()
    g = Gen(D=a.D, R=a.R, stamps=a.stamps, wnt=a.wnt, knt=a.knt)
    open(a.o, "w").write(g.build())
```

```python
import sys

NAME = "sequential_preLN__gqa_block_cached__dense_activation_squared_relu__decode"

HEADER = """; Kernarg layout for this problem (104 bytes, ptrs only, base s[0:1]):
"""

L_XN = 0x0000
L_Q = 0x1C00
L_SC = 0x2000
L_SCD = 0x3000
L_P = 0x4000
L_ZERO = 0x5000
L_ACC = 0x6000
L_O = 0x8000
L_T1 = 0x8400
L_HN = 0x8C00
L_H = 0x9000
L_R1 = 0x9800
L_H1 = 0x9C00
L_FLAG = 0x9E00
LDS_BYTES = 0xA000

W_QG = 0x000000
W_EP = 0x070000
W_ST = 0x080000
W_OP = 0x090000
W_AP = 0x110000
W_FP = 0x130000
W_END = 0x200000
W_STAMP = 0x1000000


class Gen:
    def __init__(self, D=5, R=40, stamps=False, wnt="", knt="nt", poll_cap=200000, wdelay=True, wsleep=0, qnt="nt", wd=8):
        self.L = []
        self.D = D
        self.R = R
        self.stamps = stamps
        self.wnt = wnt
        self.knt = knt
        self.poll_cap = poll_cap
        self.nlabel = 0
        self.wdelay = wdelay
        self.wsleep = wsleep
        self.qnt = qnt
        self.wd = wd

    def A(self, s):
        self.L.append("    " + s)

    def C(self, s):
        self.L.append("    ; " + s)

    def label(self, name):
        self.L.append(name + ":")

    def newlabel(self, base):
        self.nlabel += 1
        return f"L_{base}_{self.nlabel}"

    def stamp(self, idx):
        if self.stamps:
            self.A(f"s_memrealtime s[{60 + 2 * idx}:{61 + 2 * idx}]")

    def dump_stamps(self, n, vbase):
        if not self.stamps:
            return
        A = self.A
        A("s_waitcnt lgkmcnt(0)")
        A("s_lshl_b32 s58, s2, 3")
        A("s_add_u32 s58, s58, s3")
        A("s_lshl_b32 s58, s58, 7")
        A(f"s_add_u32 s58, s58, {W_STAMP}")
        A("s_mov_b64 exec, 1")
        A(f"v_mov_b32 v{vbase}, s58")
        for i in range(n):
            A(f"v_mov_b32 v{vbase + 2}, s{60 + 2 * i}")
            A(f"v_mov_b32 v{vbase + 3}, s{61 + 2 * i}")
            A(f"global_store_dwordx2 v{vbase}, v[{vbase + 2}:{vbase + 3}], s[32:33] offset:{8 * i}")
            A("s_nop 1")
        A("s_mov_b64 exec, -1")

    def srd(self, d, ptr, size, off_sgpr=None):
        A = self.A
        if off_sgpr is None:
            A(f"s_mov_b32 s{d}, s{ptr}")
            A(f"s_mov_b32 s{d + 1}, s{ptr + 1}")
        else:
            A(f"s_add_u32 s{d}, s{ptr}, s{off_sgpr}")
            A(f"s_addc_u32 s{d + 1}, s{ptr + 1}, 0")
        A(f"s_mov_b32 s{d + 2}, {size}")
        A(f"s_mov_b32 s{d + 3}, 0x20000")

    def allreduce(self, op, regs, tmps):
        A = self.A
        for ctrl in ("quad_perm:[1,0,3,2]", "quad_perm:[2,3,0,1]", "row_half_mirror", "row_mirror"):
            A("s_nop 1")
            for r in regs:
                A(f"v_{op}_f32_dpp v{r}, v{r}, v{r} {ctrl} row_mask:0xf bank_mask:0xf")
        for sw in ("v_permlane16_swap_b32", "v_permlane32_swap_b32"):
            for r, t in zip(regs, tmps):
                A(f"v_mov_b32 v{t}, v{r}")
            A("s_nop 1")
            for r, t in zip(regs, tmps):
                A(f"{sw} v{r}, v{t}")
            A("s_nop 1")
            for r, t in zip(regs, tmps):
                A(f"v_{op}_f32 v{r}, v{r}, v{t}")

    def lds_spin(self, vaddr, off, target, vtmp, stmp):
        A = self.A
        l = self.newlabel("spin")
        d = self.newlabel("spun")
        A(f"s_mov_b32 s59, {self.poll_cap * 20}")
        self.label(l)
        A(f"ds_read_b32 v{vtmp}, v{vaddr} offset:{off}")
        A("s_waitcnt lgkmcnt(0)")
        A(f"v_readfirstlane_b32 s{stmp}, v{vtmp}")
        A("s_nop 0")
        A(f"s_cmp_eq_u32 s{stmp}, {target}")
        A(f"s_cbranch_scc1 {d}")
        A("s_sleep 1")
        A("s_sub_u32 s59, s59, 1")
        A("s_cmp_lg_u32 s59, 0")
        A(f"s_cbranch_scc1 {l}")
        self.label(d)

    def poll_sentinel(self, loads, regs, vtmp, scnt):
        A = self.A
        l = self.newlabel("poll")
        d = self.newlabel("polled")
        A(f"s_mov_b32 s{scnt}, {self.poll_cap}")
        self.label(l)
        for s in loads:
            A(s)
        A("s_waitcnt vmcnt(0)")
        A(f"v_max3_u32 v{vtmp}, v{regs[0]}, v{regs[1]}, v{regs[2]}")
        rest = regs[3:]
        while len(rest) >= 2:
            A(f"v_max3_u32 v{vtmp}, v{vtmp}, v{rest[0]}, v{rest[1]}")
            rest = rest[2:]
        if rest:
            A(f"v_max_u32 v{vtmp}, v{vtmp}, v{rest[0]}")
        A(f"v_cmp_eq_u32 vcc, -1, v{vtmp}")
        A(f"s_cbranch_vccz {d}")
        A(f"s_sub_u32 s{scnt}, s{scnt}, 1")
        A(f"s_cmp_lg_u32 s{scnt}, 0")
        A(f"s_cbranch_scc1 {l}")
        self.label(d)

    def layernorm(self, rows, smask, t):
        A = self.A
        n = len(rows)
        S = [t + i for i in range(n)]
        T = [t + n + i for i in range(n)]
        M = [t + 2 * n + i for i in range(n)]
        DD = t + 3 * n
        for k, (x, o) in enumerate(rows):
            A(f"v_add_f32 v{S[k]}, v{x[0]}, v{x[1]}")
            for e in range(2, 8):
                A(f"v_add_f32 v{S[k]}, v{S[k]}, v{x[e]}")
            A(f"v_cndmask_b32 v{S[k]}, 0, v{S[k]}, s[{smask}:{smask + 1}]")
        self.allreduce("add", S, T)
        for k, (x, o) in enumerate(rows):
            A(f"v_mul_f32 v{M[k]}, 0x3b124925, v{S[k]}")
        for k, (x, o) in enumerate(rows):
            for e in range(8):
                A(f"v_sub_f32 v{DD + e}, v{x[e]}, v{M[k]}")
            A(f"v_mul_f32 v{S[k]}, v{DD}, v{DD}")
            for e in range(1, 8):
                A(f"v_fmac_f32 v{S[k]}, v{DD + e}, v{DD + e}")
            A(f"v_cndmask_b32 v{S[k]}, 0, v{S[k]}, s[{smask}:{smask + 1}]")
        self.allreduce("add", S, T)
        for k, (x, o) in enumerate(rows):
            A(f"v_mul_f32 v{S[k]}, 0x3b124925, v{S[k]}")
            A(f"v_cvt_pk_bf16_f32 v{T[k]}, v{M[k]}, v{S[k]}")
            A(f"v_lshlrev_b32 v{M[k]}, 16, v{T[k]}")
            A(f"v_and_b32 v{S[k]}, 0xffff0000, v{T[k]}")
            A(f"v_add_f32 v{S[k]}, 0x3727c5ac, v{S[k]}")
            A(f"v_cvt_pk_bf16_f32 v{S[k]}, v{S[k]}, v{S[k]}")
            A(f"v_lshlrev_b32 v{S[k]}, 16, v{S[k]}")
            A(f"v_sqrt_f32 v{S[k]}, v{S[k]}")
            A("s_nop 0")
            A(f"v_cvt_pk_bf16_f32 v{S[k]}, v{S[k]}, v{S[k]}")
            A(f"v_lshlrev_b32 v{S[k]}, 16, v{S[k]}")
            A(f"v_rcp_f32 v{S[k]}, v{S[k]}")
            for e in range(8):
                A(f"v_sub_f32 v{DD + e}, v{x[e]}, v{M[k]}")
            for e in range(4):
                A(f"v_cvt_pk_bf16_f32 v{o + e}, v{DD + 2 * e}, v{DD + 2 * e + 1}")
            for e in range(4):
                A(f"v_lshlrev_b32 v{DD + 2 * e}, 16, v{o + e}")
                A(f"v_and_b32 v{DD + 2 * e + 1}, 0xffff0000, v{o + e}")
            for e in range(8):
                A(f"v_mul_f32 v{DD + e}, v{DD + e}, v{S[k]}")
            for e in range(4):
                A(f"v_cvt_pk_bf16_f32 v{o + e}, v{DD + 2 * e}, v{DD + 2 * e + 1}")

    def unpack8(self, src, dst):
        for e in range(4):
            self.A(f"v_lshlrev_b32 v{dst + 2 * e}, 16, v{src + e}")
            self.A(f"v_and_b32 v{dst + 2 * e + 1}, 0xffff0000, v{src + e}")

    def build(self):
        A, C = self.A, self.C
        D, R = self.D, self.R
        self.L.append(HEADER.rstrip())
        self.L.append(f"; @launch grid=(256,1,1) block=(512,1,1) lds={LDS_BYTES}")
        self.L.append('.amdgcn_target "amdgcn-amd-amdhsa--gfx950"')
        self.L.append(".text")
        self.L.append(f".globl {NAME}_kernel")
        self.L.append(".p2align 8")
        self.L.append(f".type {NAME}_kernel,@function")
        self.label(f"{NAME}_kernel")
        A("s_cmp_ge_u32 s2, 256")
        A("s_cbranch_scc1 L_end")
        self.stamp(0)
        A("s_load_dwordx16 s[8:23], s[0:1], 0")
        A("s_load_dwordx8 s[24:31], s[0:1], 64")
        A("s_load_dwordx2 s[32:33], s[0:1], 96")
        A("v_lshrrev_b32 v1, 6, v0")
        A("v_and_b32 v0, 63, v0")
        A("v_readfirstlane_b32 s3, v1")
        C("decode wg -> b (s4), hkv (s5), c (s6), pair (s7), f = hkv*4+c (s34)")
        A("s_lshr_b32 s4, s2, 3")
        A("s_lshr_b32 s5, s4, 3")
        A("s_and_b32 s4, s4, 7")
        A("s_lshl_b32 s5, s5, 1")
        A("s_bfe_u32 s6, s2, 0x10002")
        A("s_add_u32 s5, s5, s6")
        A("s_and_b32 s6, s2, 3")
        A("s_lshl_b32 s7, s4, 3")
        A("s_add_u32 s7, s7, s5")
        A("s_lshl_b32 s34, s5, 2")
        A("s_add_u32 s34, s34, s6")
        A("s_mov_b32 s56, 0x05040100")
        A("s_mov_b32 s57, 0x07060302")
        A("v_and_b32 v2, 15, v0")
        A("v_lshrrev_b32 v3, 4, v0")
        A("s_cmp_ge_u32 s3, 4")
        A("s_cbranch_scc1 L_service")
        self.stream()
        self.service()
        self.label("L_end")
        A("s_endpgm")
        self.L.append('.section .rodata,"a"')
        self.L.append(".p2align 6")
        self.L.append(f".amdhsa_kernel {NAME}_kernel")
        self.L.append("  .amdhsa_next_free_vgpr 256")
        self.L.append("  .amdhsa_next_free_sgpr 102")
        self.L.append("  .amdhsa_accum_offset 256")
        self.L.append("  .amdhsa_group_segment_fixed_size 0")
        self.L.append("  .amdhsa_kernarg_size 104")
        self.L.append("  .amdhsa_user_sgpr_count 2")
        self.L.append("  .amdhsa_user_sgpr_kernarg_segment_ptr 1")
        self.L.append("  .amdhsa_system_sgpr_workgroup_id_x 1")
        self.L.append("  .amdhsa_float_denorm_mode_32 3")
        self.L.append(".end_amdhsa_kernel")
        return "\n".join(self.L) + "\n"

    def stream(self):
        A, C = self.A, self.C
        D, R = self.D, self.R
        C("================= stream waves (0..3) =================")
        vK, vV, vSC, vP, vFL, vW2, vT = 4, 5, 6, 7, 8, 9, 10
        QF = 16
        DK = 32
        ACC = 16
        TP = 48
        PF = 64
        RING = 72
        assert RING + 4 * R <= 256
        A("v_and_b32 v10, 7, v0")
        A("v_lshrrev_b32 v11, 3, v0")
        A("v_lshlrev_b32 v4, 9, v10")
        A("v_lshl_add_u32 v4, v11, 4, v4")
        A("s_lshl_b32 s35, s3, 12")
        A("v_add_u32 v4, s35, v4")
        A("v_lshlrev_b32 v5, 4, v0")
        A("s_lshl_b32 s35, s3, 13")
        A("v_add_u32 v5, s35, v5")
        A("s_lshl_b32 s35, s7, 21")
        A("s_lshl_b32 s36, s6, 19")
        A("s_add_u32 s35, s35, s36")
        A("s_waitcnt lgkmcnt(0)")
        self.srd(36, 10, 0x80000, 35)
        self.srd(40, 12, 0x80000, 35)
        self.srd(44, 24, 1792 * 896)
        loads = []
        for nb in range(32):
            for j in range(4):
                loads.append(("K", nb, j))
        for nu in range(16):
            for i in range(8):
                loads.append(("V", nu, i))
        free = list(range(R))
        slot_of = {}
        order = []
        st = {"soff": None}

        def sreg(slot):
            return RING + 4 * slot

        def set_soff(val):
            if st["soff"] != val:
                A(f"s_mov_b32 s48, {val}")
                st["soff"] = val

        def pace():
            if len(order) >= D:
                A(f"s_waitcnt vmcnt({D - 1})")

        def issue(ld):
            pace()
            slot = free.pop(0)
            slot_of[ld] = slot
            r = sreg(slot)
            kind, a, b = ld
            if kind == "K":
                set_soff(a * 16384)
                A(f"buffer_load_dwordx4 v[{r}:{r + 3}], v{vK}, s[36:39], s48 offen offset:{b * 128} {self.knt}")
            elif kind == "V":
                set_soff(a * 32768 + (b >> 2) * 4096)
                A(f"buffer_load_dwordx4 v[{r}:{r + 3}], v{vV}, s[40:43], s48 offen offset:{(b & 3) * 1024} {self.knt}")
            elif kind == "W":
                A(f"s_add_u32 s48, s49, {(a * 32 + (b & 4)) * 896}")
                st["soff"] = None
                A(f"buffer_load_dwordx4 v[{r}:{r + 3}], v{vW2}, s[44:47], s48 offen offset:{(b & 3) * 896} {self.wnt}")
            order.append(ld)

        def waitfor(ld):
            n = len(order) - 1 - order.index(ld)
            A(f"s_waitcnt vmcnt({n})")

        nxt = [0]

        def issue_next(k=1):
            for _ in range(k):
                if nxt[0] < len(loads) and free:
                    issue(loads[nxt[0]])
                    nxt[0] += 1

        issue_next(D)
        C("score write address: lanes (l&15)<8 -> L_SC + (wave*8 + key)*4, others -> dummy")
        A("s_lshl_b32 s35, s3, 5")
        A(f"v_lshl_add_u32 v{vSC}, v2, 2, s35")
        A(f"v_add_u32 v{vSC}, {L_SC}, v{vSC}")
        A(f"v_mov_b32 v10, {L_SCD}")
        A("v_cmp_gt_u32 vcc, 8, v2")
        A("s_nop 1")
        A(f"v_cndmask_b32 v{vSC}, v10, v{vSC}, vcc")
        C("P frag address: combo = rho>>2 = 2*half+h ; active iff (g&1)==half")
        A("v_lshrrev_b32 v10, 2, v2")
        A("v_and_b32 v11, 1, v10")
        A("v_lshrrev_b32 v12, 1, v10")
        A("v_and_b32 v13, 1, v3")
        A("v_lshrrev_b32 v14, 1, v3")
        A("v_lshlrev_b32 v11, 5, v11")
        A("v_lshl_add_u32 v11, v14, 4, v11")
        A("s_lshl_b32 s35, s3, 6")
        A(f"s_add_u32 s35, s35, {L_P}")
        A(f"v_add_u32 v11, s35, v11")
        A(f"v_mov_b32 v10, {L_ZERO}")
        A("v_cmp_eq_u32 vcc, v12, v13")
        A("s_nop 1")
        A(f"v_cndmask_b32 v{vP}, v10, v11, vcc")
        A(f"v_mov_b32 v{vFL}, {L_FLAG}")
        C("w2 lane offset: g*8*896 + wave*256 + j*16 ; s49 = f*56*896")
        A(f"v_mul_u32_u24 v{vW2}, {8 * 896}, v3")
        A(f"v_lshl_add_u32 v{vW2}, v2, 4, v{vW2}")
        A("s_lshl_b32 s35, s3, 8")
        A(f"v_add_u32 v{vW2}, s35, v{vW2}")
        A(f"s_mul_i32 s49, s34, {56 * 896}")
        C("q frag address: (rho&1)*512 + g*32 + ((rho>>1)&1)*16")
        A("v_and_b32 v10, 1, v2")
        A("v_bfe_u32 v11, v2, 1, 1")
        A("v_lshlrev_b32 v10, 9, v10")
        A("v_lshl_add_u32 v10, v3, 5, v10")
        A("v_lshl_add_u32 v15, v11, 4, v10")
        A("s_barrier")
        issue_next(R)
        self.stamp(1)
        self.lds_spin(vFL, 4, 1, 10, 50)
        self.stamp(2)
        for j in range(4):
            A(f"ds_read_b128 v[{QF + 4 * j}:{QF + 4 * j + 3}], v15 offset:{L_Q + 128 * j}")
        A("s_waitcnt lgkmcnt(0)")

        def k_post(nb):
            d = DK + 4 * (nb & 1)
            A(f"v_add_f32_dpp v10, v{d + 2}, v{d} row_ror:8 row_mask:0xf bank_mask:0xf")
            A(f"v_add_f32_dpp v11, v{d + 3}, v{d + 1} row_ror:8 row_mask:0xf bank_mask:0xf")
            A("v_cvt_pk_bf16_f32 v10, v10, v11")
            A(f"ds_write_b32 v{vSC}, v10 offset:{nb * 128}")

        def k_block(nb):
            d = DK + 4 * (nb & 1)
            waitfor(("K", nb, 3))
            for j in range(4):
                r = sreg(slot_of[("K", nb, j)])
                c = "0" if j == 0 else f"v[{d}:{d + 3}]"
                A(f"v_mfma_f32_16x16x32_bf16 v[{d}:{d + 3}], v[{QF + 4 * j}:{QF + 4 * j + 3}], v[{r}:{r + 3}], {c}")
            if nb > 0:
                A("s_nop 4")
                k_post(nb - 1)
            for j in range(4):
                free.append(slot_of[("K", nb, j)])

        for nb in range(32):
            k_block(nb)
            backlog = nxt[0] - (nb + 1) * 4
            issue_next(max(1, min(4, D + 4 - backlog)))
        A("s_nop 7")
        A("s_nop 1")
        k_post(31)
        A("v_mov_b32 v10, 1")
        A("s_waitcnt lgkmcnt(0)")
        A("s_mov_b64 exec, 1")
        A(f"ds_add_u32 v{vFL}, v10 offset:8")
        A("s_mov_b64 exec, -1")
        self.stamp(3)
        issue_next(R)
        for r in range(32):
            A(f"v_mov_b32 v{ACC + r}, 0")
        self.stamp(4)
        self.lds_spin(vFL, 12, 1, 10, 50)
        self.stamp(5)
        A(f"ds_read_b128 v[{PF}:{PF + 3}], v{vP} offset:0")

        w2_loads = [("W", a, i) for a in range(2) for i in range(8)]
        w2_frag = {}

        def perm_group(srcs, c, dst):
            for r in range(4):
                A(f"v_perm_b32 v{dst + r}, v{srcs[2 * r + 1] + c}, v{srcs[2 * r] + c}, s56")
            for r in range(4):
                A(f"v_perm_b32 v{dst + 4 + r}, v{srcs[2 * r + 1] + c}, v{srcs[2 * r] + c}, s57")

        def v_unit(nu):
            pf = PF + 4 * (nu & 1)
            waitfor(("V", nu, 7))
            A("s_waitcnt lgkmcnt(0)")
            if nu + 1 < 16:
                pn = PF + 4 * ((nu + 1) & 1)
                A(f"ds_read_b128 v[{pn}:{pn + 3}], v{vP} offset:{(nu + 1) * 256}")
            srcs = [sreg(slot_of[("V", nu, i)]) for i in range(8)]

            def mm(c):
                t = TP + 8 * (c & 1)
                for u in range(2):
                    a = ACC + 4 * (2 * c + u)
                    A(f"v_mfma_f32_16x16x32_bf16 v[{a}:{a + 3}], v[{pf}:{pf + 3}], v[{t + 4 * u}:{t + 4 * u + 3}], v[{a}:{a + 3}]")
            for c in range(4):
                perm_group(srcs, c, TP + 8 * (c & 1))
                if c > 0:
                    mm(c - 1)
            A("s_nop 1")
            mm(3)
            for i in range(8):
                free.append(slot_of[("V", nu, i)])

        w2_state = 0
        for nu in range(16):
            v_unit(nu)
            backlog = nxt[0] - 128 - (nu + 1) * 8
            issue_next(max(2, min(8, D + 8 - backlog)))
            if backlog <= D + 2:
                if w2_state in (1, 3) and len(free) >= 8:
                    a = (w2_state - 1) // 2
                    waitfor(("W", a, 7))
                    srcs = [sreg(slot_of[("W", a, i)]) for i in range(8)]
                    outs = [free.pop(0) for _ in range(8)]
                    for c in range(4):
                        for u in range(2):
                            dst = sreg(outs[2 * c + u])
                            sel = "s56" if u == 0 else "s57"
                            for r in range(4):
                                A(f"v_perm_b32 v{dst + r}, v{srcs[2 * r + 1] + c}, v{srcs[2 * r] + c}, {sel}")
                            w2_frag[(a, 2 * c + u)] = dst
                    for i in range(8):
                        free.append(slot_of[("W", a, i)])
                    w2_state += 1
                elif w2_state in (0, 2) and len(free) >= 8:
                    a = w2_state // 2
                    for i in range(8):
                        issue(("W", a, i))
                    w2_state += 1
        assert w2_state == 4, w2_state
        self.stamp(6)
        C("---- tail: write acc to LDS: lane (j,g): combo g, cols j*8..+8 -> [h][256] layout")
        A("v_and_b32 v10, 1, v3")
        A("v_lshrrev_b32 v11, 1, v3")
        A("v_lshlrev_b32 v10, 10, v10")
        A("v_lshl_add_u32 v10, v11, 9, v10")
        A("v_lshl_add_u32 v10, v2, 5, v10")
        A("s_lshl_b32 s35, s3, 11")
        A("v_add_u32 v10, s35, v10")
        A("s_nop 2")
        for t in range(8):
            A(f"v_mov_b32 v{TP + t}, v{ACC + 4 * t}")
        A(f"ds_write_b128 v10, v[{TP}:{TP + 3}] offset:{L_ACC}")
        A(f"ds_write_b128 v10, v[{TP + 4}:{TP + 7}] offset:{L_ACC + 16}")
        A("s_waitcnt lgkmcnt(0)")
        A("s_barrier")
        C("P1/P2: waves 0,1: lane t=wave*64+l handles cols 4t..4t+3")
        A("s_cmp_ge_u32 s3, 2")
        A("s_cbranch_scc1 L_st_skip1")
        A("s_lshl_b32 s35, s3, 10")
        A("v_lshl_add_u32 v10, v0, 4, s35")
        for w in range(4):
            A(f"ds_read_b128 v[{ACC + 4 * w}:{ACC + 4 * w + 3}], v10 offset:{L_ACC + 2048 * w}")
        A("s_lshl_b32 s35, s7, 13")
        A(f"s_add_u32 s35, s35, {W_OP}")
        self.srd(36, 32, 0x2000, 35)
        A("s_lshl_b32 s48, s6, 11")
        A("s_waitcnt lgkmcnt(0)")
        for e in range(4):
            A(f"v_add_f32 v{ACC + e}, v{ACC + e}, v{ACC + 4 + e}")
            A(f"v_add_f32 v{ACC + 8 + e}, v{ACC + 8 + e}, v{ACC + 12 + e}")
        for e in range(4):
            A(f"v_add_f32 v{ACC + e}, v{ACC + e}, v{ACC + 8 + e}")
        for e in range(4):
            A(f"v_min_u32 v{ACC + e}, -2, v{ACC + e}")
        A(f"buffer_store_dwordx4 v[{ACC}:{ACC + 3}], v10, s[36:39], s48 offen sc1")
        A("v_add_u32 v11, 0x1000, v10")
        lds = []
        for cc in range(4):
            r = ACC + 16 + 4 * cc
            va = "v10" if cc < 2 else "v11"
            lds.append(f"buffer_load_dwordx4 v[{r}:{r + 3}], {va}, s[36:39], 0 offen offset:{(cc & 1) * 2048} sc1")
        self.poll_sentinel(lds, [ACC + 16 + i for i in range(16)], 12, 50)
        self.stamp(7)
        b = ACC + 16
        for e in range(4):
            A(f"v_add_f32 v{b + e}, v{b + e}, v{b + 4 + e}")
            A(f"v_add_f32 v{b + 8 + e}, v{b + 8 + e}, v{b + 12 + e}")
        for e in range(4):
            A(f"v_add_f32 v{b + e}, v{b + e}, v{b + 8 + e}")
        A(f"v_cvt_pk_bf16_f32 v12, v{b}, v{b + 1}")
        A(f"v_cvt_pk_bf16_f32 v13, v{b + 2}, v{b + 3}")
        A("v_lshrrev_b32 v10, 1, v10")
        A(f"ds_write_b64 v10, v[12:13] offset:{L_O}")
        A("s_waitcnt lgkmcnt(0)")
        self.label("L_st_skip1")
        A("s_barrier")
        C("b1 preload: lane k<56 b1[56f+k]")
        self.srd(36, 22, 1792 * 2)
        A(f"s_mul_i32 s48, s34, 112")
        A("v_lshlrev_b32 v10, 1, v0")
        A("buffer_load_ushort v14, v10, s[36:39], s48 offen")
        A("s_barrier")
        A("s_barrier")
        A("s_barrier")
        C("h1: lane k: sum R1[w][k], +b1, relu^2 -> private LDS row, then A frags")
        A("v_lshlrev_b32 v10, 2, v0")
        for w in range(4):
            A(f"ds_read_b32 v{ACC + w}, v10 offset:{L_R1 + 256 * w}")
        A("s_lshl_b32 s35, s3, 7")
        A(f"s_add_u32 s35, s35, {L_H1}")
        A("v_lshl_add_u32 v11, v0, 1, s35")
        A("v_lshl_add_u32 v12, v3, 4, s35")
        A("v_cmp_gt_u32 vcc, 56, v0")
        A("s_waitcnt vmcnt(0) lgkmcnt(0)")
        A(f"v_add_f32 v{ACC}, v{ACC}, v{ACC + 1}")
        A(f"v_add_f32 v{ACC + 2}, v{ACC + 2}, v{ACC + 3}")
        A(f"v_add_f32 v{ACC}, v{ACC}, v{ACC + 2}")
        A("v_lshlrev_b32 v14, 16, v14")
        A(f"v_cvt_pk_bf16_f32 v{ACC}, v{ACC}, v{ACC}")
        A(f"v_lshlrev_b32 v{ACC}, 16, v{ACC}")
        A(f"v_add_f32 v{ACC}, v{ACC}, v14")
        A(f"v_cvt_pk_bf16_f32 v{ACC}, v{ACC}, v{ACC}")
        A(f"v_lshlrev_b32 v{ACC}, 16, v{ACC}")
        A(f"v_max_f32 v{ACC}, 0, v{ACC}")
        A(f"v_mul_f32 v{ACC}, v{ACC}, v{ACC}")
        A(f"v_cvt_pk_bf16_f32 v{ACC}, v{ACC}, v{ACC}")
        A(f"v_cndmask_b32 v{ACC}, 0, v{ACC}, vcc")
        A(f"ds_write_b16 v11, v{ACC}")
        A("s_waitcnt lgkmcnt(0)")
        A(f"ds_read_b128 v[{PF}:{PF + 3}], v12")
        A(f"ds_read_b128 v[{PF + 4}:{PF + 7}], v12 offset:64")
        C("FP[b][f] row: 448 f32")
        A("s_lshl_b32 s35, s4, 5")
        A("s_add_u32 s35, s35, s34")
        A("s_mul_i32 s35, s35, 1792")
        A(f"s_add_u32 s35, s35, {W_FP}")
        self.srd(36, 32, 1792, 35)
        A("s_lshl_b32 s35, s3, 9")
        A("v_lshl_add_u32 v10, v2, 5, s35")
        A("s_waitcnt lgkmcnt(0)")
        for a in range(2):
            for t in range(8):
                d = ACC + 4 * t
                fr = w2_frag[(a, t)]
                c = "0" if a == 0 else f"v[{d}:{d + 3}]"
                A(f"v_mfma_f32_16x16x32_bf16 v[{d}:{d + 3}], v[{PF + 4 * a}:{PF + 4 * a + 3}], v[{fr}:{fr + 3}], {c}")
        A("s_nop 1")
        for t in range(8):
            A(f"v_min_u32 v{TP + t}, -2, v{ACC + 4 * t}")
            if t < 7:
                pass
        A("s_mov_b64 exec, 0xffff")
        A(f"buffer_store_dwordx4 v[{TP}:{TP + 3}], v10, s[36:39], 0 offen sc1")
        A(f"buffer_store_dwordx4 v[{TP + 4}:{TP + 7}], v10, s[36:39], 0 offen offset:16 sc1")
        A("s_mov_b64 exec, -1")
        self.stamp(8)
        self.dump_stamps(9, 10)
        A("s_endpgm")

    def service(self):
        A, C = self.A, self.C
        self.label("L_service")
        C("================= service waves (4..7), s3 -> 0..3 in s35 =================")
        WO = 64
        W1 = 192
        ST = 16
        A("s_sub_u32 s35, s3, 4")
        A("v_cmp_gt_u32 s[52:53], 56, v0")
        A("v_lshlrev_b32 v4, 4, v0")
        A(f"v_mov_b32 v5, {L_FLAG}")
        A("v_mov_b32 v8, 0")
        A("v_mov_b32 v9, 0")
        A("v_mov_b32 v10, 0")
        A("v_mov_b32 v11, 0")
        A("s_waitcnt lgkmcnt(0)")
        C("x rows 2s, 2s+1")
        self.srd(36, 8, 8 * 896)
        A("s_mul_i32 s48, s35, 1792")
        A("s_cmp_lg_u32 s35, 0")
        A("s_cbranch_scc1 L_sv_noep")
        A(f"v_mov_b32 v6, {W_EP}")
        A("global_load_dwordx2 v[62:63], v6, s[32:33] sc1")
        self.label("L_sv_noep")
        A(f"buffer_load_dwordx4 v[{ST}:{ST + 3}], v4, s[36:39], s48 offen")
        A(f"buffer_load_dwordx4 v[{ST + 4}:{ST + 7}], v4, s[36:39], s48 offen offset:896")
        A("s_cmp_lg_u32 s35, 0")
        A("s_cbranch_scc1 L_sv_nowq")
        C("S0: wq loads into WO area (free for now): 56 x dword; n16 = (wg&7)*32 + (wg>>3) in s54")
        self.srd(40, 14, 448 * 8192)
        A("s_and_b32 s54, s2, 7")
        A("s_lshl_b32 s54, s54, 5")
        A("s_lshr_b32 s49, s2, 3")
        A("s_add_u32 s54, s54, s49")
        A("v_lshrrev_b32 v6, 3, v2")
        A("v_mul_u32_u24 v6, 224, v6")
        A("v_lshl_add_u32 v6, v3, 3, v6")
        A("v_lshlrev_b32 v6, 13, v6")
        A("v_and_b32 v7, 7, v2")
        A("v_lshl_add_u32 v6, v7, 2, v6")
        A("s_lshl_b32 s48, s54, 5")
        for kk in range(7):
            for i in range(8):
                r = WO + kk * 8 + i
                A(f"s_add_u32 s49, s48, {(kk * 32 + i) * 8192}")
                A(f"buffer_load_dword v{r}, v6, s[40:43], s49 offen {self.qnt}")
        C("flags = 0, HN tail = 0")
        A("ds_write_b128 v5, v[8:11]")
        A(f"ds_write_b128 v4, v[8:11] offset:{L_HN}")
        self.label("L_sv_nowq")
        A("s_cmp_lg_u32 s35, 1")
        A("s_cbranch_scc1 L_sv_noclr")
        C("S1: clear own hand-off slots with the sentinel")
        A("v_mov_b32 v12, -1")
        A("v_mov_b32 v13, -1")
        A("v_mov_b32 v14, -1")
        A("v_mov_b32 v15, -1")
        A("s_lshl_b32 s48, s7, 13")
        A("s_lshl_b32 s49, s6, 11")
        A("s_add_u32 s48, s48, s49")
        A(f"s_add_u32 s48, s48, {W_OP}")
        self.srd(44, 32, 2048, 48)
        A("buffer_store_dwordx4 v[12:15], v4, s[44:47], 0 offen sc1")
        A("buffer_store_dwordx4 v[12:15], v4, s[44:47], 0 offen offset:1024 sc1")
        A("s_lshl_b32 s48, s7, 7")
        A("s_lshl_b32 s49, s6, 4")
        A("s_add_u32 s48, s48, s49")
        A(f"s_add_u32 s48, s48, {W_ST}")
        self.srd(44, 32, 16, 48)
        A("buffer_store_dwordx4 v[12:15], v4, s[44:47], 0 offen sc1")
        A("s_mul_i32 s48, s7, 1792")
        A("s_mul_i32 s49, s6, 448")
        A("s_add_u32 s48, s48, s49")
        A(f"s_add_u32 s48, s48, {W_AP}")
        self.srd(44, 32, 448, 48)
        A("buffer_store_dwordx4 v[12:15], v4, s[44:47], 0 offen sc1")
        A("s_lshl_b32 s48, s4, 5")
        A("s_add_u32 s48, s48, s34")
        A("s_mul_i32 s48, s48, 1792")
        A(f"s_add_u32 s48, s48, {W_FP}")
        self.srd(44, 32, 1792, 48)
        A("buffer_store_dwordx4 v[12:15], v4, s[44:47], 0 offen sc1")
        A("buffer_store_dwordx4 v[12:15], v4, s[44:47], 0 offen offset:1024 sc1")
        self.label("L_sv_noclr")
        C("zero region: each service wave clears 1 KiB")
        A("s_lshl_b32 s48, s35, 10")
        A("v_add_u32 v6, s48, v4")
        A(f"ds_write_b128 v6, v[8:11] offset:{L_ZERO}")
        A("s_waitcnt lgkmcnt(0)")
        A("s_barrier")
        C("LN1 of 2 rows")
        A("s_cmp_lg_u32 s35, 0")
        A("s_cbranch_scc1 L_sv_w0")
        A("s_waitcnt vmcnt(56)")
        A("s_branch L_sv_w1")
        self.label("L_sv_w0")
        A("s_waitcnt vmcnt(6)")
        A("s_cmp_eq_u32 s35, 1")
        A("s_cbranch_scc1 L_sv_w1")
        A("s_waitcnt vmcnt(0)")
        self.label("L_sv_w1")
        X0, X1 = 24, 32
        self.unpack8(ST, X0)
        self.unpack8(ST + 4, X1)
        self.layernorm([([X0 + e for e in range(8)], ST), ([X1 + e for e in range(8)], ST + 4)], 52, 40)
        A("s_mul_i32 s48, s35, 1792")
        A("v_add_u32 v6, s48, v4")
        A("s_mov_b64 exec, s[52:53]")
        A(f"ds_write_b128 v6, v[{ST}:{ST + 3}] offset:{L_XN}")
        A(f"ds_write_b128 v6, v[{ST + 4}:{ST + 7}] offset:{L_XN + 896}")
        A("v_mov_b32 v7, 1")
        A("s_waitcnt lgkmcnt(0)")
        A("s_mov_b64 exec, 1")
        A("ds_add_u32 v5, v7")
        A("s_mov_b64 exec, -1")
        A("s_cmp_eq_u32 s35, 0")
        A("s_cbranch_scc1 L_sv_q")
        A("s_cmp_lg_u32 s35, 1")
        A("s_cbranch_scc1 L_sv_weights")
        C("S1: arrival (slots cleared, S0 has read the epoch)")
        self.lds_spin(5, 0, 4, 12, 50)
        A("s_lshl_b32 s48, s5, 5")
        A("v_mov_b32 v6, s48")
        A("v_mov_b32 v7, 1")
        A("s_waitcnt vmcnt(0)")
        A("s_mov_b64 exec, 1")
        A("global_atomic_add v6, v7, s[30:31] sc1")
        A("s_mov_b64 exec, -1")
        A("s_branch L_sv_weights")
        self.label("L_sv_q")
        C("---- S0: q for 16 columns x 8 batches ----")
        QB = WO + 64
        A("v_add_u32 v63, 1, v63")
        A("s_mov_b32 s55, 0x05040302")
        C("A frag address: (rho&7)*896 + (rho>>3)*448 + g*16 (+kk*64)")
        A("v_and_b32 v6, 7, v2")
        A("v_mul_u32_u24 v6, 896, v6")
        A("v_lshl_add_u32 v6, v3, 4, v6")
        A("v_lshrrev_b32 v7, 3, v2")
        A("v_mul_u32_u24 v7, 448, v7")
        A("v_add_u32 v6, v6, v7")
        for kk in range(7):
            A(f"s_waitcnt vmcnt({48 - 8 * kk})")
            for u in range(2):
                dst = QB + kk * 8 + u * 4
                sel = "s56" if u == 0 else "s57"
                for r in range(4):
                    A(f"v_perm_b32 v{dst + r}, v{WO + kk * 8 + 2 * r + 1}, v{WO + kk * 8 + 2 * r}, {sel}")
        self.lds_spin(5, 0, 4, 12, 50)
        for kk in range(7):
            A(f"ds_read_b128 v[{ST + 4 * kk}:{ST + 4 * kk + 3}], v6 offset:{L_XN + 64 * kk}")
        C("QG store addressing: (4g+r)*32768 + n16*128 + jj*16")
        A(f"s_mov_b32 s48, {W_QG}")
        self.srd(44, 32, 0x40000, 48)
        A("v_lshlrev_b32 v6, 17, v3")
        A("v_lshl_add_u32 v6, v2, 4, v6")
        A("s_lshl_b32 s48, s54, 7")
        DQ = 48
        for kk in range(7):
            A(f"s_waitcnt lgkmcnt({6 - kk})")
            for u in range(2):
                d = DQ + 4 * u
                fr = QB + kk * 8 + u * 4
                c = "0" if kk == 0 else f"v[{d}:{d + 3}]"
                A(f"v_mfma_f32_16x16x32_bf16 v[{d}:{d + 3}], v[{ST + 4 * kk}:{ST + 4 * kk + 3}], v[{fr}:{fr + 3}], {c}")
        A("s_nop 7")
        A("s_nop 1")
        for e in range(8):
            A(f"v_mov_b32_dpp v{ST + e}, v{DQ + e} row_ror:8 row_mask:0xf bank_mask:0xf")
        A("s_nop 1")
        for e in range(8):
            A(f"v_permlane32_swap_b32 v{ST + e}, v{ST + 8 + e}")
        A("s_nop 1")
        for e in range(8):
            A(f"v_add_f32 v{DQ + e}, v{DQ + e}, v{ST + 8 + e}")
        for r in range(4):
            o = ST + 16 + 4 * r
            A(f"v_cvt_pk_bf16_f32 v{ST + r}, v{DQ + r}, v{DQ + 4 + r}")
            A(f"v_perm_b32 v{o}, v62, v{ST + r}, s56")
            A(f"v_mov_b32 v{o + 1}, v63")
            A(f"v_perm_b32 v{o + 2}, v62, v{ST + r}, s55")
            A(f"v_mov_b32 v{o + 3}, v63")
        A("s_mov_b64 exec, 0x00ff00ff")
        for r in range(4):
            o = ST + 16 + 4 * r
            A(f"s_add_u32 s49, s48, {r * 32768}")
            A(f"buffer_store_dwordx4 v[{o}:{o + 3}], v6, s[44:47], s49 offen sc1")
        A("s_mov_b64 exec, -1")
        self.stamp(1)
        C("gather q granules: QG[b][hkv*512 + 8l ..]")
        A("v_lshlrev_b32 v6, 6, v0")
        A("s_lshl_b32 s48, s4, 15")
        A("s_lshl_b32 s49, s5, 12")
        A("s_add_u32 s48, s48, s49")
        A("v_lshlrev_b32 v61, 16, v62")
        A(f"s_mov_b32 s51, {self.poll_cap}")
        self.label("L_sv_qpoll")
        for k in range(4):
            A(f"buffer_load_dwordx4 v[{ST + 4 * k}:{ST + 4 * k + 3}], v6, s[44:47], s48 offen offset:{16 * k} sc1")
        A("s_waitcnt vmcnt(0)")
        for k in range(8):
            A(f"v_xor_b32 v{48 + k}, v61, v{ST + 2 * k}")
        A("v_or3_b32 v12, v48, v49, v50")
        A("v_or3_b32 v12, v12, v51, v52")
        A("v_or3_b32 v12, v12, v53, v54")
        A("v_or_b32 v12, v12, v55")
        A("v_lshrrev_b32 v12, 16, v12")
        for k in range(8):
            A(f"v_xor_b32 v{48 + k}, v63, v{ST + 2 * k + 1}")
        A("v_or3_b32 v12, v12, v48, v49")
        A("v_or3_b32 v12, v12, v50, v51")
        A("v_or3_b32 v12, v12, v52, v53")
        A("v_or3_b32 v12, v12, v54, v55")
        A("v_cmp_ne_u32 vcc, 0, v12")
        A("s_cbranch_vccz L_sv_qok")
        A("s_sub_u32 s51, s51, 1")
        A("s_cmp_lg_u32 s51, 0")
        A("s_cbranch_scc1 L_sv_qpoll")
        self.label("L_sv_qok")
        self.stamp(2)
        for k in range(4):
            A(f"v_perm_b32 v{48 + k}, v{ST + 4 * k + 2}, v{ST + 4 * k}, s56")
        A(f"ds_write_b128 v4, v[48:51] offset:{L_Q}")
        A("v_mov_b32 v7, 1")
        A("s_waitcnt lgkmcnt(0)")
        A("ds_write_b32 v5, v7 offset:4")
        A("v_readfirstlane_b32 s55, v63")
        self.stamp(3)
        self.label("L_sv_weights")
        C("---- weights: wo frags (4 ksteps), w1 frags (4 ksteps) ----")
        if self.wdelay:
            self.lds_spin(5, 4, 1, 12, 50)
        self.srd(40, 16, 4096 * 896)
        A(f"v_mul_u32_u24 v6, {8 * 896}, v3")
        A("v_lshl_add_u32 v6, v2, 4, v6")
        A("s_lshl_b32 s48, s5, 9")
        A("s_lshl_b32 s49, s35, 7")
        A("s_add_u32 s48, s48, s49")
        A("s_mul_i32 s48, s48, 896")
        A("s_mul_i32 s49, s6, 224")
        A("s_add_u32 s48, s48, s49")
        for kk in range(4):
            for i in range(8):
                if i % 4 == 0:
                    A(f"s_add_u32 s49, s48, {(kk * 32 + i) * 896}")
                r = ST + 4 * i
                if i >= self.wd:
                    A(f"s_waitcnt vmcnt({self.wd - 1})")
                A(f"buffer_load_dwordx4 v[{r}:{r + 3}], v6, s[40:43], s49 offen offset:{(i & 3) * 896} {self.wnt}")
            A("s_waitcnt vmcnt(0)")
            for c in range(4):
                for u in range(2):
                    dst = WO + kk * 32 + (2 * c + u) * 4
                    sel = "s56" if u == 0 else "s57"
                    for r in range(4):
                        A(f"v_perm_b32 v{dst + r}, v{ST + 4 * (2 * r + 1) + c}, v{ST + 4 * (2 * r) + c}, {sel}")
        self.srd(40, 20, 448 * 3584)
        A(f"v_mul_u32_u24 v6, {8 * 3584}, v3")
        A("v_lshl_add_u32 v6, v2, 3, v6")
        A(f"s_mul_i32 s48, s35, {32 * 3584}")
        A("s_mul_i32 s49, s34, 112")
        A("s_add_u32 s48, s48, s49")
        for kp in range(2):
            for kk in (2 * kp, 2 * kp + 1):
                for i in range(8):
                    if i % 2 == 0:
                        A(f"s_add_u32 s49, s48, {(kk * 128 + i) * 3584}")
                    r = ST + (kk & 1) * 16 + 2 * i
                    if (kk & 1) * 8 + i >= 2 * self.wd:
                        A(f"s_waitcnt vmcnt({2 * self.wd - 1})")
                    A(f"buffer_load_dwordx2 v[{r}:{r + 1}], v6, s[40:43], s49 offen offset:{(i & 1) * 3584} {self.wnt}")
            A("s_waitcnt vmcnt(0)")
            for kk in (2 * kp, 2 * kp + 1):
                base = ST + (kk & 1) * 16
                for c in range(2):
                    for u in range(2):
                        dst = W1 + kk * 16 + (2 * c + u) * 4
                        sel = "s56" if u == 0 else "s57"
                        for r in range(4):
                            A(f"v_perm_b32 v{dst + r}, v{base + 2 * (2 * r + 1) + c}, v{base + 2 * (2 * r) + c}, {sel}")
        A("s_cmp_lg_u32 s35, 0")
        A("s_cbranch_scc1 L_sv_tail")
        C("---- S0: softmax stats, exchange, P ----")
        self.stamp(4)
        C("all 8 counters must read 32 (every workgroup has cleared its slots) before later hand-offs are polled")
        A("v_lshlrev_b32 v6, 5, v0")
        A("s_mov_b64 exec, 0xff")
        A(f"s_mov_b32 s51, {self.poll_cap}")
        self.label("L_sv_apoll")
        A("global_load_dword v7, v6, s[30:31] sc1")
        A("s_waitcnt vmcnt(0)")
        A("v_cmp_gt_u32 vcc, 32, v7")
        A("s_cbranch_vccz L_sv_aok")
        A("s_sleep 2")
        A("s_sub_u32 s51, s51, 1")
        A("s_cmp_lg_u32 s51, 0")
        A("s_cbranch_scc1 L_sv_apoll")
        self.label("L_sv_aok")
        A("s_mov_b64 exec, -1")
        C("workgroup 0 advances the epoch (every workgroup has read it by now)")
        A("s_cmp_lg_u32 s2, 0")
        A("s_cbranch_scc1 L_sv_noepw")
        A(f"v_mov_b32 v6, {W_EP}")
        A("v_mov_b32 v7, s55")
        A("s_mov_b64 exec, 1")
        A("global_store_dword v6, v7, s[32:33] offset:4 sc1")
        A("s_mov_b64 exec, -1")
        self.label("L_sv_noepw")
        self.lds_spin(5, 8, 4, 12, 50)
        self.stamp(5)
        A("v_lshlrev_b32 v6, 6, v0")
        for k in range(4):
            A(f"ds_read_b128 v[{48 + 4 * k}:{48 + 4 * k + 3}], v6 offset:{L_SC + 16 * k}")
        A("s_lshl_b32 s48, s7, 7")
        A(f"s_add_u32 s48, s48, {W_ST}")
        self.srd(44, 32, 64, 48)
        A("s_mov_b32 s50, 0x3db8aa3b")
        A("s_waitcnt lgkmcnt(0)")
        H0, H1 = 16, 32
        for k in range(16):
            A(f"v_lshlrev_b32 v{H0 + k}, 16, v{48 + k}")
            A(f"v_and_b32 v{H1 + k}, 0xffff0000, v{48 + k}")
        for h, base in ((0, H0), (1, H1)):
            m = 8 + h
            A(f"v_max3_f32 v{m}, v{base}, v{base + 1}, v{base + 2}")
            for k in range(3, 15, 2):
                A(f"v_max3_f32 v{m}, v{m}, v{base + k}, v{base + k + 1}")
            A(f"v_max_f32 v{m}, v{m}, v{base + 15}")
        self.allreduce("max", [8, 9], [12, 13])
        for h, base in ((0, H0), (1, H1)):
            m = 8 + h
            sreg = 10 + h
            for k in range(16):
                A(f"v_sub_f32 v{48 + k}, v{base + k}, v{m}")
            for k in range(16):
                A(f"v_mul_f32 v{48 + k}, s50, v{48 + k}")
            for k in range(16):
                A(f"v_exp_f32 v{48 + k}, v{48 + k}")
            A("s_nop 0")
            A(f"v_add_f32 v{sreg}, v48, v49")
            for k in range(2, 16):
                A(f"v_add_f32 v{sreg}, v{sreg}, v{48 + k}")
        self.allreduce("add", [10, 11], [12, 13])
        C("publish (m0, m1, l0, l1) = v8..v11")
        for k in range(4):
            A(f"v_min_u32 v{8 + k}, -2, v{8 + k}")
        A("s_lshl_b32 s48, s6, 4")
        A("v_mov_b32 v7, 0")
        A("s_mov_b64 exec, 1")
        A("buffer_store_dwordx4 v[8:11], v7, s[44:47], s48 offen sc1")
        A("s_mov_b64 exec, -1")
        lds = [f"buffer_load_dwordx4 v[{48 + 4 * cc}:{48 + 4 * cc + 3}], v7, s[44:47], 0 offen offset:{16 * cc} sc1" for cc in range(4)]
        self.poll_sentinel(lds, [48 + i for i in range(16)], 12, 51)
        self.stamp(6)
        for h in range(2):
            A(f"v_max3_f32 v{8 + h}, v{48 + h}, v{52 + h}, v{56 + h}")
            A(f"v_max_f32 v{8 + h}, v{8 + h}, v{60 + h}")
        for h in range(2):
            for cc in range(4):
                A(f"v_sub_f32 v{48 + 4 * cc + h}, v{48 + 4 * cc + h}, v{8 + h}")
                A(f"v_mul_f32 v{48 + 4 * cc + h}, s50, v{48 + 4 * cc + h}")
                A(f"v_exp_f32 v{48 + 4 * cc + h}, v{48 + 4 * cc + h}")
            A("s_nop 0")
            A(f"v_mul_f32 v{10 + h}, v{48 + h}, v{50 + h}")
            for cc in range(1, 4):
                A(f"v_fmac_f32 v{10 + h}, v{48 + 4 * cc + h}, v{50 + 4 * cc + h}")
            A(f"v_rcp_f32 v{10 + h}, v{10 + h}")
        for h, base in ((0, H0), (1, H1)):
            for k in range(16):
                A(f"v_sub_f32 v{base + k}, v{base + k}, v{8 + h}")
            for k in range(16):
                A(f"v_mul_f32 v{base + k}, s50, v{base + k}")
            for k in range(16):
                A(f"v_exp_f32 v{base + k}, v{base + k}")
            A("s_nop 0")
            for k in range(16):
                A(f"v_mul_f32 v{base + k}, v{base + k}, v{10 + h}")
            for par in range(2):
                for d in range(4):
                    A(f"v_cvt_pk_bf16_f32 v{48 + h * 8 + par * 4 + d}, v{base + 4 * d + par}, v{base + 4 * d + 2 + par}")
        for k in range(4):
            A(f"ds_write_b128 v6, v[{48 + 4 * k}:{48 + 4 * k + 3}] offset:{L_P + 16 * k}")
        A("v_mov_b32 v7, 1")
        A("s_waitcnt lgkmcnt(0)")
        A("ds_write_b32 v5, v7 offset:12")
        self.stamp(7)
        C("preload x row b (for h) and b2")
        self.srd(36, 8, 8 * 896)
        A("s_mul_i32 s48, s4, 896")
        A("buffer_load_dwordx4 v[56:59], v4, s[36:39], s48 offen")
        self.srd(36, 26, 896)
        A("v_and_b32 v7, 3, v0")
        A("v_lshlrev_b32 v7, 3, v7")
        A("s_lshl_b32 s48, s34, 5")
        A("buffer_load_dwordx2 v[60:61], v7, s[36:39], s48 offen")
        self.label("L_sv_tail")
        C("---- tail ----")
        A("v_lshlrev_b32 v6, 4, v3")
        A("s_lshl_b32 s48, s35, 8")
        A("v_add_u32 v6, s48, v6")
        A("s_barrier")
        A("s_barrier")
        for kk in range(4):
            A(f"ds_read_b128 v[{ST + 4 * kk}:{ST + 4 * kk + 3}], v6 offset:{L_O + 64 * kk}")
        A("s_lshl_b32 s48, s35, 9")
        A("v_lshl_add_u32 v7, v2, 5, s48")
        DT = 24
        accs = [32, 36, 40, 44, 48, 52, 8, 12]
        for kk in range(4):
            A(f"s_waitcnt lgkmcnt({3 - kk})")
            for t in range(8):
                d = accs[t]
                fr = WO + kk * 32 + t * 4
                c = "0" if kk == 0 else f"v[{d}:{d + 3}]"
                A(f"v_mfma_f32_16x16x32_bf16 v[{d}:{d + 3}], v[{ST + 4 * kk}:{ST + 4 * kk + 3}], v[{fr}:{fr + 3}], {c}")
        A("s_nop 1")
        for t in range(8):
            A(f"v_mov_b32 v{ST + t}, v{accs[t]}")
        A(f"ds_write_b128 v7, v[{ST}:{ST + 3}] offset:{L_T1}")
        A(f"ds_write_b128 v7, v[{ST + 4}:{ST + 7}] offset:{L_T1 + 16}")
        A("s_waitcnt lgkmcnt(0)")
        A("s_barrier")
        A("s_cmp_lg_u32 s35, 0")
        A("s_cbranch_scc1 L_sv_skip2")
        self.stamp(8)
        C("S0: P4: lanes<28: sum 4 waves, publish AP[b][hkv][112c + 4l]")
        for w in range(4):
            A(f"ds_read_b128 v[{ST + 4 * w}:{ST + 4 * w + 3}], v4 offset:{L_T1 + 512 * w}")
        A("s_mul_i32 s48, s4, 14336")
        A(f"s_add_u32 s48, s48, {W_AP}")
        self.srd(44, 32, 14336, 48)
        A("s_mul_i32 s48, s5, 1792")
        A("s_mul_i32 s49, s6, 448")
        A("s_add_u32 s48, s48, s49")
        A("v_lshlrev_b32 v7, 5, v0")
        A("s_waitcnt lgkmcnt(0)")
        for e in range(4):
            A(f"v_add_f32 v{ST + e}, v{ST + e}, v{ST + 4 + e}")
            A(f"v_add_f32 v{ST + 8 + e}, v{ST + 8 + e}, v{ST + 12 + e}")
        for e in range(4):
            A(f"v_add_f32 v{ST + e}, v{ST + e}, v{ST + 8 + e}")
        for e in range(4):
            A(f"v_min_u32 v{ST + e}, -2, v{ST + e}")
        A("s_mov_b64 exec, 0xfffffff")
        A(f"buffer_store_dwordx4 v[{ST}:{ST + 3}], v4, s[44:47], s48 offen sc1")
        C("P5: lanes<56: gather AP[b][h'][8l..8l+8] (wo frags are dead now)")
        A("s_mov_b64 exec, s[52:53]")
        G = WO
        for hh in range(1, 4):
            A(f"s_mov_b32 s{40 + hh}, {hh * 3584}")
        lds = []
        for hh in range(8):
            so = "0" if hh < 2 else f"s{40 + hh // 2}"
            for u in range(2):
                r = G + hh * 8 + u * 4
                lds.append(f"buffer_load_dwordx4 v[{r}:{r + 3}], v7, s[44:47], {so} offen offset:{(hh & 1) * 1792 + 16 * u} sc1")
        self.poll_sentinel(lds, [G + i for i in range(64)], 12, 51)
        A("s_mov_b64 exec, -1")
        self.stamp(9)
        for e in range(8):
            for hh in range(0, 8, 2):
                A(f"v_add_f32 v{G + hh * 8 + e}, v{G + hh * 8 + e}, v{G + hh * 8 + 8 + e}")
        for e in range(8):
            A(f"v_add_f32 v{G + e}, v{G + e}, v{G + 16 + e}")
            A(f"v_add_f32 v{G + 32 + e}, v{G + 32 + e}, v{G + 48 + e}")
        for e in range(8):
            A(f"v_add_f32 v{G + e}, v{G + e}, v{G + 32 + e}")
        for e in range(4):
            A(f"v_cvt_pk_bf16_f32 v{ST + e}, v{G + 2 * e}, v{G + 2 * e + 1}")
        self.unpack8(ST, G)
        self.unpack8(56, G + 8)
        for e in range(8):
            A(f"v_add_f32 v{G + e}, v{G + e}, v{G + 8 + e}")
        for e in range(4):
            A(f"v_cvt_pk_bf16_f32 v{ST + e}, v{G + 2 * e}, v{G + 2 * e + 1}")
        self.unpack8(ST, G)
        self.layernorm([([G + e for e in range(8)], ST)], 52, G + 16)
        A("s_mov_b64 exec, s[52:53]")
        A(f"ds_write_b128 v4, v[{ST}:{ST + 3}] offset:{L_HN}")
        A(f"ds_write_b128 v7, v[{G}:{G + 3}] offset:{L_H}")
        A(f"ds_write_b128 v7, v[{G + 4}:{G + 7}] offset:{L_H + 16}")
        A("s_mov_b64 exec, -1")
        A("s_waitcnt lgkmcnt(0)")
        self.label("L_sv_skip2")
        A("s_barrier")
        C("T2a: ksteps s, s+4, s+8, s+12")
        A("v_lshlrev_b32 v6, 4, v3")
        A("s_lshl_b32 s48, s35, 6")
        A("v_add_u32 v6, s48, v6")
        for kk in range(4):
            A(f"ds_read_b128 v[{ST + 4 * kk}:{ST + 4 * kk + 3}], v6 offset:{L_HN + 256 * kk}")
        A("s_lshl_b32 s48, s35, 8")
        A("v_lshl_add_u32 v7, v2, 4, s48")
        for kk in range(4):
            A(f"s_waitcnt lgkmcnt({3 - kk})")
            for t in range(4):
                d = 32 + 4 * t
                fr = W1 + kk * 16 + t * 4
                c = "0" if kk == 0 else f"v[{d}:{d + 3}]"
                A(f"v_mfma_f32_16x16x32_bf16 v[{d}:{d + 3}], v[{ST + 4 * kk}:{ST + 4 * kk + 3}], v[{fr}:{fr + 3}], {c}")
        A("s_nop 5")
        for t in range(4):
            A(f"v_mov_b32 v{ST + t}, v{32 + 4 * t}")
        A(f"ds_write_b128 v7, v[{ST}:{ST + 3}] offset:{L_R1}")
        A("s_waitcnt lgkmcnt(0)")
        A("s_barrier")
        A("s_cmp_lg_u32 s35, 0")
        A("s_cbranch_scc1 L_end")
        self.stamp(10)
        A("s_cmp_ge_u32 s34, 28")
        A("s_cbranch_scc1 L_sv_fin")
        C("P8: final reduce: FP[b][src][16f + 4q]; lane l: src = l>>2 (+16), q = l&3")
        A("s_mul_i32 s48, s4, 57344")
        A(f"s_add_u32 s48, s48, {W_FP}")
        self.srd(44, 32, 57344, 48)
        A("v_lshrrev_b32 v6, 2, v0")
        A("v_mul_u32_u24 v6, 1792, v6")
        A("v_and_b32 v7, 3, v0")
        A("v_lshl_add_u32 v6, v7, 4, v6")
        A("s_lshl_b32 s48, s34, 6")
        A(f"s_add_u32 s49, s48, {16 * 1792}")
        A("v_lshl_add_u32 v8, v7, 4, s48")
        A(f"ds_read_b128 v[40:43], v8 offset:{L_H}")
        self.srd(36, 28, 7168)
        lds = [f"buffer_load_dwordx4 v[{ST}:{ST + 3}], v6, s[44:47], s48 offen sc1",
               f"buffer_load_dwordx4 v[{ST + 4}:{ST + 7}], v6, s[44:47], s49 offen sc1"]
        self.poll_sentinel(lds, [ST + i for i in range(8)], 12, 51)
        self.stamp(11)
        for e in range(4):
            A(f"v_add_f32 v{ST + e}, v{ST + e}, v{ST + 4 + e}")
        for ctrl in ("row_ror:4", "row_ror:8"):
            A("s_nop 1")
            for e in range(4):
                A(f"v_add_f32_dpp v{ST + e}, v{ST + e}, v{ST + e} {ctrl} row_mask:0xf bank_mask:0xf")
        for sw in ("v_permlane16_swap_b32", "v_permlane32_swap_b32"):
            for e in range(4):
                A(f"v_mov_b32 v{ST + 4 + e}, v{ST + e}")
            A("s_nop 1")
            for e in range(4):
                A(f"{sw} v{ST + e}, v{ST + 4 + e}")
            A("s_nop 1")
            for e in range(4):
                A(f"v_add_f32 v{ST + e}, v{ST + e}, v{ST + 4 + e}")
        A(f"v_cvt_pk_bf16_f32 v{ST + 4}, v{ST}, v{ST + 1}")
        A(f"v_cvt_pk_bf16_f32 v{ST + 5}, v{ST + 2}, v{ST + 3}")
        for e in range(2):
            A(f"v_lshlrev_b32 v{ST + 2 * e}, 16, v{ST + 4 + e}")
            A(f"v_and_b32 v{ST + 2 * e + 1}, 0xffff0000, v{ST + 4 + e}")
            A(f"v_lshlrev_b32 v{32 + 2 * e}, 16, v{60 + e}")
            A(f"v_and_b32 v{32 + 2 * e + 1}, 0xffff0000, v{60 + e}")
        for e in range(4):
            A(f"v_add_f32 v{ST + e}, v{ST + e}, v{32 + e}")
        A(f"v_cvt_pk_bf16_f32 v{ST + 4}, v{ST}, v{ST + 1}")
        A(f"v_cvt_pk_bf16_f32 v{ST + 5}, v{ST + 2}, v{ST + 3}")
        for e in range(2):
            A(f"v_lshlrev_b32 v{ST + 2 * e}, 16, v{ST + 4 + e}")
            A(f"v_and_b32 v{ST + 2 * e + 1}, 0xffff0000, v{ST + 4 + e}")
        A("s_waitcnt lgkmcnt(0)")
        for e in range(4):
            A(f"v_add_f32 v{ST + e}, v{ST + e}, v{40 + e}")
        A(f"v_cvt_pk_bf16_f32 v{ST + 4}, v{ST}, v{ST + 1}")
        A(f"v_cvt_pk_bf16_f32 v{ST + 5}, v{ST + 2}, v{ST + 3}")
        A("v_lshlrev_b32 v7, 3, v7")
        A("s_mul_i32 s48, s4, 896")
        A("s_lshl_b32 s49, s34, 5")
        A("s_add_u32 s48, s48, s49")
        A("s_mov_b64 exec, 0xf")
        A(f"buffer_store_dwordx2 v[{ST + 4}:{ST + 5}], v7, s[36:39], s48 offen")
        A("s_mov_b64 exec, -1")
        self.label("L_sv_fin")
        self.stamp(12)
        self.dump_stamps(13, 8)


if __name__ == "__main__":
    import argparse
    ap = argparse.ArgumentParser()
    ap.add_argument("-o", default=f"cdna_kernels/{NAME}.s")
    ap.add_argument("--D", type=int, default=5)
    ap.add_argument("--R", type=int, default=40)
    ap.add_argument("--stamps", action="store_true")
    ap.add_argument("--wnt", default="")
    ap.add_argument("--knt", default="nt")
    ap.add_argument("--nowdelay", action="store_true")
    ap.add_argument("--qnt", default="nt")
    ap.add_argument("--wd", type=int, default=8)
    a = ap.parse_args()
    g = Gen(D=a.D, R=a.R, stamps=a.stamps, wnt=a.wnt, knt=a.knt, wdelay=not a.nowdelay, qnt=a.qnt, wd=a.wd)
    open(a.o, "w").write(g.build())
```

```python
import sys

NAME = "sequential_preLN__gqa_block_cached__dense_activation_squared_relu__decode"

HEADER = """; Kernarg layout for this problem (104 bytes, ptrs only, base s[0:1]):
"""

L_XN = 0x0000
L_Q = 0x1C00
L_SC = 0x2000
L_SCD = 0x3000
L_P = 0x4000
L_ZERO = 0x5000
L_ACC = 0x6000
L_O = 0x8000
L_T1 = 0x8400
L_HN = 0x8C00
L_H = 0x9000
L_R1 = 0x9800
L_H1 = 0x9C00
L_FLAG = 0x9E00
LDS_BYTES = 0xA000

W_QG = 0x000000
W_EP = 0x070000
W_AR = 0x071000
W_ST = 0x080000
W_OP = 0x090000
W_AP = 0x110000
W_FP = 0x130000
W_END = 0x200000
W_STAMP = 0x1000000


class Gen:
    def __init__(self, D=5, R=40, stamps=False, wnt="", knt="nt", poll_cap=200000, wdelay=True, wsleep=0, qnt="nt", wd=8, now=0, DV=None, wsoff=0, qsleep=0, ssleep=0, DE=0, NE=0, tsleep=0, margin=12, w2pos=8, yrot=0, ilv=0):
        self.L = []
        self.D = D
        self.R = R
        self.stamps = stamps
        self.wnt = wnt
        self.knt = knt
        self.poll_cap = poll_cap
        self.nlabel = 0
        self.wdelay = wdelay
        self.wsleep = wsleep
        self.qnt = qnt
        self.wd = wd
        self.now = now
        self.wsoff = wsoff
        self.qsleep = qsleep
        self.ssleep = ssleep
        self.DE = DE
        self.tsleep = tsleep
        self.margin = margin
        self.yrot = yrot
        self.ilv = ilv
        self.w2pos = w2pos
        self.NE = NE
        self.DV = DV if DV else D

    def A(self, s):
        self.L.append("    " + s)

    def C(self, s):
        self.L.append("    ; " + s)

    def label(self, name):
        self.L.append(name + ":")

    def newlabel(self, base):
        self.nlabel += 1
        return f"L_{base}_{self.nlabel}"

    def stamp(self, idx):
        if self.stamps:
            self.A(f"s_memrealtime s[{60 + 2 * idx}:{61 + 2 * idx}]")

    def dump_stamps(self, n, vbase):
        if not self.stamps:
            return
        A = self.A
        A("s_waitcnt lgkmcnt(0)")
        A("s_lshl_b32 s58, s99, 3")
        A("s_add_u32 s58, s58, s3")
        A("s_lshl_b32 s58, s58, 7")
        A(f"s_add_u32 s58, s58, {W_STAMP}")
        A("s_mov_b64 exec, 1")
        A(f"v_mov_b32 v{vbase}, s58")
        for i in range(n):
            A(f"v_mov_b32 v{vbase + 2}, s{60 + 2 * i}")
            A(f"v_mov_b32 v{vbase + 3}, s{61 + 2 * i}")
            A(f"global_store_dwordx2 v{vbase}, v[{vbase + 2}:{vbase + 3}], s[32:33] offset:{8 * i}")
            A("s_nop 1")
        A(f"v_mov_b32 v{vbase + 2}, s90")
        A(f"v_mov_b32 v{vbase + 3}, s91")
        A(f"global_store_dwordx2 v{vbase}, v[{vbase + 2}:{vbase + 3}], s[32:33] offset:120")
        A("s_mov_b64 exec, -1")

    def wsadj(self):
        if self.wsoff:
            self.A(f"s_add_u32 s32, s32, {self.wsoff}")
            self.A("s_addc_u32 s33, s33, 0")

    def epoch_load(self):
        self.A(f"s_load_dwordx2 s[92:93], s[32:33], {W_EP}")

    def srd(self, d, ptr, size, off_sgpr=None):
        A = self.A
        if off_sgpr is None:
            A(f"s_mov_b32 s{d}, s{ptr}")
            A(f"s_mov_b32 s{d + 1}, s{ptr + 1}")
        else:
            A(f"s_add_u32 s{d}, s{ptr}, s{off_sgpr}")
            A(f"s_addc_u32 s{d + 1}, s{ptr + 1}, 0")
        A(f"s_mov_b32 s{d + 2}, {size}")
        A(f"s_mov_b32 s{d + 3}, 0x20000")

    def allreduce(self, op, regs, tmps):
        A = self.A
        for ctrl in ("quad_perm:[1,0,3,2]", "quad_perm:[2,3,0,1]", "row_half_mirror", "row_mirror"):
            A("s_nop 1")
            for r in regs:
                A(f"v_{op}_f32_dpp v{r}, v{r}, v{r} {ctrl} row_mask:0xf bank_mask:0xf")
        for sw in ("v_permlane16_swap_b32", "v_permlane32_swap_b32"):
            for r, t in zip(regs, tmps):
                A(f"v_mov_b32 v{t}, v{r}")
            A("s_nop 1")
            for r, t in zip(regs, tmps):
                A(f"{sw} v{r}, v{t}")
            A("s_nop 1")
            for r, t in zip(regs, tmps):
                A(f"v_{op}_f32 v{r}, v{r}, v{t}")

    def lds_spin(self, vaddr, off, target, vtmp, stmp):
        A = self.A
        l = self.newlabel("spin")
        d = self.newlabel("spun")
        A(f"s_mov_b32 s59, {self.poll_cap * 20}")
        self.label(l)
        A(f"ds_read_b32 v{vtmp}, v{vaddr} offset:{off}")
        A("s_waitcnt lgkmcnt(0)")
        A(f"v_readfirstlane_b32 s{stmp}, v{vtmp}")
        A("s_nop 0")
        A(f"s_cmp_eq_u32 s{stmp}, {target}")
        A(f"s_cbranch_scc1 {d}")
        A("s_sleep 1")
        A("s_sub_u32 s59, s59, 1")
        A("s_cmp_lg_u32 s59, 0")
        A(f"s_cbranch_scc1 {l}")
        self.label(d)

    def poll_sentinel(self, loads, regs, vtmp, scnt, sleep=0, retry_sleep=0, first_issued=False):
        A = self.A
        l = self.newlabel("poll")
        d = self.newlabel("polled")
        A(f"s_mov_b32 s{scnt}, {self.poll_cap}")
        if first_issued:
            l2 = self.newlabel("pollchk")
            A(f"s_branch {l2}")
        self.label(l)
        if sleep:
            A(f"s_sleep {sleep}")
        for s in loads:
            A(s)
        if first_issued:
            self.label(l2)
        A("s_waitcnt vmcnt(0)")
        A(f"v_max3_u32 v{vtmp}, v{regs[0]}, v{regs[1]}, v{regs[2]}")
        rest = regs[3:]
        while len(rest) >= 2:
            A(f"v_max3_u32 v{vtmp}, v{vtmp}, v{rest[0]}, v{rest[1]}")
            rest = rest[2:]
        if rest:
            A(f"v_max_u32 v{vtmp}, v{vtmp}, v{rest[0]}")
        A(f"v_cmp_eq_u32 vcc, -1, v{vtmp}")
        A(f"s_cbranch_vccz {d}")
        if retry_sleep:
            A(f"s_sleep {retry_sleep}")
        A(f"s_sub_u32 s{scnt}, s{scnt}, 1")
        A(f"s_cmp_lg_u32 s{scnt}, 0")
        A(f"s_cbranch_scc1 {l}")
        self.label(d)

    def layernorm(self, rows, smask, t):
        A = self.A
        n = len(rows)
        S = [t + i for i in range(n)]
        T = [t + n + i for i in range(n)]
        M = [t + 2 * n + i for i in range(n)]
        DD = t + 3 * n
        for k, (x, o) in enumerate(rows):
            A(f"v_add_f32 v{S[k]}, v{x[0]}, v{x[1]}")
            for e in range(2, 8):
                A(f"v_add_f32 v{S[k]}, v{S[k]}, v{x[e]}")
            A(f"v_cndmask_b32 v{S[k]}, 0, v{S[k]}, s[{smask}:{smask + 1}]")
        self.allreduce("add", S, T)
        for k, (x, o) in enumerate(rows):
            A(f"v_mul_f32 v{M[k]}, 0x3b124925, v{S[k]}")
        for k, (x, o) in enumerate(rows):
            for e in range(8):
                A(f"v_sub_f32 v{DD + e}, v{x[e]}, v{M[k]}")
            A(f"v_mul_f32 v{S[k]}, v{DD}, v{DD}")
            for e in range(1, 8):
                A(f"v_fmac_f32 v{S[k]}, v{DD + e}, v{DD + e}")
            A(f"v_cndmask_b32 v{S[k]}, 0, v{S[k]}, s[{smask}:{smask + 1}]")
        self.allreduce("add", S, T)
        for k, (x, o) in enumerate(rows):
            A(f"v_mul_f32 v{S[k]}, 0x3b124925, v{S[k]}")
            A(f"v_cvt_pk_bf16_f32 v{T[k]}, v{M[k]}, v{S[k]}")
            A(f"v_lshlrev_b32 v{M[k]}, 16, v{T[k]}")
            A(f"v_and_b32 v{S[k]}, 0xffff0000, v{T[k]}")
            A(f"v_add_f32 v{S[k]}, 0x3727c5ac, v{S[k]}")
            A(f"v_cvt_pk_bf16_f32 v{S[k]}, v{S[k]}, v{S[k]}")
            A(f"v_lshlrev_b32 v{S[k]}, 16, v{S[k]}")
            A(f"v_sqrt_f32 v{S[k]}, v{S[k]}")
            A("s_nop 0")
            A(f"v_cvt_pk_bf16_f32 v{S[k]}, v{S[k]}, v{S[k]}")
            A(f"v_lshlrev_b32 v{S[k]}, 16, v{S[k]}")
            A(f"v_rcp_f32 v{S[k]}, v{S[k]}")
            for e in range(8):
                A(f"v_sub_f32 v{DD + e}, v{x[e]}, v{M[k]}")
            for e in range(4):
                A(f"v_cvt_pk_bf16_f32 v{o + e}, v{DD + 2 * e}, v{DD + 2 * e + 1}")
            for e in range(4):
                A(f"v_lshlrev_b32 v{DD + 2 * e}, 16, v{o + e}")
                A(f"v_and_b32 v{DD + 2 * e + 1}, 0xffff0000, v{o + e}")
            for e in range(8):
                A(f"v_mul_f32 v{DD + e}, v{DD + e}, v{S[k]}")
            for e in range(4):
                A(f"v_cvt_pk_bf16_f32 v{o + e}, v{DD + 2 * e}, v{DD + 2 * e + 1}")

    def unpack8(self, src, dst):
        for e in range(4):
            self.A(f"v_lshlrev_b32 v{dst + 2 * e}, 16, v{src + e}")
            self.A(f"v_and_b32 v{dst + 2 * e + 1}, 0xffff0000, v{src + e}")

    def build(self):
        A, C = self.A, self.C
        D, R = self.D, self.R
        self.L.append(HEADER.rstrip())
        self.L.append(f"; @launch grid=(256,1,1) block=(512,1,1) lds={LDS_BYTES}")
        self.L.append('.amdgcn_target "amdgcn-amd-amdhsa--gfx950"')
        self.L.append(".text")
        self.L.append(f".globl {NAME}_kernel")
        self.L.append(".p2align 8")
        self.L.append(f".type {NAME}_kernel,@function")
        self.label(f"{NAME}_kernel")
        A("s_cmp_ge_u32 s2, 256")
        A("s_cbranch_scc1 L_end")
        self.stamp(0)
        A("s_mov_b32 s99, s2")
        if self.yrot:
            A("s_xor_b32 s2, s2, 16")
        if self.stamps:
            A("s_getreg_b32 s90, hwreg(HW_REG_HW_ID)")
            A("s_getreg_b32 s91, hwreg(HW_REG_XCC_ID)")
        A("s_load_dwordx16 s[8:23], s[0:1], 0")
        A("s_load_dwordx8 s[24:31], s[0:1], 64")
        A("s_load_dwordx2 s[32:33], s[0:1], 96")
        A("v_lshrrev_b32 v1, 6, v0")
        A("v_and_b32 v0, 63, v0")
        A("v_readfirstlane_b32 s3, v1")
        C("decode wg -> b (s4), hkv (s5), c (s6), pair (s7), f = hkv*4+c (s34)")
        A("s_lshr_b32 s4, s2, 3")
        A("s_lshr_b32 s5, s4, 3")
        A("s_and_b32 s4, s4, 7")
        A("s_lshl_b32 s5, s5, 1")
        A("s_bfe_u32 s6, s2, 0x10002")
        A("s_add_u32 s5, s5, s6")
        A("s_and_b32 s6, s2, 3")
        A("s_lshl_b32 s7, s4, 3")
        A("s_add_u32 s7, s7, s5")
        A("s_lshl_b32 s34, s6, 3")
        A("s_add_u32 s34, s34, s5")
        A("s_sub_u32 s34, s34, 4")
        A("s_mov_b32 s56, 0x05040100")
        A("s_mov_b32 s57, 0x07060302")
        A("v_and_b32 v2, 15, v0")
        A("v_lshrrev_b32 v3, 4, v0")
        A("s_cmp_ge_u32 s3, 4")
        A("s_cbranch_scc1 L_service")
        self.stream()
        self.service()
        self.label("L_end")
        A("s_endpgm")
        self.L.append('.section .rodata,"a"')
        self.L.append(".p2align 6")
        self.L.append(f".amdhsa_kernel {NAME}_kernel")
        self.L.append("  .amdhsa_next_free_vgpr 256")
        self.L.append("  .amdhsa_next_free_sgpr 102")
        self.L.append("  .amdhsa_accum_offset 256")
        self.L.append("  .amdhsa_group_segment_fixed_size 0")
        self.L.append("  .amdhsa_kernarg_size 104")
        self.L.append("  .amdhsa_user_sgpr_count 2")
        self.L.append("  .amdhsa_user_sgpr_kernarg_segment_ptr 1")
        self.L.append("  .amdhsa_system_sgpr_workgroup_id_x 1")
        self.L.append("  .amdhsa_float_denorm_mode_32 3")
        self.L.append(".end_amdhsa_kernel")
        return "\n".join(self.L) + "\n"

    def stream(self):
        A, C = self.A, self.C
        D, R = self.D, self.R
        C("================= stream waves (0..3) =================")
        vK, vV, vSC, vP, vFL, vW2, vT = 4, 5, 6, 7, 8, 9, 10
        QF = 16
        DK = 48
        ACC = 16
        TP = 48
        PF = 80
        RING = 88
        assert RING + 4 * R <= 256
        A("v_and_b32 v10, 7, v0")
        A("v_lshrrev_b32 v11, 3, v0")
        A("v_lshlrev_b32 v4, 9, v11")
        A("v_lshl_add_u32 v4, v10, 4, v4")
        A("s_lshl_b32 s35, s3, 12")
        A("v_add_u32 v4, s35, v4")
        A("v_lshlrev_b32 v5, 4, v0")
        A("s_lshl_b32 s35, s3, 13")
        A("v_add_u32 v5, s35, v5")
        A("s_lshl_b32 s35, s7, 21")
        A(f"s_lshl_b32 s36, s6, {15 if self.ilv else 19}")
        A("s_add_u32 s35, s35, s36")
        A("s_waitcnt lgkmcnt(0)")
        self.wsadj()
        ksz = 0x200000 - 3 * 32768 if self.ilv else 0x80000
        self.srd(36, 10, ksz, 35)
        self.srd(40, 12, ksz, 35)
        self.srd(44, 24, 1792 * 896)
        loads = []
        for nb in range(32):
            for j in range(4):
                loads.append(("K", nb, j))
        for nu in range(16):
            for i in range(8):
                loads.append(("V", nu, i))
            if nu in (self.w2pos, self.w2pos + 1):
                for i in range(8):
                    loads.append(("W", nu - self.w2pos, i))
        free = list(range(R))
        slot_of = {}
        order = []
        st = {"soff": None}

        def sreg(slot):
            return RING + 4 * slot

        def set_soff(val):
            if st["soff"] != val:
                A(f"s_mov_b32 s48, {val}")
                st["soff"] = val

        cur = {"D": D}

        cur["landed"] = -1

        def vmwait(n):
            idx = len(order) - n - 1
            if idx > cur["landed"]:
                A(f"s_waitcnt vmcnt({n})")
                cur["landed"] = idx

        def pace():
            if len(order) >= cur["D"]:
                vmwait(cur["D"] - 1)

        def issue(ld):
            pace()
            slot = free.pop(0)
            slot_of[ld] = slot
            r = sreg(slot)
            kind, a, b = ld
            if kind == "K":
                set_soff(((a >> 1) * 131072 + (a & 1) * 16384) if self.ilv else a * 16384)
                A(f"buffer_load_dwordx4 v[{r}:{r + 3}], v{vK}, s[36:39], s48 offen offset:{b * 128} {self.knt}")
            elif kind == "V":
                set_soff(a * (131072 if self.ilv else 32768) + (b >> 2) * 4096)
                A(f"buffer_load_dwordx4 v[{r}:{r + 3}], v{vV}, s[40:43], s48 offen offset:{(b & 3) * 1024} {self.knt}")
            elif kind == "W":
                A(f"s_add_u32 s48, s49, {(a * 32 + (b & 4)) * 896}")
                st["soff"] = None
                A("s_mov_b64 exec, s[52:53]")
                A(f"buffer_load_dwordx4 v[{r}:{r + 3}], v{vW2}, s[44:47], s48 offen offset:{(b & 3) * 896} {self.wnt}")
                A("s_mov_b64 exec, -1")
            order.append(ld)

        def waitfor(ld):
            vmwait(len(order) - 1 - order.index(ld))

        nxt = [0]

        def issue_next(k=1):
            for _ in range(k):
                if nxt[0] < len(loads) and free:
                    issue(loads[nxt[0]])
                    nxt[0] += 1

        issue_next(D)
        C("score write address: L_SC + (wave*8 + (l>>3))*4")
        A("s_lshl_b32 s35, s3, 5")
        A("v_lshrrev_b32 v10, 3, v0")
        A(f"v_lshl_add_u32 v{vSC}, v10, 2, s35")
        C("P frag address: combo = rho>>2 = 2*half+h ; active iff (g&1)==half")
        A("v_lshrrev_b32 v10, 2, v2")
        A("v_and_b32 v11, 1, v10")
        A("v_lshrrev_b32 v12, 1, v10")
        A("v_and_b32 v13, 1, v3")
        A("v_lshrrev_b32 v14, 1, v3")
        A("v_lshlrev_b32 v11, 5, v11")
        A("v_lshl_add_u32 v11, v14, 4, v11")
        A("s_lshl_b32 s35, s3, 6")
        A(f"s_add_u32 s35, s35, {L_P}")
        A(f"v_add_u32 v11, s35, v11")
        A(f"v_mov_b32 v10, {L_ZERO}")
        A("v_cmp_eq_u32 vcc, v12, v13")
        A("s_nop 1")
        A(f"v_cndmask_b32 v{vP}, v10, v11, vcc")
        A(f"v_mov_b32 v{vFL}, {L_FLAG}")
        C("w2 lane offset: g*8*896 + wave*256 + j*16 ; s49 = f*56*896")
        A(f"v_mul_u32_u24 v{vW2}, {8 * 896}, v3")
        A(f"v_lshl_add_u32 v{vW2}, v2, 4, v{vW2}")
        A("s_lshl_b32 s35, s3, 8")
        A(f"v_add_u32 v{vW2}, s35, v{vW2}")
        A(f"s_max_i32 s49, s34, 0")
        A(f"s_mul_i32 s49, s49, {64 * 896}")
        C("exec mask for the w2 loads: wave 3 covers only 64 columns; no FFN slice -> skip via 0-size SRD")
        A("s_mov_b64 s[52:53], -1")
        A("s_cmp_eq_u32 s3, 3")
        A("s_cselect_b32 s52, 0x00ff00ff, s52")
        A("s_cselect_b32 s53, 0x00ff00ff, s53")
        A("s_cmp_lt_i32 s34, 0")
        A("s_cselect_b32 s46, 0, s46")
        A("v_and_b32 v10, 7, v0")
        A("v_lshlrev_b32 v15, 4, v10")
        A("s_barrier")
        M = self.margin

        def progress_flag(off):
            A("v_mov_b32 v10, 1")
            A(f"ds_write_b32 v{vFL}, v10 offset:{off}")

        issue_next(R - M - D)
        progress_flag(16)
        issue_next(R)
        self.stamp(1)
        self.lds_spin(vFL, 4, 1, 10, 50)
        self.stamp(2)
        for j in range(4):
            for h in range(2):
                r = QF + 8 * j + 4 * h
                A(f"ds_read_b128 v[{r}:{r + 3}], v15 offset:{L_Q + 512 * h + 128 * j}")
        A("s_waitcnt lgkmcnt(0)")

        def k_post(nb):
            d = DK + 2 * (nb & 1)
            for ctrl in ("quad_perm:[1,0,3,2]", "quad_perm:[2,3,0,1]", "row_half_mirror"):
                for h in range(2):
                    A(f"v_add_f32_dpp v{d + h}, v{d + h}, v{d + h} {ctrl} row_mask:0xf bank_mask:0xf")
                A("s_nop 0")
            A(f"v_cvt_pk_bf16_f32 v10, v{d}, v{d + 1}")
            A(f"ds_write_b32 v{vSC}, v10 offset:{L_SC + nb * 128}")

        since = [0]

        def feed(e, ratio):
            want = e + 1 + cur["D"]
            if nxt[0] < want:
                issue_next(want - nxt[0])
                since[0] = 0
            else:
                since[0] += 1
                if since[0] >= ratio:
                    issue_next(1)
                    since[0] = 0

        for nb in range(32):
            d = DK + 2 * (nb & 1)
            for j in range(4):
                ld = ("K", nb, j)
                feed(loads.index(ld), 3)
                waitfor(ld)
                r = sreg(slot_of[ld])
                for e in range(4):
                    for h in range(2):
                        c = "0" if (j == 0 and e == 0) else f"v{d + h}"
                        A(f"v_dot2_f32_bf16 v{d + h}, v{r + e}, v{QF + 8 * j + 4 * h + e}, {c}")
                free.append(slot_of[ld])
                if j == 0 and nb > 0:
                    k_post(nb - 1)
        A("s_nop 3")
        k_post(31)
        A("v_mov_b32 v10, 1")
        A("s_waitcnt lgkmcnt(0)")
        A("s_mov_b64 exec, 1")
        A(f"ds_add_u32 v{vFL}, v10 offset:8")
        A("s_mov_b64 exec, -1")
        self.stamp(3)
        cur["D"] = D = self.DV
        issue_next(len(free) - M)
        progress_flag(20)
        issue_next(R)
        for r in range(32):
            A(f"v_mov_b32 v{ACC + r}, 0")
        self.stamp(4)
        self.lds_spin(vFL, 12, 1, 10, 50)
        self.stamp(5)
        A(f"ds_read_b128 v[{PF}:{PF + 3}], v{vP} offset:0")
        w2_frag = {}

        def pair(kind, a, r, dsts):
            l0, l1 = (kind, a, 2 * r), (kind, a, 2 * r + 1)
            feed(loads.index(l1), 2)
            waitfor(l1)
            s0, s1 = sreg(slot_of[l0]), sreg(slot_of[l1])
            for t in range(8):
                sel = "s56" if (t & 1) == 0 else "s57"
                A(f"v_perm_b32 v{dsts[t] + r}, v{s1 + (t >> 1)}, v{s0 + (t >> 1)}, {sel}")
            free.append(slot_of[l0])
            free.append(slot_of[l1])

        for nu in range(16):
            if self.DE and nu >= 16 - self.NE:
                cur["D"] = self.DE
            pf = PF + 4 * (nu & 1)
            for r in range(4):
                pair("V", nu, r, [TP + 4 * t for t in range(8)])
            A("s_waitcnt lgkmcnt(0)")
            if nu + 1 < 16:
                pn = PF + 4 * ((nu + 1) & 1)
                A(f"ds_read_b128 v[{pn}:{pn + 3}], v{vP} offset:{(nu + 1) * 256}")
            for t in range(8):
                a = ACC + 4 * t
                A(f"v_mfma_f32_16x16x32_bf16 v[{a}:{a + 3}], v[{pf}:{pf + 3}], v[{TP + 4 * t}:{TP + 4 * t + 3}], v[{a}:{a + 3}]")
            if nu in (self.w2pos, self.w2pos + 1):
                a = nu - self.w2pos
                assert len(free) >= 8
                outs = [sreg(free.pop()) for _ in range(8)]
                for t in range(8):
                    w2_frag[(a, t)] = outs[t]
                for r in range(4):
                    pair("W", a, r, outs)
        self.stamp(6)
        C("---- tail: write acc to LDS: lane (j,g): combo g, cols j*8..+8 -> [h][256] layout")
        A("v_and_b32 v10, 1, v3")
        A("v_lshrrev_b32 v11, 1, v3")
        A("v_lshlrev_b32 v10, 10, v10")
        A("v_lshl_add_u32 v10, v11, 9, v10")
        A("v_lshl_add_u32 v10, v2, 5, v10")
        A("s_lshl_b32 s35, s3, 11")
        A("v_add_u32 v10, s35, v10")
        A("s_nop 2")
        for t in range(8):
            A(f"v_mov_b32 v{TP + t}, v{ACC + 4 * t}")
        A(f"ds_write_b128 v10, v[{TP}:{TP + 3}] offset:{L_ACC}")
        A(f"ds_write_b128 v10, v[{TP + 4}:{TP + 7}] offset:{L_ACC + 16}")
        A("s_waitcnt lgkmcnt(0)")
        A("s_barrier")
        C("P1/P2: waves 0,1: lane t=wave*64+l handles cols 4t..4t+3")
        A("s_cmp_ge_u32 s3, 2")
        A("s_cbranch_scc1 L_st_skip1")
        A("s_lshl_b32 s35, s3, 10")
        A("v_lshl_add_u32 v10, v0, 4, s35")
        for w in range(4):
            A(f"ds_read_b128 v[{ACC + 4 * w}:{ACC + 4 * w + 3}], v10 offset:{L_ACC + 2048 * w}")
        A("s_lshl_b32 s35, s7, 13")
        A(f"s_add_u32 s35, s35, {W_OP}")
        self.srd(36, 32, 0x2000, 35)
        A("s_lshl_b32 s48, s6, 11")
        A("s_waitcnt lgkmcnt(0)")
        for e in range(4):
            A(f"v_add_f32 v{ACC + e}, v{ACC + e}, v{ACC + 4 + e}")
            A(f"v_add_f32 v{ACC + 8 + e}, v{ACC + 8 + e}, v{ACC + 12 + e}")
        for e in range(4):
            A(f"v_add_f32 v{ACC + e}, v{ACC + e}, v{ACC + 8 + e}")
        for e in range(4):
            A(f"v_min_u32 v{ACC + e}, -2, v{ACC + e}")
        A(f"buffer_store_dwordx4 v[{ACC}:{ACC + 3}], v10, s[36:39], s48 offen sc1")
        A("v_add_u32 v11, 0x1000, v10")
        lds = []
        for cc in range(4):
            r = ACC + 16 + 4 * cc
            va = "v10" if cc < 2 else "v11"
            lds.append(f"buffer_load_dwordx4 v[{r}:{r + 3}], {va}, s[36:39], 0 offen offset:{(cc & 1) * 2048} sc1")
        self.poll_sentinel(lds, [ACC + 16 + i for i in range(16)], 12, 50, retry_sleep=self.tsleep)
        self.stamp(7)
        b = ACC + 16
        for e in range(4):
            A(f"v_add_f32 v{b + e}, v{b + e}, v{b + 4 + e}")
            A(f"v_add_f32 v{b + 8 + e}, v{b + 8 + e}, v{b + 12 + e}")
        for e in range(4):
            A(f"v_add_f32 v{b + e}, v{b + e}, v{b + 8 + e}")
        A(f"v_cvt_pk_bf16_f32 v12, v{b}, v{b + 1}")
        A(f"v_cvt_pk_bf16_f32 v13, v{b + 2}, v{b + 3}")
        A("v_lshrrev_b32 v10, 1, v10")
        A(f"ds_write_b64 v10, v[12:13] offset:{L_O}")
        A("s_waitcnt lgkmcnt(0)")
        self.label("L_st_skip1")
        A("s_barrier")
        C("b1 preload: lane k<56 b1[56f+k]")
        self.srd(36, 22, 1792 * 2)
        A("s_max_i32 s48, s34, 0")
        A("s_lshl_b32 s48, s48, 7")
        A("v_lshlrev_b32 v10, 1, v0")
        A("buffer_load_ushort v14, v10, s[36:39], s48 offen")
        A("s_barrier")
        A("s_barrier")
        A("s_barrier")
        A("s_cmp_lt_i32 s34, 0")
        A("s_cbranch_scc1 L_st_end")
        C("h1: lane k: sum R1[w][k], +b1, relu^2 -> private LDS row, then A frags")
        A("v_lshlrev_b32 v10, 2, v0")
        for w in range(4):
            A(f"ds_read_b32 v{ACC + w}, v10 offset:{L_R1 + 256 * w}")
        A("s_lshl_b32 s35, s3, 7")
        A(f"s_add_u32 s35, s35, {L_H1}")
        A("v_lshl_add_u32 v11, v0, 1, s35")
        A("v_lshl_add_u32 v12, v3, 4, s35")
        A("s_waitcnt vmcnt(0) lgkmcnt(0)")
        A(f"v_add_f32 v{ACC}, v{ACC}, v{ACC + 1}")
        A(f"v_add_f32 v{ACC + 2}, v{ACC + 2}, v{ACC + 3}")
        A(f"v_add_f32 v{ACC}, v{ACC}, v{ACC + 2}")
        A("v_lshlrev_b32 v14, 16, v14")
        A(f"v_cvt_pk_bf16_f32 v{ACC}, v{ACC}, v{ACC}")
        A(f"v_lshlrev_b32 v{ACC}, 16, v{ACC}")
        A(f"v_add_f32 v{ACC}, v{ACC}, v14")
        A(f"v_cvt_pk_bf16_f32 v{ACC}, v{ACC}, v{ACC}")
        A(f"v_lshlrev_b32 v{ACC}, 16, v{ACC}")
        A(f"v_max_f32 v{ACC}, 0, v{ACC}")
        A(f"v_mul_f32 v{ACC}, v{ACC}, v{ACC}")
        A(f"v_cvt_pk_bf16_f32 v{ACC}, v{ACC}, v{ACC}")
        A(f"ds_write_b16 v11, v{ACC}")
        A("s_waitcnt lgkmcnt(0)")
        A(f"ds_read_b128 v[{PF}:{PF + 3}], v12")
        A(f"ds_read_b128 v[{PF + 4}:{PF + 7}], v12 offset:64")
        C("FP[b][f] row: 448 f32")
        A("s_lshl_b32 s35, s4, 5")
        A("s_add_u32 s35, s35, s34")
        A("s_mul_i32 s35, s35, 1792")
        A(f"s_add_u32 s35, s35, {W_FP}")
        self.srd(36, 32, 1792, 35)
        A("s_lshl_b32 s35, s3, 9")
        A("v_lshl_add_u32 v10, v2, 5, s35")
        A("s_waitcnt lgkmcnt(0)")
        for a in range(2):
            for t in range(8):
                d = ACC + 4 * t
                fr = w2_frag[(a, t)]
                c = "0" if a == 0 else f"v[{d}:{d + 3}]"
                A(f"v_mfma_f32_16x16x32_bf16 v[{d}:{d + 3}], v[{PF + 4 * a}:{PF + 4 * a + 3}], v[{fr}:{fr + 3}], {c}")
        A("s_nop 1")
        for t in range(8):
            A(f"v_min_u32 v{TP + t}, -2, v{ACC + 4 * t}")
            if t < 7:
                pass
        A("s_mov_b64 exec, 0xffff")
        A(f"buffer_store_dwordx4 v[{TP}:{TP + 3}], v10, s[36:39], 0 offen sc1")
        A(f"buffer_store_dwordx4 v[{TP + 4}:{TP + 7}], v10, s[36:39], 0 offen offset:16 sc1")
        A("s_mov_b64 exec, -1")
        self.label("L_st_end")
        self.stamp(8)
        self.dump_stamps(9, 10)
        A("s_endpgm")

    def service(self):
        A, C = self.A, self.C
        self.label("L_service")
        C("================= service waves (4..7), s3 -> 0..3 in s35 =================")
        WO = 64
        W1 = 192
        ST = 16
        A("s_sub_u32 s35, s3, 4")
        A("v_cmp_gt_u32 s[52:53], 56, v0")
        A("v_lshlrev_b32 v4, 4, v0")
        A(f"v_mov_b32 v5, {L_FLAG}")
        A("v_mov_b32 v8, 0")
        A("v_mov_b32 v9, 0")
        A("v_mov_b32 v10, 0")
        A("v_mov_b32 v11, 0")
        A("s_waitcnt lgkmcnt(0)")
        self.wsadj()
        C("x rows 2s, 2s+1")
        self.srd(36, 8, 8 * 896)
        A("s_mul_i32 s48, s35, 1792")
        self.epoch_load()
        A(f"buffer_load_dwordx4 v[{ST}:{ST + 3}], v4, s[36:39], s48 offen")
        A(f"buffer_load_dwordx4 v[{ST + 4}:{ST + 7}], v4, s[36:39], s48 offen offset:896")
        A("s_cmp_lg_u32 s35, 0")
        A("s_cbranch_scc1 L_sv_nowq")
        C("S0: wq loads into WO area (free for now): 56 x dword; n16 = (wg&7)*32 + (wg>>3) in s54")
        self.srd(40, 14, 448 * 8192)
        A("s_and_b32 s54, s2, 7")
        A("s_lshl_b32 s54, s54, 5")
        A("s_lshr_b32 s49, s2, 3")
        A("s_add_u32 s54, s54, s49")
        A("v_lshrrev_b32 v6, 3, v2")
        A("v_mul_u32_u24 v6, 224, v6")
        A("v_lshl_add_u32 v6, v3, 3, v6")
        A("v_lshlrev_b32 v6, 13, v6")
        A("v_and_b32 v7, 7, v2")
        A("v_lshl_add_u32 v6, v7, 2, v6")
        A("s_lshl_b32 s48, s54, 5")
        for kk in range(7):
            for i in range(8):
                r = WO + kk * 8 + i
                A(f"s_add_u32 s49, s48, {(kk * 32 + i) * 8192}")
                A(f"buffer_load_dword v{r}, v6, s[40:43], s49 offen {self.qnt}")
        C("flags = 0, HN tail = 0")
        A("ds_write_b128 v5, v[8:11]")
        A("ds_write_b128 v5, v[8:11] offset:16")
        A(f"ds_write_b128 v4, v[8:11] offset:{L_HN}")
        self.label("L_sv_nowq")
        A("s_cmp_lg_u32 s35, 1")
        A("s_cbranch_scc1 L_sv_noclr")
        C("S1: clear own hand-off slots with the sentinel")
        A("v_mov_b32 v12, -1")
        A("v_mov_b32 v13, -1")
        A("v_mov_b32 v14, -1")
        A("v_mov_b32 v15, -1")
        A("s_lshl_b32 s48, s7, 13")
        A("s_lshl_b32 s49, s6, 11")
        A("s_add_u32 s48, s48, s49")
        A(f"s_add_u32 s48, s48, {W_OP}")
        self.srd(44, 32, 2048, 48)
        A("buffer_store_dwordx4 v[12:15], v4, s[44:47], 0 offen sc1")
        A("buffer_store_dwordx4 v[12:15], v4, s[44:47], 0 offen offset:1024 sc1")
        A("s_lshl_b32 s48, s7, 7")
        A("s_lshl_b32 s49, s6, 4")
        A("s_add_u32 s48, s48, s49")
        A(f"s_add_u32 s48, s48, {W_ST}")
        self.srd(44, 32, 16, 48)
        A("buffer_store_dwordx4 v[12:15], v4, s[44:47], 0 offen sc1")
        A("s_mul_i32 s48, s7, 1792")
        A("s_lshl_b32 s49, s6, 9")
        A("s_add_u32 s48, s48, s49")
        A(f"s_add_u32 s48, s48, {W_AP}")
        self.srd(44, 32, 512, 48)
        A("s_cmp_eq_u32 s6, 3")
        A("s_cselect_b32 s46, 256, s46")
        A("buffer_store_dwordx4 v[12:15], v4, s[44:47], 0 offen sc1")
        A("s_max_i32 s49, s34, 0")
        A("s_lshl_b32 s48, s4, 5")
        A("s_add_u32 s48, s48, s49")
        A("s_mul_i32 s48, s48, 1792")
        A(f"s_add_u32 s48, s48, {W_FP}")
        self.srd(44, 32, 1792, 48)
        A("s_cmp_lt_i32 s34, 0")
        A("s_cselect_b32 s46, 0, s46")
        A("buffer_store_dwordx4 v[12:15], v4, s[44:47], 0 offen sc1")
        A("buffer_store_dwordx4 v[12:15], v4, s[44:47], 0 offen offset:1024 sc1")
        self.label("L_sv_noclr")
        C("zero region: each service wave clears 1 KiB")
        A("s_lshl_b32 s48, s35, 10")
        A("v_add_u32 v6, s48, v4")
        A(f"ds_write_b128 v6, v[8:11] offset:{L_ZERO}")
        A("s_waitcnt lgkmcnt(0)")
        A("s_barrier")
        A("s_add_u32 s93, s93, 1")
        C("LN1 of 2 rows")
        A("s_cmp_lg_u32 s35, 0")
        A("s_cbranch_scc1 L_sv_w0")
        A("s_waitcnt vmcnt(56)")
        A("s_branch L_sv_w1")
        self.label("L_sv_w0")
        A("s_waitcnt vmcnt(6)")
        A("s_cmp_eq_u32 s35, 1")
        A("s_cbranch_scc1 L_sv_w1")
        A("s_waitcnt vmcnt(0)")
        self.label("L_sv_w1")
        X0, X1 = 24, 32
        self.unpack8(ST, X0)
        self.unpack8(ST + 4, X1)
        self.layernorm([([X0 + e for e in range(8)], ST), ([X1 + e for e in range(8)], ST + 4)], 52, 40)
        A("s_mul_i32 s48, s35, 1792")
        A("v_add_u32 v6, s48, v4")
        A("s_mov_b64 exec, s[52:53]")
        A(f"ds_write_b128 v6, v[{ST}:{ST + 3}] offset:{L_XN}")
        A(f"ds_write_b128 v6, v[{ST + 4}:{ST + 7}] offset:{L_XN + 896}")
        A("v_mov_b32 v7, 1")
        A("s_waitcnt lgkmcnt(0)")
        A("s_mov_b64 exec, 1")
        A("ds_add_u32 v5, v7")
        A("s_mov_b64 exec, -1")
        A("s_cmp_eq_u32 s35, 0")
        A("s_cbranch_scc1 L_sv_q")
        A("s_cmp_lg_u32 s35, 1")
        A("s_cbranch_scc1 L_sv_weights")
        C("S1: arrival flag (slots cleared; every service wave read the epoch before B0)")
        A("s_lshl_b32 s48, s4, 5")
        A("s_add_u32 s48, s48, s34")
        A("s_add_u32 s48, s48, 4")
        A("s_lshl_b32 s48, s48, 3")
        A(f"s_add_u32 s48, s48, {W_AR}")
        A("v_mov_b32 v6, s48")
        A("v_mov_b32 v12, s92")
        A("v_mov_b32 v13, s93")
        A("s_waitcnt vmcnt(0)")
        A("s_mov_b64 exec, 1")
        A("global_store_dwordx2 v6, v[12:13], s[32:33] sc1")
        A("s_mov_b64 exec, -1")
        A("s_branch L_sv_weights")
        self.label("L_sv_q")
        C("---- S0: q for 16 columns x 8 batches ----")
        QB = WO + 64
        A("v_mov_b32 v62, s92")
        A("v_mov_b32 v63, s93")
        A("s_mov_b32 s55, 0x05040302")
        C("A frag address: (rho&7)*896 + (rho>>3)*448 + g*16 (+kk*64)")
        A("v_and_b32 v6, 7, v2")
        A("v_mul_u32_u24 v6, 896, v6")
        A("v_lshl_add_u32 v6, v3, 4, v6")
        A("v_lshrrev_b32 v7, 3, v2")
        A("v_mul_u32_u24 v7, 448, v7")
        A("v_add_u32 v6, v6, v7")
        for kk in range(7):
            A(f"s_waitcnt vmcnt({48 - 8 * kk})")
            for u in range(2):
                dst = QB + kk * 8 + u * 4
                sel = "s56" if u == 0 else "s57"
                for r in range(4):
                    A(f"v_perm_b32 v{dst + r}, v{WO + kk * 8 + 2 * r + 1}, v{WO + kk * 8 + 2 * r}, {sel}")
        self.lds_spin(5, 0, 4, 12, 50)
        for kk in range(7):
            A(f"ds_read_b128 v[{ST + 4 * kk}:{ST + 4 * kk + 3}], v6 offset:{L_XN + 64 * kk}")
        C("QG store addressing: (4g+r)*32768 + n16*128 + jj*16")
        A(f"s_mov_b32 s48, {W_QG}")
        self.srd(44, 32, 0x40000, 48)
        A("v_lshlrev_b32 v6, 17, v3")
        A("v_lshl_add_u32 v6, v2, 4, v6")
        A("s_lshl_b32 s48, s54, 7")
        DQ = 48
        for kk in range(7):
            A(f"s_waitcnt lgkmcnt({6 - kk})")
            for u in range(2):
                d = DQ + 4 * u
                fr = QB + kk * 8 + u * 4
                c = "0" if kk == 0 else f"v[{d}:{d + 3}]"
                A(f"v_mfma_f32_16x16x32_bf16 v[{d}:{d + 3}], v[{ST + 4 * kk}:{ST + 4 * kk + 3}], v[{fr}:{fr + 3}], {c}")
        A("s_nop 7")
        A("s_nop 1")
        for e in range(8):
            A(f"v_mov_b32_dpp v{ST + e}, v{DQ + e} row_ror:8 row_mask:0xf bank_mask:0xf")
        A("s_nop 1")
        for e in range(8):
            A(f"v_permlane32_swap_b32 v{ST + e}, v{ST + 8 + e}")
        A("s_nop 1")
        for e in range(8):
            A(f"v_add_f32 v{DQ + e}, v{DQ + e}, v{ST + 8 + e}")
        for r in range(4):
            o = ST + 16 + 4 * r
            A(f"v_cvt_pk_bf16_f32 v{ST + r}, v{DQ + r}, v{DQ + 4 + r}")
            A(f"v_perm_b32 v{o}, v62, v{ST + r}, s56")
            A(f"v_mov_b32 v{o + 1}, v63")
            A(f"v_perm_b32 v{o + 2}, v62, v{ST + r}, s55")
            A(f"v_mov_b32 v{o + 3}, v63")
        A("s_mov_b64 exec, 0x00ff00ff")
        for r in range(4):
            o = ST + 16 + 4 * r
            A(f"s_add_u32 s49, s48, {r * 32768}")
            A(f"buffer_store_dwordx4 v[{o}:{o + 3}], v6, s[44:47], s49 offen sc1")
        A("s_mov_b64 exec, -1")
        self.stamp(1)
        C("gather q granules: QG[b][hkv*512 + 8l ..]")
        A("v_lshlrev_b32 v6, 6, v0")
        A("s_lshl_b32 s48, s4, 15")
        A("s_lshl_b32 s49, s5, 12")
        A("s_add_u32 s48, s48, s49")
        A("v_lshlrev_b32 v61, 16, v62")
        if self.margin:
            self.lds_spin(5, 16, 1, 12, 50)
        A(f"s_mov_b32 s51, {self.poll_cap}")
        self.label("L_sv_qpoll")
        for k in range(4):
            A(f"buffer_load_dwordx4 v[{ST + 4 * k}:{ST + 4 * k + 3}], v6, s[44:47], s48 offen offset:{16 * k} sc1")
        A("s_waitcnt vmcnt(0)")
        for k in range(8):
            A(f"v_xor_b32 v{48 + k}, v61, v{ST + 2 * k}")
        A("v_or3_b32 v12, v48, v49, v50")
        A("v_or3_b32 v12, v12, v51, v52")
        A("v_or3_b32 v12, v12, v53, v54")
        A("v_or_b32 v12, v12, v55")
        A("v_lshrrev_b32 v12, 16, v12")
        for k in range(8):
            A(f"v_xor_b32 v{48 + k}, v63, v{ST + 2 * k + 1}")
        A("v_or3_b32 v12, v12, v48, v49")
        A("v_or3_b32 v12, v12, v50, v51")
        A("v_or3_b32 v12, v12, v52, v53")
        A("v_or3_b32 v12, v12, v54, v55")
        A("v_cmp_ne_u32 vcc, 0, v12")
        A("s_cbranch_vccz L_sv_qok")
        if self.qsleep:
            A(f"s_sleep {self.qsleep}")
        A("s_sub_u32 s51, s51, 1")
        A("s_cmp_lg_u32 s51, 0")
        A("s_cbranch_scc1 L_sv_qpoll")
        self.label("L_sv_qok")
        self.stamp(2)
        for k in range(4):
            A(f"v_perm_b32 v{48 + k}, v{ST + 4 * k + 2}, v{ST + 4 * k}, s56")
        A(f"ds_write_b128 v4, v[48:51] offset:{L_Q}")
        A("v_mov_b32 v7, 1")
        A("s_waitcnt lgkmcnt(0)")
        A("ds_write_b32 v5, v7 offset:4")
        self.stamp(3)
        self.label("L_sv_weights")
        C("---- weights: wo frags (4 ksteps), w1 frags (4 ksteps) ----")
        if self.wdelay:
            self.lds_spin(5, 4, 1, 12, 50)
        if self.now & 1:
            A("s_branch L_sv_wskip")
        self.srd(40, 16, 4096 * 896)
        A(f"v_mul_u32_u24 v6, {8 * 896}, v3")
        A("v_lshl_add_u32 v6, v2, 4, v6")
        A("s_lshl_b32 s48, s5, 9")
        A("s_lshl_b32 s49, s35, 7")
        A("s_add_u32 s48, s48, s49")
        A("s_mul_i32 s48, s48, 896")
        A("s_lshl_b32 s49, s6, 8")
        A("s_add_u32 s48, s48, s49")
        A("s_cmp_eq_u32 s6, 3")
        A("s_cselect_b32 s50, 0x00ff00ff, -1")
        A("s_mov_b32 s51, s50")
        for kk in range(4):
            A("s_mov_b64 exec, s[50:51]")
            for i in range(8):
                if i % 4 == 0:
                    A(f"s_add_u32 s49, s48, {(kk * 32 + i) * 896}")
                r = ST + 4 * i
                if i >= self.wd:
                    A(f"s_waitcnt vmcnt({self.wd - 1})")
                A(f"buffer_load_dwordx4 v[{r}:{r + 3}], v6, s[40:43], s49 offen offset:{(i & 3) * 896} {self.wnt}")
            A("s_mov_b64 exec, -1")
            A("s_waitcnt vmcnt(0)")
            for c in range(4):
                for u in range(2):
                    dst = WO + kk * 32 + (2 * c + u) * 4
                    sel = "s56" if u == 0 else "s57"
                    for r in range(4):
                        A(f"v_perm_b32 v{dst + r}, v{ST + 4 * (2 * r + 1) + c}, v{ST + 4 * (2 * r) + c}, {sel}")
        self.srd(40, 20, 448 * 3584)
        A(f"v_mul_u32_u24 v6, {8 * 3584}, v3")
        A("v_lshl_add_u32 v6, v2, 3, v6")
        A(f"s_mul_i32 s48, s35, {32 * 3584}")
        A("s_cmp_lt_i32 s34, 0")
        A("s_cbranch_scc1 L_sv_wskip")
        A("s_lshl_b32 s49, s34, 7")
        A("s_add_u32 s48, s48, s49")
        for kp in range(2):
            for kk in (2 * kp, 2 * kp + 1):
                for i in range(8):
                    if i % 2 == 0:
                        A(f"s_add_u32 s49, s48, {(kk * 128 + i) * 3584}")
                    r = ST + (kk & 1) * 16 + 2 * i
                    if (kk & 1) * 8 + i >= 2 * self.wd:
                        A(f"s_waitcnt vmcnt({2 * self.wd - 1})")
                    A(f"buffer_load_dwordx2 v[{r}:{r + 1}], v6, s[40:43], s49 offen offset:{(i & 1) * 3584} {self.wnt}")
            A("s_waitcnt vmcnt(0)")
            for kk in (2 * kp, 2 * kp + 1):
                base = ST + (kk & 1) * 16
                for c in range(2):
                    for u in range(2):
                        dst = W1 + kk * 16 + (2 * c + u) * 4
                        sel = "s56" if u == 0 else "s57"
                        for r in range(4):
                            A(f"v_perm_b32 v{dst + r}, v{base + 2 * (2 * r + 1) + c}, v{base + 2 * (2 * r) + c}, {sel}")
        self.label("L_sv_wskip")
        C("workgroup 0 / S2: once all 256 arrival flags are in, advance the epoch")
        A("s_cmp_lg_u32 s2, 0")
        A("s_cbranch_scc1 L_sv_noepw")
        A("s_cmp_lg_u32 s35, 2")
        A("s_cbranch_scc1 L_sv_noepw")
        A(f"v_add_u32 v6, {W_AR}, v4")
        A(f"s_mov_b32 s51, {self.poll_cap}")
        self.label("L_sv_epoll")
        A("global_load_dwordx4 v[16:19], v6, s[32:33] sc1")
        A("global_load_dwordx4 v[20:23], v6, s[32:33] offset:1024 sc1")
        A("s_waitcnt vmcnt(0)")
        for k in range(4):
            A(f"v_xor_b32 v{16 + 2 * k}, s92, v{16 + 2 * k}")
            A(f"v_xor_b32 v{17 + 2 * k}, s93, v{17 + 2 * k}")
        A("v_or3_b32 v16, v16, v17, v18")
        A("v_or3_b32 v16, v16, v19, v20")
        A("v_or3_b32 v16, v16, v21, v22")
        A("v_or_b32 v16, v16, v23")
        A("v_cmp_ne_u32 vcc, 0, v16")
        A("s_cbranch_vccz L_sv_eok")
        A("s_sleep 16")
        A("s_sub_u32 s51, s51, 1")
        A("s_cmp_lg_u32 s51, 0")
        A("s_cbranch_scc1 L_sv_epoll")
        self.label("L_sv_eok")
        A(f"v_mov_b32 v6, {W_EP}")
        A("v_mov_b32 v7, s93")
        A("s_mov_b64 exec, 1")
        A("global_store_dword v6, v7, s[32:33] offset:4 sc1")
        A("s_mov_b64 exec, -1")
        self.label("L_sv_noepw")
        A("s_cmp_lg_u32 s35, 0")
        A("s_cbranch_scc1 L_sv_tail")
        C("---- S0: softmax stats, exchange, P ----")
        self.stamp(4)
        self.lds_spin(5, 8, 4, 12, 50)
        self.stamp(5)
        A("v_lshlrev_b32 v6, 6, v0")
        for k in range(4):
            A(f"ds_read_b128 v[{48 + 4 * k}:{48 + 4 * k + 3}], v6 offset:{L_SC + 16 * k}")
        A("s_lshl_b32 s48, s7, 7")
        A(f"s_add_u32 s48, s48, {W_ST}")
        self.srd(44, 32, 64, 48)
        A("s_mov_b32 s50, 0x3db8aa3b")
        A("s_waitcnt lgkmcnt(0)")
        H0, H1 = 16, 32
        for k in range(16):
            A(f"v_lshlrev_b32 v{H0 + k}, 16, v{48 + k}")
            A(f"v_and_b32 v{H1 + k}, 0xffff0000, v{48 + k}")
        for h, base in ((0, H0), (1, H1)):
            m = 8 + h
            A(f"v_max3_f32 v{m}, v{base}, v{base + 1}, v{base + 2}")
            for k in range(3, 15, 2):
                A(f"v_max3_f32 v{m}, v{m}, v{base + k}, v{base + k + 1}")
            A(f"v_max_f32 v{m}, v{m}, v{base + 15}")
        self.allreduce("max", [8, 9], [12, 13])
        for h, base in ((0, H0), (1, H1)):
            m = 8 + h
            sreg = 10 + h
            for k in range(16):
                A(f"v_sub_f32 v{48 + k}, v{base + k}, v{m}")
            for k in range(16):
                A(f"v_mul_f32 v{48 + k}, s50, v{48 + k}")
            for k in range(16):
                A(f"v_exp_f32 v{48 + k}, v{48 + k}")
            A("s_nop 0")
            A(f"v_add_f32 v{sreg}, v48, v49")
            for k in range(2, 16):
                A(f"v_add_f32 v{sreg}, v{sreg}, v{48 + k}")
        self.allreduce("add", [10, 11], [12, 13])
        C("publish (m0, m1, l0, l1) = v8..v11")
        for k in range(4):
            A(f"v_min_u32 v{8 + k}, -2, v{8 + k}")
        A("s_lshl_b32 s48, s6, 4")
        A("v_mov_b32 v7, 0")
        A("s_mov_b64 exec, 1")
        A("buffer_store_dwordx4 v[8:11], v7, s[44:47], s48 offen sc1")
        A("s_mov_b64 exec, -1")
        lds = [f"buffer_load_dwordx4 v[{48 + 4 * cc}:{48 + 4 * cc + 3}], v7, s[44:47], 0 offen offset:{16 * cc} sc1" for cc in range(4)]
        C("the 32 workgroups of this batch must have cleared their slots before any slot is polled")
        A("s_lshl_b32 s48, s4, 8")
        A(f"s_add_u32 s48, s48, {W_AR}")
        A("v_and_b32 v12, 31, v0")
        A("v_lshl_add_u32 v12, v12, 3, s48")
        A(f"s_mov_b32 s51, {self.poll_cap}")
        self.label("L_sv_apoll")
        A("global_load_dwordx2 v[14:15], v12, s[32:33] sc1")
        A("s_waitcnt vmcnt(0)")
        A("v_xor_b32 v14, s92, v14")
        A("v_xor_b32 v15, s93, v15")
        A("v_or_b32 v14, v14, v15")
        A("v_cmp_ne_u32 vcc, 0, v14")
        A("s_cbranch_vccz L_sv_aok")
        A("s_sleep 8")
        A("s_sub_u32 s51, s51, 1")
        A("s_cmp_lg_u32 s51, 0")
        A("s_cbranch_scc1 L_sv_apoll")
        self.label("L_sv_aok")
        if self.margin:
            self.lds_spin(5, 20, 1, 12, 51)
        self.poll_sentinel(lds, [48 + i for i in range(16)], 12, 51, retry_sleep=self.ssleep)
        self.stamp(6)
        for h in range(2):
            A(f"v_max3_f32 v{8 + h}, v{48 + h}, v{52 + h}, v{56 + h}")
            A(f"v_max_f32 v{8 + h}, v{8 + h}, v{60 + h}")
        for h in range(2):
            for cc in range(4):
                A(f"v_sub_f32 v{48 + 4 * cc + h}, v{48 + 4 * cc + h}, v{8 + h}")
                A(f"v_mul_f32 v{48 + 4 * cc + h}, s50, v{48 + 4 * cc + h}")
                A(f"v_exp_f32 v{48 + 4 * cc + h}, v{48 + 4 * cc + h}")
            A("s_nop 0")
            A(f"v_mul_f32 v{10 + h}, v{48 + h}, v{50 + h}")
            for cc in range(1, 4):
                A(f"v_fmac_f32 v{10 + h}, v{48 + 4 * cc + h}, v{50 + 4 * cc + h}")
            A(f"v_rcp_f32 v{10 + h}, v{10 + h}")
        for h, base in ((0, H0), (1, H1)):
            for k in range(16):
                A(f"v_sub_f32 v{base + k}, v{base + k}, v{8 + h}")
            for k in range(16):
                A(f"v_mul_f32 v{base + k}, s50, v{base + k}")
            for k in range(16):
                A(f"v_exp_f32 v{base + k}, v{base + k}")
            A("s_nop 0")
            for k in range(16):
                A(f"v_mul_f32 v{base + k}, v{base + k}, v{10 + h}")
            for par in range(2):
                for d in range(4):
                    A(f"v_cvt_pk_bf16_f32 v{48 + h * 8 + par * 4 + d}, v{base + 4 * d + par}, v{base + 4 * d + 2 + par}")
        for k in range(4):
            A(f"ds_write_b128 v6, v[{48 + 4 * k}:{48 + 4 * k + 3}] offset:{L_P + 16 * k}")
        A("v_mov_b32 v7, 1")
        A("s_waitcnt lgkmcnt(0)")
        A("ds_write_b32 v5, v7 offset:12")
        self.stamp(7)
        C("preload x row b (for h) and b2")
        self.srd(36, 8, 8 * 896)
        A("s_mul_i32 s48, s4, 896")
        A("buffer_load_dwordx4 v[56:59], v4, s[36:39], s48 offen")
        self.srd(36, 26, 896)
        A("v_and_b32 v7, 3, v0")
        A("v_lshlrev_b32 v7, 3, v7")
        A("s_max_i32 s48, s34, 0")
        A("s_lshl_b32 s48, s48, 5")
        A("buffer_load_dwordx2 v[60:61], v7, s[36:39], s48 offen")
        self.label("L_sv_tail")
        C("---- tail ----")
        A("v_lshlrev_b32 v6, 4, v3")
        A("s_lshl_b32 s48, s35, 8")
        A("v_add_u32 v6, s48, v6")
        A("s_barrier")
        A("s_barrier")
        for kk in range(4):
            A(f"ds_read_b128 v[{ST + 4 * kk}:{ST + 4 * kk + 3}], v6 offset:{L_O + 64 * kk}")
        A("s_lshl_b32 s48, s35, 9")
        A("v_lshl_add_u32 v7, v2, 5, s48")
        DT = 24
        accs = [32, 36, 40, 44, 48, 52, 8, 12]
        for kk in range(4):
            A(f"s_waitcnt lgkmcnt({3 - kk})")
            for t in range(8):
                d = accs[t]
                fr = WO + kk * 32 + t * 4
                c = "0" if kk == 0 else f"v[{d}:{d + 3}]"
                A(f"v_mfma_f32_16x16x32_bf16 v[{d}:{d + 3}], v[{ST + 4 * kk}:{ST + 4 * kk + 3}], v[{fr}:{fr + 3}], {c}")
        A("s_nop 1")
        for t in range(8):
            A(f"v_mov_b32 v{ST + t}, v{accs[t]}")
        A(f"ds_write_b128 v7, v[{ST}:{ST + 3}] offset:{L_T1}")
        A(f"ds_write_b128 v7, v[{ST + 4}:{ST + 7}] offset:{L_T1 + 16}")
        A("s_waitcnt lgkmcnt(0)")
        A("s_barrier")
        A("s_cmp_lg_u32 s35, 0")
        A("s_cbranch_scc1 L_sv_skip2")
        self.stamp(8)
        C("S0: P4: lanes<28: sum 4 waves, publish AP[b][hkv][112c + 4l]")
        for w in range(4):
            A(f"ds_read_b128 v[{ST + 4 * w}:{ST + 4 * w + 3}], v4 offset:{L_T1 + 512 * w}")
        A("s_mul_i32 s48, s4, 14336")
        A(f"s_add_u32 s48, s48, {W_AP}")
        self.srd(44, 32, 14336, 48)
        A("s_mul_i32 s48, s5, 1792")
        A("s_lshl_b32 s49, s6, 9")
        A("s_add_u32 s48, s48, s49")
        A("s_cmp_eq_u32 s6, 3")
        A("s_cselect_b32 s50, 0xffff, -1")
        A("s_mov_b32 s51, 0")
        A("v_lshlrev_b32 v7, 5, v0")
        A("s_waitcnt lgkmcnt(0)")
        for e in range(4):
            A(f"v_add_f32 v{ST + e}, v{ST + e}, v{ST + 4 + e}")
            A(f"v_add_f32 v{ST + 8 + e}, v{ST + 8 + e}, v{ST + 12 + e}")
        for e in range(4):
            A(f"v_add_f32 v{ST + e}, v{ST + e}, v{ST + 8 + e}")
        for e in range(4):
            A(f"v_min_u32 v{ST + e}, -2, v{ST + e}")
        A("s_mov_b64 exec, s[50:51]")
        A(f"buffer_store_dwordx4 v[{ST}:{ST + 3}], v4, s[44:47], s48 offen sc1")
        C("P5: lanes<56: gather AP[b][h'][8l..8l+8] (wo frags are dead now)")
        A("s_mov_b64 exec, s[52:53]")
        G = WO
        for hh in range(1, 4):
            A(f"s_mov_b32 s{40 + hh}, {hh * 3584}")
        lds = []
        for hh in range(8):
            so = "0" if hh < 2 else f"s{40 + hh // 2}"
            for u in range(2):
                r = G + hh * 8 + u * 4
                lds.append(f"buffer_load_dwordx4 v[{r}:{r + 3}], v7, s[44:47], {so} offen offset:{(hh & 1) * 1792 + 16 * u} sc1")
        self.poll_sentinel(lds, [G + i for i in range(64)], 12, 51, retry_sleep=self.tsleep)
        A("s_mov_b64 exec, -1")
        self.stamp(9)
        for e in range(8):
            for hh in range(0, 8, 2):
                A(f"v_add_f32 v{G + hh * 8 + e}, v{G + hh * 8 + e}, v{G + hh * 8 + 8 + e}")
        for e in range(8):
            A(f"v_add_f32 v{G + e}, v{G + e}, v{G + 16 + e}")
            A(f"v_add_f32 v{G + 32 + e}, v{G + 32 + e}, v{G + 48 + e}")
        for e in range(8):
            A(f"v_add_f32 v{G + e}, v{G + e}, v{G + 32 + e}")
        for e in range(4):
            A(f"v_cvt_pk_bf16_f32 v{ST + e}, v{G + 2 * e}, v{G + 2 * e + 1}")
        self.unpack8(ST, G)
        self.unpack8(56, G + 8)
        for e in range(8):
            A(f"v_add_f32 v{G + e}, v{G + e}, v{G + 8 + e}")
        for e in range(4):
            A(f"v_cvt_pk_bf16_f32 v{ST + e}, v{G + 2 * e}, v{G + 2 * e + 1}")
        self.unpack8(ST, G)
        self.layernorm([([G + e for e in range(8)], ST)], 52, G + 16)
        A("s_mov_b64 exec, s[52:53]")
        A(f"ds_write_b128 v4, v[{ST}:{ST + 3}] offset:{L_HN}")
        A(f"ds_write_b128 v7, v[{G}:{G + 3}] offset:{L_H}")
        A(f"ds_write_b128 v7, v[{G + 4}:{G + 7}] offset:{L_H + 16}")
        A("s_mov_b64 exec, -1")
        A("s_waitcnt lgkmcnt(0)")
        self.label("L_sv_skip2")
        A("s_barrier")
        C("T2a: ksteps s, s+4, s+8, s+12")
        A("v_lshlrev_b32 v6, 4, v3")
        A("s_lshl_b32 s48, s35, 6")
        A("v_add_u32 v6, s48, v6")
        for kk in range(4):
            A(f"ds_read_b128 v[{ST + 4 * kk}:{ST + 4 * kk + 3}], v6 offset:{L_HN + 256 * kk}")
        A("s_lshl_b32 s48, s35, 8")
        A("v_lshl_add_u32 v7, v2, 4, s48")
        for kk in range(4):
            A(f"s_waitcnt lgkmcnt({3 - kk})")
            for t in range(4):
                d = 32 + 4 * t
                fr = W1 + kk * 16 + t * 4
                c = "0" if kk == 0 else f"v[{d}:{d + 3}]"
                A(f"v_mfma_f32_16x16x32_bf16 v[{d}:{d + 3}], v[{ST + 4 * kk}:{ST + 4 * kk + 3}], v[{fr}:{fr + 3}], {c}")
        A("s_nop 5")
        for t in range(4):
            A(f"v_mov_b32 v{ST + t}, v{32 + 4 * t}")
        A(f"ds_write_b128 v7, v[{ST}:{ST + 3}] offset:{L_R1}")
        A("s_waitcnt lgkmcnt(0)")
        A("s_barrier")
        A("s_cmp_lg_u32 s35, 0")
        A("s_cbranch_scc1 L_end")
        self.stamp(10)
        A("s_cmp_lt_i32 s34, 0")
        A("s_cbranch_scc1 L_sv_fin")
        C("P8: final reduce: FP[b][src][16f + 4q]; lane l: src = l>>2 (+16), q = l&3")
        A("s_mul_i32 s48, s4, 57344")
        A(f"s_add_u32 s48, s48, {W_FP}")
        self.srd(44, 32, 28 * 1792, 48)
        A("v_lshrrev_b32 v6, 2, v0")
        A("v_mul_u32_u24 v6, 1792, v6")
        A("v_and_b32 v7, 3, v0")
        A("v_lshl_add_u32 v6, v7, 4, v6")
        A("s_lshl_b32 s48, s34, 6")
        A(f"s_add_u32 s49, s48, {16 * 1792}")
        A("v_lshl_add_u32 v8, v7, 4, s48")
        A(f"ds_read_b128 v[40:43], v8 offset:{L_H}")
        self.srd(36, 28, 7168)
        lds = [f"buffer_load_dwordx4 v[{ST}:{ST + 3}], v6, s[44:47], s48 offen sc1",
               f"buffer_load_dwordx4 v[{ST + 4}:{ST + 7}], v6, s[44:47], s49 offen sc1"]
        self.poll_sentinel(lds, [ST + i for i in range(8)], 12, 51)
        self.stamp(11)
        for e in range(4):
            A(f"v_add_f32 v{ST + e}, v{ST + e}, v{ST + 4 + e}")
        for ctrl in ("row_ror:4", "row_ror:8"):
            A("s_nop 1")
            for e in range(4):
                A(f"v_add_f32_dpp v{ST + e}, v{ST + e}, v{ST + e} {ctrl} row_mask:0xf bank_mask:0xf")
        for sw in ("v_permlane16_swap_b32", "v_permlane32_swap_b32"):
            for e in range(4):
                A(f"v_mov_b32 v{ST + 4 + e}, v{ST + e}")
            A("s_nop 1")
            for e in range(4):
                A(f"{sw} v{ST + e}, v{ST + 4 + e}")
            A("s_nop 1")
            for e in range(4):
                A(f"v_add_f32 v{ST + e}, v{ST + e}, v{ST + 4 + e}")
        A(f"v_cvt_pk_bf16_f32 v{ST + 4}, v{ST}, v{ST + 1}")
        A(f"v_cvt_pk_bf16_f32 v{ST + 5}, v{ST + 2}, v{ST + 3}")
        for e in range(2):
            A(f"v_lshlrev_b32 v{ST + 2 * e}, 16, v{ST + 4 + e}")
            A(f"v_and_b32 v{ST + 2 * e + 1}, 0xffff0000, v{ST + 4 + e}")
            A(f"v_lshlrev_b32 v{32 + 2 * e}, 16, v{60 + e}")
            A(f"v_and_b32 v{32 + 2 * e + 1}, 0xffff0000, v{60 + e}")
        for e in range(4):
            A(f"v_add_f32 v{ST + e}, v{ST + e}, v{32 + e}")
        A(f"v_cvt_pk_bf16_f32 v{ST + 4}, v{ST}, v{ST + 1}")
        A(f"v_cvt_pk_bf16_f32 v{ST + 5}, v{ST + 2}, v{ST + 3}")
        for e in range(2):
            A(f"v_lshlrev_b32 v{ST + 2 * e}, 16, v{ST + 4 + e}")
            A(f"v_and_b32 v{ST + 2 * e + 1}, 0xffff0000, v{ST + 4 + e}")
        A("s_waitcnt lgkmcnt(0)")
        for e in range(4):
            A(f"v_add_f32 v{ST + e}, v{ST + e}, v{40 + e}")
        A(f"v_cvt_pk_bf16_f32 v{ST + 4}, v{ST}, v{ST + 1}")
        A(f"v_cvt_pk_bf16_f32 v{ST + 5}, v{ST + 2}, v{ST + 3}")
        A("v_lshlrev_b32 v7, 3, v7")
        A("s_mul_i32 s48, s4, 896")
        A("s_lshl_b32 s49, s34, 5")
        A("s_add_u32 s48, s48, s49")
        A("s_mov_b64 exec, 0xf")
        A(f"buffer_store_dwordx2 v[{ST + 4}:{ST + 5}], v7, s[36:39], s48 offen")
        A("s_mov_b64 exec, -1")
        self.label("L_sv_fin")
        self.stamp(12)
        self.dump_stamps(13, 8)


if __name__ == "__main__":
    import argparse
    ap = argparse.ArgumentParser()
    ap.add_argument("-o", default=f"cdna_kernels/{NAME}.s")
    ap.add_argument("--D", type=int, default=5)
    ap.add_argument("--R", type=int, default=42)
    ap.add_argument("--stamps", action="store_true")
    ap.add_argument("--wnt", default="")
    ap.add_argument("--knt", default="nt")
    ap.add_argument("--nowdelay", action="store_true")
    ap.add_argument("--qnt", default="nt")
    ap.add_argument("--wd", type=int, default=8)
    ap.add_argument("--now", type=int, default=0)
    ap.add_argument("--DV", type=int, default=0)
    ap.add_argument("--wsoff", type=lambda x: int(x, 0), default=0)
    ap.add_argument("--qsleep", type=int, default=0)
    ap.add_argument("--ssleep", type=int, default=0)
    ap.add_argument("--DE", type=int, default=0)
    ap.add_argument("--tsleep", type=int, default=0)
    ap.add_argument("--margin", type=int, default=12)
    ap.add_argument("--w2pos", type=int, default=8)
    ap.add_argument("--yrot", type=int, default=0)
    ap.add_argument("--ilv", type=int, default=0)
    ap.add_argument("--NE", type=int, default=0)
    a = ap.parse_args()
    g = Gen(D=a.D, R=a.R, stamps=a.stamps, wnt=a.wnt, knt=a.knt, wdelay=not a.nowdelay, qnt=a.qnt, wd=a.wd, now=a.now, DV=a.DV, wsoff=a.wsoff, qsleep=a.qsleep, ssleep=a.ssleep, DE=a.DE, NE=a.NE, tsleep=a.tsleep, margin=a.margin, w2pos=a.w2pos, yrot=a.yrot, ilv=a.ilv)
    open(a.o, "w").write(g.build())
```

```python
import sys

NAME = "sequential_preLN__gqa_block_cached__dense_activation_squared_relu__decode"

HEADER = """; Kernarg layout for this problem (104 bytes, ptrs only, base s[0:1]):
"""

L_XN = 0x0000
L_Q = 0x1C00
L_SC = 0x2000
L_SCD = 0x3000
L_P = 0x4000
L_ZERO = 0x5000
L_ACC = 0x6000
L_O = 0x8000
L_T1 = 0x8400
L_HN = 0x8C00
L_H = 0x9000
L_R1 = 0x9800
L_H1 = 0x9C00
L_FLAG = 0x9E00
L_PP = 0xA000
LDS_BYTES = 0xC000

W_QP = 0x280000
W_QF = 0x072000
W_EP = 0x070000
W_AR = 0x071000
W_ST = 0x080000
W_OP = 0x090000
W_AP = 0x110000
W_FP = 0x130000
W_PP = 0x1A0000
W_TK = 0x230000
W_END = 0x300000
W_STAMP = 0x1000000


class Gen:
    def __init__(self, D=5, R=40, stamps=False, wnt="", knt="nt", poll_cap=200000, wdelay=True, wsleep=0, qnt="nt", wd=8, now=0, DV=None, wsoff=0, qsleep=0, ssleep=0, DE=0, NE=0, tsleep=0, margin=12, w2pos=8, yrot=0, ilv=0, RS=16, kmargin=18, Dh=0, cmap=0, vnt=None):
        self.L = []
        self.D = D
        self.R = R
        self.stamps = stamps
        self.wnt = wnt
        self.knt = knt
        self.poll_cap = poll_cap
        self.nlabel = 0
        self.wdelay = wdelay
        self.wsleep = wsleep
        self.qnt = qnt
        self.wd = wd
        self.now = now
        self.wsoff = wsoff
        self.qsleep = qsleep
        self.ssleep = ssleep
        self.DE = DE
        self.tsleep = tsleep
        self.margin = margin
        self.yrot = yrot
        self.ilv = ilv
        self.RS = RS
        self.kmargin = kmargin
        self.Dh = Dh
        self.cmap = cmap
        self.vnt = knt if vnt is None else vnt
        self.dyn = RS < 16
        if self.dyn:
            self.ilv = 1
        self.w2pos = w2pos
        self.NE = NE
        self.DV = DV if DV else D

    def A(self, s):
        self.L.append("    " + s)

    def C(self, s):
        self.L.append("    ; " + s)

    def label(self, name):
        self.L.append(name + ":")

    def newlabel(self, base):
        self.nlabel += 1
        return f"L_{base}_{self.nlabel}"

    def stamp(self, idx):
        if self.stamps:
            self.A(f"s_memrealtime s[{60 + 2 * idx}:{61 + 2 * idx}]")

    def dump_stamps(self, n, vbase):
        if not self.stamps:
            return
        A = self.A
        A("s_waitcnt lgkmcnt(0)")
        A("s_lshl_b32 s58, s99, 3")
        A("s_add_u32 s58, s58, s3")
        A("s_lshl_b32 s58, s58, 7")
        A(f"s_add_u32 s58, s58, {W_STAMP}")
        A("s_mov_b64 exec, 1")
        A(f"v_mov_b32 v{vbase}, s58")
        for i in range(n):
            A(f"v_mov_b32 v{vbase + 2}, s{60 + 2 * i}")
            A(f"v_mov_b32 v{vbase + 3}, s{61 + 2 * i}")
            A(f"global_store_dwordx2 v{vbase}, v[{vbase + 2}:{vbase + 3}], s[32:33] offset:{8 * i}")
            A("s_nop 1")
        A(f"v_mov_b32 v{vbase + 2}, s90")
        A(f"v_mov_b32 v{vbase + 3}, s91")
        A(f"global_store_dwordx2 v{vbase}, v[{vbase + 2}:{vbase + 3}], s[32:33] offset:120")
        A("s_mov_b64 exec, -1")

    def wsadj(self):
        if self.wsoff:
            self.A(f"s_add_u32 s32, s32, {self.wsoff}")
            self.A("s_addc_u32 s33, s33, 0")

    def pp_addr(self, v, st):
        A = self.A
        RS = self.RS
        A(f"v_lshrrev_b32 v{v}, 2, v0")
        A(f"v_subrev_u32 v{v}, {RS}, v{v}")
        A(f"v_lshlrev_b32 v{v}, 10, v{v}")
        A(f"v_and_b32 v{v + 1}, 3, v0")
        A(f"v_lshl_add_u32 v{v}, v{v + 1}, 6, v{v}")
        A(f"s_lshl_b32 s{st}, s7, 13")
        A(f"s_lshl_b32 s{st + 1}, s6, 8")
        A(f"s_add_u32 s{st}, s{st}, s{st + 1}")
        A(f"s_add_u32 s{st}, s{st}, {W_PP}")
        A(f"v_add_u32 v{v}, s{st}, v{v}")
        A(f"v_cmp_le_u32 s[50:51], {4 * RS}, v0")

    def epoch_load(self):
        self.A(f"s_load_dwordx2 s[92:93], s[32:33], {W_EP}")

    def srd(self, d, ptr, size, off_sgpr=None):
        A = self.A
        if off_sgpr is None:
            A(f"s_mov_b32 s{d}, s{ptr}")
            A(f"s_mov_b32 s{d + 1}, s{ptr + 1}")
        else:
            A(f"s_add_u32 s{d}, s{ptr}, s{off_sgpr}")
            A(f"s_addc_u32 s{d + 1}, s{ptr + 1}, 0")
        A(f"s_mov_b32 s{d + 2}, {size}")
        A(f"s_mov_b32 s{d + 3}, 0x20000")

    def allreduce(self, op, regs, tmps):
        A = self.A
        for ctrl in ("quad_perm:[1,0,3,2]", "quad_perm:[2,3,0,1]", "row_half_mirror", "row_mirror"):
            A("s_nop 1")
            for r in regs:
                A(f"v_{op}_f32_dpp v{r}, v{r}, v{r} {ctrl} row_mask:0xf bank_mask:0xf")
        for sw in ("v_permlane16_swap_b32", "v_permlane32_swap_b32"):
            for r, t in zip(regs, tmps):
                A(f"v_mov_b32 v{t}, v{r}")
            A("s_nop 1")
            for r, t in zip(regs, tmps):
                A(f"{sw} v{r}, v{t}")
            A("s_nop 1")
            for r, t in zip(regs, tmps):
                A(f"v_{op}_f32 v{r}, v{r}, v{t}")

    def lds_spin(self, vaddr, off, target, vtmp, stmp):
        A = self.A
        l = self.newlabel("spin")
        d = self.newlabel("spun")
        A(f"s_mov_b32 s59, {max(self.poll_cap * 20, 100000)}")
        self.label(l)
        A(f"ds_read_b32 v{vtmp}, v{vaddr} offset:{off}")
        A("s_waitcnt lgkmcnt(0)")
        A(f"v_readfirstlane_b32 s{stmp}, v{vtmp}")
        A("s_nop 0")
        A(f"s_cmp_eq_u32 s{stmp}, {target}")
        A(f"s_cbranch_scc1 {d}")
        A("s_sleep 1")
        A("s_sub_u32 s59, s59, 1")
        A("s_cmp_lg_u32 s59, 0")
        A(f"s_cbranch_scc1 {l}")
        self.label(d)

    def poll_sentinel(self, loads, regs, vtmp, scnt, sleep=0, retry_sleep=0, first_issued=False):
        A = self.A
        l = self.newlabel("poll")
        d = self.newlabel("polled")
        A(f"s_mov_b32 s{scnt}, {self.poll_cap}")
        if first_issued:
            l2 = self.newlabel("pollchk")
            A(f"s_branch {l2}")
        self.label(l)
        if sleep:
            A(f"s_sleep {sleep}")
        for s in loads:
            A(s)
        if first_issued:
            self.label(l2)
        A("s_waitcnt vmcnt(0)")
        A(f"v_max3_u32 v{vtmp}, v{regs[0]}, v{regs[1]}, v{regs[2]}")
        rest = regs[3:]
        while len(rest) >= 2:
            A(f"v_max3_u32 v{vtmp}, v{vtmp}, v{rest[0]}, v{rest[1]}")
            rest = rest[2:]
        if rest:
            A(f"v_max_u32 v{vtmp}, v{vtmp}, v{rest[0]}")
        A(f"v_cmp_eq_u32 vcc, -1, v{vtmp}")
        A(f"s_cbranch_vccz {d}")
        if retry_sleep:
            A(f"s_sleep {retry_sleep}")
        A(f"s_sub_u32 s{scnt}, s{scnt}, 1")
        A(f"s_cmp_lg_u32 s{scnt}, 0")
        A(f"s_cbranch_scc1 {l}")
        self.label(d)

    def layernorm(self, rows, smask, t):
        A = self.A
        n = len(rows)
        S = [t + i for i in range(n)]
        T = [t + n + i for i in range(n)]
        M = [t + 2 * n + i for i in range(n)]
        DD = t + 3 * n
        for k, (x, o) in enumerate(rows):
            A(f"v_add_f32 v{S[k]}, v{x[0]}, v{x[1]}")
            for e in range(2, 8):
                A(f"v_add_f32 v{S[k]}, v{S[k]}, v{x[e]}")
            A(f"v_cndmask_b32 v{S[k]}, 0, v{S[k]}, s[{smask}:{smask + 1}]")
        self.allreduce("add", S, T)
        for k, (x, o) in enumerate(rows):
            A(f"v_mul_f32 v{M[k]}, 0x3b124925, v{S[k]}")
        for k, (x, o) in enumerate(rows):
            for e in range(8):
                A(f"v_sub_f32 v{DD + e}, v{x[e]}, v{M[k]}")
            A(f"v_mul_f32 v{S[k]}, v{DD}, v{DD}")
            for e in range(1, 8):
                A(f"v_fmac_f32 v{S[k]}, v{DD + e}, v{DD + e}")
            A(f"v_cndmask_b32 v{S[k]}, 0, v{S[k]}, s[{smask}:{smask + 1}]")
        self.allreduce("add", S, T)
        for k, (x, o) in enumerate(rows):
            A(f"v_mul_f32 v{S[k]}, 0x3b124925, v{S[k]}")
            A(f"v_cvt_pk_bf16_f32 v{T[k]}, v{M[k]}, v{S[k]}")
            A(f"v_lshlrev_b32 v{M[k]}, 16, v{T[k]}")
            A(f"v_and_b32 v{S[k]}, 0xffff0000, v{T[k]}")
            A(f"v_add_f32 v{S[k]}, 0x3727c5ac, v{S[k]}")
            A(f"v_cvt_pk_bf16_f32 v{S[k]}, v{S[k]}, v{S[k]}")
            A(f"v_lshlrev_b32 v{S[k]}, 16, v{S[k]}")
            A(f"v_sqrt_f32 v{S[k]}, v{S[k]}")
            A("s_nop 0")
            A(f"v_cvt_pk_bf16_f32 v{S[k]}, v{S[k]}, v{S[k]}")
            A(f"v_lshlrev_b32 v{S[k]}, 16, v{S[k]}")
            A(f"v_rcp_f32 v{S[k]}, v{S[k]}")
            for e in range(8):
                A(f"v_sub_f32 v{DD + e}, v{x[e]}, v{M[k]}")
            for e in range(4):
                A(f"v_cvt_pk_bf16_f32 v{o + e}, v{DD + 2 * e}, v{DD + 2 * e + 1}")
            for e in range(4):
                A(f"v_lshlrev_b32 v{DD + 2 * e}, 16, v{o + e}")
                A(f"v_and_b32 v{DD + 2 * e + 1}, 0xffff0000, v{o + e}")
            for e in range(8):
                A(f"v_mul_f32 v{DD + e}, v{DD + e}, v{S[k]}")
            for e in range(4):
                A(f"v_cvt_pk_bf16_f32 v{o + e}, v{DD + 2 * e}, v{DD + 2 * e + 1}")

    def unpack8(self, src, dst):
        for e in range(4):
            self.A(f"v_lshlrev_b32 v{dst + 2 * e}, 16, v{src + e}")
            self.A(f"v_and_b32 v{dst + 2 * e + 1}, 0xffff0000, v{src + e}")

    def build(self):
        A, C = self.A, self.C
        D, R = self.D, self.R
        self.L.append(HEADER.rstrip())
        self.L.append(f"; @launch grid=(256,1,1) block=(512,1,1) lds={LDS_BYTES}")
        self.L.append('.amdgcn_target "amdgcn-amd-amdhsa--gfx950"')
        self.L.append(".text")
        self.L.append(f".globl {NAME}_kernel")
        self.L.append(".p2align 8")
        self.L.append(f".type {NAME}_kernel,@function")
        self.label(f"{NAME}_kernel")
        A("s_cmp_ge_u32 s2, 256")
        A("s_cbranch_scc1 L_end")
        self.stamp(0)
        A("s_mov_b32 s99, s2")
        if self.yrot:
            A("s_xor_b32 s2, s2, 16")
        if self.stamps:
            A("s_getreg_b32 s90, hwreg(HW_REG_HW_ID)")
            A("s_getreg_b32 s91, hwreg(HW_REG_XCC_ID)")
        A("s_load_dwordx16 s[8:23], s[0:1], 0")
        A("s_load_dwordx8 s[24:31], s[0:1], 64")
        A("s_load_dwordx2 s[32:33], s[0:1], 96")
        A("v_lshrrev_b32 v1, 6, v0")
        A("v_and_b32 v0, 63, v0")
        A("v_readfirstlane_b32 s3, v1")
        C("decode wg -> b (s4), hkv (s5), c (s6), pair (s7), f = hkv*4+c (s34)")
        A("s_lshr_b32 s4, s2, 3")
        A("s_lshr_b32 s5, s4, 3")
        A("s_and_b32 s4, s4, 7")
        A("s_lshl_b32 s5, s5, 1")
        if self.cmap:
            A("s_and_b32 s6, s2, 1")
            A("s_add_u32 s5, s5, s6")
            A("s_bfe_u32 s6, s2, 0x20001")
        else:
            A("s_bfe_u32 s6, s2, 0x10002")
            A("s_add_u32 s5, s5, s6")
            A("s_and_b32 s6, s2, 3")
        A("s_lshl_b32 s7, s4, 3")
        A("s_add_u32 s7, s7, s5")
        A("s_lshl_b32 s34, s6, 3")
        A("s_add_u32 s34, s34, s5")
        A("s_sub_u32 s34, s34, 4")
        A("s_mov_b32 s56, 0x05040100")
        A("s_mov_b32 s57, 0x07060302")
        A("v_and_b32 v2, 15, v0")
        A("v_lshrrev_b32 v3, 4, v0")
        A("s_cmp_ge_u32 s3, 4")
        A("s_cbranch_scc1 L_service")
        self.stream()
        self.service()
        self.label("L_end")
        A("s_endpgm")
        self.L.append('.section .rodata,"a"')
        self.L.append(".p2align 6")
        self.L.append(f".amdhsa_kernel {NAME}_kernel")
        self.L.append("  .amdhsa_next_free_vgpr 256")
        self.L.append("  .amdhsa_next_free_sgpr 102")
        self.L.append("  .amdhsa_accum_offset 256")
        self.L.append("  .amdhsa_group_segment_fixed_size 0")
        self.L.append("  .amdhsa_kernarg_size 104")
        self.L.append("  .amdhsa_user_sgpr_count 2")
        self.L.append("  .amdhsa_user_sgpr_kernarg_segment_ptr 1")
        self.L.append("  .amdhsa_system_sgpr_workgroup_id_x 1")
        self.L.append("  .amdhsa_float_denorm_mode_32 3")
        self.L.append(".end_amdhsa_kernel")
        return "\n".join(self.L) + "\n"

    def stream(self):
        A, C = self.A, self.C
        D, R = self.D, self.R
        C("================= stream waves (0..3) =================")
        vK, vV, vSC, vP, vFL, vW2, vT = 4, 5, 6, 7, 8, 9, 10
        QF = 16
        DK = 48
        ACC = 16
        TP = 48
        PF = 80
        RING = 88
        assert RING + 4 * R <= 256
        A("v_and_b32 v10, 7, v0")
        A("v_lshrrev_b32 v11, 3, v0")
        A("v_lshlrev_b32 v4, 9, v11")
        A("v_lshl_add_u32 v4, v10, 4, v4")
        A("s_lshl_b32 s35, s3, 12")
        A("v_add_u32 v4, s35, v4")
        A("v_lshlrev_b32 v5, 4, v0")
        A("s_lshl_b32 s35, s3, 13")
        A("v_add_u32 v5, s35, v5")
        A("s_lshl_b32 s35, s7, 21")
        A(f"s_lshl_b32 s36, s6, {15 if self.ilv else 19}")
        A("s_add_u32 s35, s35, s36")
        A("s_waitcnt lgkmcnt(0)")
        self.wsadj()
        ksz = 0x200000 - 3 * 32768 if self.ilv else 0x80000
        self.srd(36, 10, ksz, 35)
        self.srd(40, 12, ksz, 35)
        self.srd(44, 24, 1792 * 896)
        loads = []
        for nb in range(32):
            for j in range(4):
                loads.append(("K", nb, j))
        RS = self.RS
        NP = (16 - RS) * 16
        vTK, vPM, vPB, vTA, vVL = 6, 12, 13, 14, 15
        for nu in range(RS):
            for i in range(8):
                loads.append(("V", nu, i))
            if nu in (self.w2pos, self.w2pos + 1):
                for i in range(8):
                    loads.append(("W", nu - self.w2pos, i))
        free = list(range(R))
        slot_of = {}
        order = []
        st = {"soff": None}

        def sreg(slot):
            return RING + 4 * slot

        def set_soff(val):
            if st["soff"] != val:
                A(f"s_mov_b32 s48, {val}")
                st["soff"] = val

        cur = {"D": D}

        cur["landed"] = -1

        def vmwait(n):
            idx = len(order) - n - 1
            if idx > cur["landed"]:
                A(f"s_waitcnt vmcnt({n})")
                cur["landed"] = idx

        def pace():
            d = cur["D"]
            if self.Dh and (len(order) & 1):
                d -= 1
            if len(order) >= d:
                vmwait(d - 1)

        def ticket(sd):
            A(f"s_mov_b32 s{sd}, 1")
            A(f"s_atomic_add s{sd}, s[94:95], 0 glc")

        def issue(ld):
            pace()
            slot = free.pop(0)
            slot_of[ld] = slot
            r = sreg(slot)
            kind, a, b = ld
            if kind == "K":
                set_soff(((a >> 1) * 131072 + (a & 1) * 16384) if self.ilv else a * 16384)
                A(f"buffer_load_dwordx4 v[{r}:{r + 3}], v{vK}, s[36:39], s48 offen offset:{b * 128} {self.knt}")
            elif kind == "V":
                set_soff(a * (131072 if self.ilv else 32768) + (b >> 2) * 4096)
                A(f"buffer_load_dwordx4 v[{r}:{r + 3}], v{vV}, s[40:43], s48 offen offset:{(b & 3) * 1024} {self.vnt}")
            elif kind == "W":
                A(f"s_add_u32 s48, s49, {(a * 32 + (b & 4)) * 896}")
                st["soff"] = None
                A("s_mov_b64 exec, s[52:53]")
                A(f"buffer_load_dwordx4 v[{r}:{r + 3}], v{vW2}, s[44:47], s48 offen offset:{(b & 3) * 896} {self.wnt}")
                A("s_mov_b64 exec, -1")
            order.append(ld)

        def waitfor(ld):
            vmwait(len(order) - 1 - order.index(ld))

        nxt = [0]

        def issue_next(k=1):
            for _ in range(k):
                if nxt[0] < len(loads) and free:
                    issue(loads[nxt[0]])
                    nxt[0] += 1

        issue_next(D)
        C("score write address: L_SC + (wave*8 + (l>>3))*4")
        A("s_lshl_b32 s35, s3, 5")
        A("v_lshrrev_b32 v10, 3, v0")
        A(f"v_lshl_add_u32 v{vSC}, v10, 2, s35")
        C("P frag address: combo = rho>>2 = 2*half+h ; active iff (g&1)==half")
        A("v_lshrrev_b32 v10, 2, v2")
        A("v_and_b32 v11, 1, v10")
        A("v_lshrrev_b32 v12, 1, v10")
        A("v_and_b32 v13, 1, v3")
        A("v_lshrrev_b32 v14, 1, v3")
        A("v_lshlrev_b32 v11, 5, v11")
        A("v_lshl_add_u32 v11, v14, 4, v11")
        A("s_lshl_b32 s35, s3, 6")
        A(f"s_add_u32 s35, s35, {L_P}")
        A(f"v_add_u32 v11, s35, v11")
        A(f"v_mov_b32 v10, {L_ZERO}")
        A("v_cmp_eq_u32 vcc, v12, v13")
        A("s_nop 1")
        A(f"v_cndmask_b32 v{vP}, v10, v11, vcc")
        A(f"v_mov_b32 v{vFL}, {L_FLAG}")
        C("w2 lane offset: g*8*896 + wave*256 + j*16 ; s49 = f*56*896")
        A(f"v_mul_u32_u24 v{vW2}, {8 * 896}, v3")
        A(f"v_lshl_add_u32 v{vW2}, v2, 4, v{vW2}")
        A("s_lshl_b32 s35, s3, 8")
        A(f"v_add_u32 v{vW2}, s35, v{vW2}")
        A(f"s_max_i32 s49, s34, 0")
        A(f"s_mul_i32 s49, s49, {64 * 896}")
        C("exec mask for the w2 loads: wave 3 covers only 64 columns; no FFN slice -> skip via 0-size SRD")
        A("s_mov_b64 s[52:53], -1")
        A("s_cmp_eq_u32 s3, 3")
        A("s_cselect_b32 s52, 0x00ff00ff, s52")
        A("s_cselect_b32 s53, 0x00ff00ff, s53")
        A("s_cmp_lt_i32 s34, 0")
        A("s_cselect_b32 s46, 0, s46")
        A("v_and_b32 v10, 7, v0")
        A("v_lshlrev_b32 v15, 4, v10")
        A("s_barrier")
        M = self.margin

        def progress_flag(off):
            A("v_mov_b32 v10, 1")
            A(f"ds_write_b32 v{vFL}, v10 offset:{off}")

        issue_next(R - self.kmargin - D)
        progress_flag(16)
        issue_next(R)
        self.stamp(1)
        self.lds_spin(vFL, 4, 1, 10, 50)
        self.stamp(2)
        for j in range(4):
            for h in range(2):
                r = QF + 8 * j + 4 * h
                A(f"ds_read_b128 v[{r}:{r + 3}], v15 offset:{L_Q + 512 * h + 128 * j}")
        A("s_waitcnt lgkmcnt(0)")

        def k_post(nb):
            d = DK + 2 * (nb & 1)
            for ctrl in ("quad_perm:[1,0,3,2]", "quad_perm:[2,3,0,1]", "row_half_mirror"):
                for h in range(2):
                    A(f"v_add_f32_dpp v{d + h}, v{d + h}, v{d + h} {ctrl} row_mask:0xf bank_mask:0xf")
                A("s_nop 0")
            A(f"v_cvt_pk_bf16_f32 v10, v{d}, v{d + 1}")
            A(f"ds_write_b32 v{vSC}, v10 offset:{L_SC + nb * 128}")

        since = [0]

        def feed(e, ratio):
            want = e + 1 + cur["D"]
            if nxt[0] < want:
                issue_next(want - nxt[0])
                since[0] = 0
            else:
                since[0] += 1
                if since[0] >= ratio:
                    issue_next(1)
                    since[0] = 0

        for nb in range(32):
            d = DK + 2 * (nb & 1)
            for j in range(4):
                ld = ("K", nb, j)
                feed(loads.index(ld), 3)
                waitfor(ld)
                r = sreg(slot_of[ld])
                for e in range(4):
                    for h in range(2):
                        c = "0" if (j == 0 and e == 0) else f"v{d + h}"
                        A(f"v_dot2_f32_bf16 v{d + h}, v{r + e}, v{QF + 8 * j + 4 * h + e}, {c}")
                free.append(slot_of[ld])
                if j == 0 and nb > 0:
                    k_post(nb - 1)
        A("s_nop 3")
        k_post(31)
        A("v_mov_b32 v10, 1")
        A("s_waitcnt lgkmcnt(0)")
        A("s_mov_b64 exec, 1")
        A(f"ds_add_u32 v{vFL}, v10 offset:8")
        A("s_mov_b64 exec, -1")
        self.stamp(3)
        cur["D"] = D = self.DV
        issue_next(len(free) - M)
        progress_flag(20)
        issue_next(R)
        for r in range(32):
            A(f"v_mov_b32 v{ACC + r}, 0")
        self.stamp(4)
        self.lds_spin(vFL, 12, 1, 10, 50)
        self.stamp(5)
        A(f"ds_read_b128 v[{PF}:{PF + 3}], v{vP} offset:0")
        w2_frag = {}
        if self.dyn:
            C("dynamic-phase registers")
            A(f"v_cmp_gt_u32 vcc, {L_ZERO}, v{vP}")
            A("s_lshl_b32 s35, s3, 6")
            A(f"s_add_u32 s35, s35, {L_P}")
            A(f"v_cndmask_b32 v{vPM}, 0, -1, vcc")
            A(f"v_and_b32 v{vPB}, s35, v{vPM}")
            A(f"v_sub_u32 v{vPB}, v{vP}, v{vPB}")
            A("s_lshl_b32 s35, s7, 7")
            A(f"s_add_u32 s35, s35, {W_TK}")
            A("s_add_u32 s94, s32, s35")
            A("s_addc_u32 s95, s33, 0")
            A(f"v_lshlrev_b32 v{vVL}, 4, v0")
            A("s_lshl_b32 s35, s7, 21")
            self.srd(36, 12, 0x200000, 35)

        def pair(kind, a, r, dsts):
            l0, l1 = (kind, a, 2 * r), (kind, a, 2 * r + 1)
            feed(loads.index(l1), 2)
            waitfor(l1)
            s0, s1 = sreg(slot_of[l0]), sreg(slot_of[l1])
            for t in range(8):
                sel = "s56" if (t & 1) == 0 else "s57"
                A(f"v_perm_b32 v{dsts[t] + r}, v{s1 + (t >> 1)}, v{s0 + (t >> 1)}, {sel}")
            free.append(slot_of[l0])
            free.append(slot_of[l1])

        NST = RS - 1 if self.dyn else 16
        for nu in range(NST):
            if self.DE and nu >= 16 - self.NE:
                cur["D"] = self.DE
            if self.dyn and nu == RS - 4:
                progress_flag(28)
            if self.dyn and nu == RS - 2:
                ticket(96)
            pf = PF + 4 * (nu & 1)
            for r in range(4):
                pair("V", nu, r, [TP + 4 * t for t in range(8)])
            A("s_waitcnt lgkmcnt(0)")
            if nu + 1 < NST:
                pn = PF + 4 * ((nu + 1) & 1)
                A(f"ds_read_b128 v[{pn}:{pn + 3}], v{vP} offset:{(nu + 1) * 256}")
            for t in range(8):
                a = ACC + 4 * t
                A(f"v_mfma_f32_16x16x32_bf16 v[{a}:{a + 3}], v[{pf}:{pf + 3}], v[{TP + 4 * t}:{TP + 4 * t + 3}], v[{a}:{a + 3}]")
            if nu in (self.w2pos, self.w2pos + 1):
                a = nu - self.w2pos
                assert len(free) >= 8
                outs = [sreg(free.pop()) for _ in range(8)]
                for t in range(8):
                    w2_frag[(a, t)] = outs[t]
                for r in range(4):
                    pair("W", a, r, outs)
        if self.dyn:
            C("---- dynamic phase: units drawn from the cluster's pool ----")
            issue_next(16)
            assert nxt[0] == len(loads)
            sl = [sreg(slot_of[("V", RS - 1, i)]) for i in range(8)]
            self.stamp(9)
            self.lds_spin(vFL, 24, 1, 10, 50)
            self.stamp(10)
            A("s_mov_b32 s82, 0")
            A("s_mov_b32 s83, 0")
            A("s_lshl_b32 s54, s3, 6")
            A(f"s_add_u32 s54, s54, {L_P + (RS - 1) * 256}")
            self.label("L_dyn")
            A("s_mov_b32 s50, s96")
            A("s_add_u32 s82, s82, 1")
            A(f"v_and_b32 v10, s54, v{vPM}")
            A(f"v_add_u32 v10, v10, v{vPB}")
            A(f"ds_read_b128 v[{PF}:{PF + 3}], v10")
            ticket(96)
            A("s_lshl_b32 s54, s50, 6")
            A(f"s_add_u32 s54, s54, {L_PP}")
            A("s_lshl_b32 s48, s50, 13")
            A(f"s_add_u32 s48, s48, {RS * 131072}")
            A(f"s_cmp_lt_u32 s50, {NP}")
            A("s_cselect_b32 s48, s48, 0x7fff0000")
            A("s_cselect_b32 s55, 1, 0")
            A("s_add_u32 s51, s48, 4096")
            for r in range(4):
                A("s_waitcnt vmcnt(6)")
                s0, s1 = sl[2 * r], sl[2 * r + 1]
                for t in range(8):
                    sel = "s56" if (t & 1) == 0 else "s57"
                    A(f"v_perm_b32 v{TP + 4 * t + r}, v{s1 + (t >> 1)}, v{s0 + (t >> 1)}, {sel}")
                for i in (2 * r, 2 * r + 1):
                    so = "s48" if i < 4 else "s51"
                    A(f"buffer_load_dwordx4 v[{sl[i]}:{sl[i] + 3}], v{vVL}, s[36:39], {so} offen offset:{(i & 3) * 1024} {self.vnt}")
            A("s_waitcnt lgkmcnt(0)")
            for t in range(8):
                a = ACC + 4 * t
                A(f"v_mfma_f32_16x16x32_bf16 v[{a}:{a + 3}], v[{PF}:{PF + 3}], v[{TP + 4 * t}:{TP + 4 * t + 3}], v[{a}:{a + 3}]")
            A("s_cmp_eq_u32 s55, 1")
            A("s_cbranch_scc1 L_dyn")
        self.stamp(6)
        C("---- tail: write acc to LDS: lane (j,g): combo g, cols j*8..+8 -> [h][256] layout")
        A("v_and_b32 v10, 1, v3")
        A("v_lshrrev_b32 v11, 1, v3")
        A("v_lshlrev_b32 v10, 10, v10")
        A("v_lshl_add_u32 v10, v11, 9, v10")
        A("v_lshl_add_u32 v10, v2, 5, v10")
        A("s_lshl_b32 s35, s3, 11")
        A("v_add_u32 v10, s35, v10")
        A("s_nop 2")
        for t in range(8):
            A(f"v_mov_b32 v{TP + t}, v{ACC + 4 * t}")
        A(f"ds_write_b128 v10, v[{TP}:{TP + 3}] offset:{L_ACC}")
        A(f"ds_write_b128 v10, v[{TP + 4}:{TP + 7}] offset:{L_ACC + 16}")
        A("s_waitcnt lgkmcnt(0)")
        A("s_barrier")
        C("P1/P2: waves 0,1: lane t=wave*64+l handles cols 4t..4t+3")
        A("s_cmp_ge_u32 s3, 2")
        A("s_cbranch_scc1 L_st_skip1")
        A("s_lshl_b32 s35, s3, 10")
        A("v_lshl_add_u32 v10, v0, 4, s35")
        for w in range(4):
            A(f"ds_read_b128 v[{ACC + 4 * w}:{ACC + 4 * w + 3}], v10 offset:{L_ACC + 2048 * w}")
        A("s_lshl_b32 s35, s7, 13")
        A(f"s_add_u32 s35, s35, {W_OP}")
        self.srd(36, 32, 0x2000, 35)
        A("s_lshl_b32 s48, s6, 11")
        A("s_waitcnt lgkmcnt(0)")
        for e in range(4):
            A(f"v_add_f32 v{ACC + e}, v{ACC + e}, v{ACC + 4 + e}")
            A(f"v_add_f32 v{ACC + 8 + e}, v{ACC + 8 + e}, v{ACC + 12 + e}")
        for e in range(4):
            A(f"v_add_f32 v{ACC + e}, v{ACC + e}, v{ACC + 8 + e}")
        for e in range(4):
            A(f"v_min_u32 v{ACC + e}, -2, v{ACC + e}")
        A(f"buffer_store_dwordx4 v[{ACC}:{ACC + 3}], v10, s[36:39], s48 offen sc1")
        A("v_add_u32 v11, 0x1000, v10")
        lds = []
        for cc in range(4):
            r = ACC + 16 + 4 * cc
            va = "v10" if cc < 2 else "v11"
            lds.append(f"buffer_load_dwordx4 v[{r}:{r + 3}], {va}, s[36:39], 0 offen offset:{(cc & 1) * 2048} sc1")
        self.poll_sentinel(lds, [ACC + 16 + i for i in range(16)], 12, 50, retry_sleep=self.tsleep)
        self.stamp(7)
        b = ACC + 16
        for e in range(4):
            A(f"v_add_f32 v{b + e}, v{b + e}, v{b + 4 + e}")
            A(f"v_add_f32 v{b + 8 + e}, v{b + 8 + e}, v{b + 12 + e}")
        for e in range(4):
            A(f"v_add_f32 v{b + e}, v{b + e}, v{b + 8 + e}")
        A(f"v_cvt_pk_bf16_f32 v12, v{b}, v{b + 1}")
        A(f"v_cvt_pk_bf16_f32 v13, v{b + 2}, v{b + 3}")
        A("v_lshrrev_b32 v10, 1, v10")
        A(f"ds_write_b64 v10, v[12:13] offset:{L_O}")
        A("s_waitcnt lgkmcnt(0)")
        self.label("L_st_skip1")
        A("s_barrier")
        C("b1 preload: lane k<56 b1[56f+k]")
        self.srd(36, 22, 1792 * 2)
        A("s_max_i32 s48, s34, 0")
        A("s_lshl_b32 s48, s48, 7")
        A("v_lshlrev_b32 v10, 1, v0")
        A("buffer_load_ushort v14, v10, s[36:39], s48 offen")
        A("s_barrier")
        A("s_barrier")
        A("s_barrier")
        A("s_cmp_lt_i32 s34, 0")
        A("s_cbranch_scc1 L_st_end")
        C("h1: lane k: sum R1[w][k], +b1, relu^2 -> private LDS row, then A frags")
        A("v_lshlrev_b32 v10, 2, v0")
        for w in range(4):
            A(f"ds_read_b32 v{ACC + w}, v10 offset:{L_R1 + 256 * w}")
        A("s_lshl_b32 s35, s3, 7")
        A(f"s_add_u32 s35, s35, {L_H1}")
        A("v_lshl_add_u32 v11, v0, 1, s35")
        A("v_lshl_add_u32 v12, v3, 4, s35")
        A("s_waitcnt vmcnt(0) lgkmcnt(0)")
        A(f"v_add_f32 v{ACC}, v{ACC}, v{ACC + 1}")
        A(f"v_add_f32 v{ACC + 2}, v{ACC + 2}, v{ACC + 3}")
        A(f"v_add_f32 v{ACC}, v{ACC}, v{ACC + 2}")
        A("v_lshlrev_b32 v14, 16, v14")
        A(f"v_cvt_pk_bf16_f32 v{ACC}, v{ACC}, v{ACC}")
        A(f"v_lshlrev_b32 v{ACC}, 16, v{ACC}")
        A(f"v_add_f32 v{ACC}, v{ACC}, v14")
        A(f"v_cvt_pk_bf16_f32 v{ACC}, v{ACC}, v{ACC}")
        A(f"v_lshlrev_b32 v{ACC}, 16, v{ACC}")
        A(f"v_max_f32 v{ACC}, 0, v{ACC}")
        A(f"v_mul_f32 v{ACC}, v{ACC}, v{ACC}")
        A(f"v_cvt_pk_bf16_f32 v{ACC}, v{ACC}, v{ACC}")
        A(f"ds_write_b16 v11, v{ACC}")
        A("s_waitcnt lgkmcnt(0)")
        A(f"ds_read_b128 v[{PF}:{PF + 3}], v12")
        A(f"ds_read_b128 v[{PF + 4}:{PF + 7}], v12 offset:64")
        C("FP[b][f] row: 448 f32")
        A("s_lshl_b32 s35, s4, 5")
        A("s_add_u32 s35, s35, s34")
        A("s_mul_i32 s35, s35, 1792")
        A(f"s_add_u32 s35, s35, {W_FP}")
        self.srd(36, 32, 1792, 35)
        A("s_lshl_b32 s35, s3, 9")
        A("v_lshl_add_u32 v10, v2, 5, s35")
        A("s_waitcnt lgkmcnt(0)")
        for a in range(2):
            for t in range(8):
                d = ACC + 4 * t
                fr = w2_frag[(a, t)]
                c = "0" if a == 0 else f"v[{d}:{d + 3}]"
                A(f"v_mfma_f32_16x16x32_bf16 v[{d}:{d + 3}], v[{PF + 4 * a}:{PF + 4 * a + 3}], v[{fr}:{fr + 3}], {c}")
        A("s_nop 1")
        for t in range(8):
            A(f"v_min_u32 v{TP + t}, -2, v{ACC + 4 * t}")
            if t < 7:
                pass
        A("s_mov_b64 exec, 0xffff")
        A(f"buffer_store_dwordx4 v[{TP}:{TP + 3}], v10, s[36:39], 0 offen sc1")
        A(f"buffer_store_dwordx4 v[{TP + 4}:{TP + 7}], v10, s[36:39], 0 offen offset:16 sc1")
        A("s_mov_b64 exec, -1")
        self.label("L_st_end")
        self.stamp(8)
        self.dump_stamps(12, 10)
        A("s_endpgm")

    def service(self):
        A, C = self.A, self.C
        self.label("L_service")
        C("================= service waves (4..7), s3 -> 0..3 in s35 =================")
        WO = 64
        W1 = 192
        ST = 16
        A("s_sub_u32 s35, s3, 4")
        A("v_cmp_gt_u32 s[52:53], 56, v0")
        A("v_lshlrev_b32 v4, 4, v0")
        A(f"v_mov_b32 v5, {L_FLAG}")
        A("v_mov_b32 v8, 0")
        A("v_mov_b32 v9, 0")
        A("v_mov_b32 v10, 0")
        A("v_mov_b32 v11, 0")
        A("s_waitcnt lgkmcnt(0)")
        self.wsadj()
        C("x rows 2s, 2s+1")
        self.srd(36, 8, 8 * 896)
        A("s_mul_i32 s48, s35, 1792")
        self.epoch_load()
        A(f"buffer_load_dwordx4 v[{ST}:{ST + 3}], v4, s[36:39], s48 offen")
        A(f"buffer_load_dwordx4 v[{ST + 4}:{ST + 7}], v4, s[36:39], s48 offen offset:896")
        A("s_cmp_lg_u32 s35, 0")
        A("s_cbranch_scc1 L_sv_nowq")
        C("S0: wq loads into WO area (free for now): col group cg = (x>>2)*32 + y (s54), K quarter = c")
        self.srd(40, 14, 448 * 8192)
        A("s_and_b32 s54, s5, 1")
        A("s_lshl_b32 s54, s54, 5")
        A("s_lshr_b32 s49, s2, 3")
        A("s_add_u32 s54, s54, s49")
        A("v_lshlrev_b32 v6, 16, v3")
        A("v_lshl_add_u32 v6, v2, 3, v6")
        A(f"s_mul_i32 s48, s6, {112 * 8192}")
        A("s_lshl_b32 s49, s54, 7")
        A("s_add_u32 s48, s48, s49")
        for kk in range(4):
            if kk == 3:
                for r in range(16):
                    A(f"v_mov_b32 v{WO + 48 + r}, 0")
                A("s_mov_b32 exec_hi, 0")
            for i in range(8):
                r = WO + kk * 16 + i * 2
                A(f"s_add_u32 s49, s48, {(kk * 32 + i) * 8192}")
                if not (self.now & 4):
                    A(f"buffer_load_dwordx2 v[{r}:{r + 1}], v6, s[40:43], s49 offen {self.qnt}")
        A("s_mov_b64 exec, -1")
        C("flags = 0, HN tail = 0")
        A("ds_write_b128 v5, v[8:11]")
        A("ds_write_b128 v5, v[8:11] offset:16")
        A(f"ds_write_b128 v4, v[8:11] offset:{L_HN}")
        self.label("L_sv_nowq")
        A("s_cmp_lg_u32 s35, 1")
        A("s_cbranch_scc1 L_sv_noclr")
        if self.now & 2:
            A("s_branch L_sv_noclr")
        C("S1: clear own hand-off slots with the sentinel")
        A("v_mov_b32 v12, -1")
        A("v_mov_b32 v13, -1")
        A("v_mov_b32 v14, -1")
        A("v_mov_b32 v15, -1")
        A("s_lshl_b32 s48, s7, 13")
        A("s_lshl_b32 s49, s6, 11")
        A("s_add_u32 s48, s48, s49")
        A(f"s_add_u32 s48, s48, {W_OP}")
        self.srd(44, 32, 2048, 48)
        A("buffer_store_dwordx4 v[12:15], v4, s[44:47], 0 offen sc1")
        A("buffer_store_dwordx4 v[12:15], v4, s[44:47], 0 offen offset:1024 sc1")
        A("s_lshl_b32 s48, s7, 7")
        A("s_lshl_b32 s49, s6, 4")
        A("s_add_u32 s48, s48, s49")
        A(f"s_add_u32 s48, s48, {W_ST}")
        self.srd(44, 32, 16, 48)
        A("buffer_store_dwordx4 v[12:15], v4, s[44:47], 0 offen sc1")
        A("s_mul_i32 s48, s7, 1792")
        A("s_lshl_b32 s49, s6, 9")
        A("s_add_u32 s48, s48, s49")
        A(f"s_add_u32 s48, s48, {W_AP}")
        self.srd(44, 32, 512, 48)
        A("s_cmp_eq_u32 s6, 3")
        A("s_cselect_b32 s46, 256, s46")
        A("buffer_store_dwordx4 v[12:15], v4, s[44:47], 0 offen sc1")
        A("s_max_i32 s49, s34, 0")
        A("s_lshl_b32 s48, s4, 5")
        A("s_add_u32 s48, s48, s49")
        A("s_mul_i32 s48, s48, 1792")
        A(f"s_add_u32 s48, s48, {W_FP}")
        self.srd(44, 32, 1792, 48)
        A("s_cmp_lt_i32 s34, 0")
        A("s_cselect_b32 s46, 0, s46")
        A("buffer_store_dwordx4 v[12:15], v4, s[44:47], 0 offen sc1")
        A("buffer_store_dwordx4 v[12:15], v4, s[44:47], 0 offen offset:1024 sc1")
        if self.dyn:
            self.pp_addr(6, 48)
            A(f"s_mov_b64 exec, s[50:51]")
            for k in range(4):
                A(f"global_store_dwordx4 v6, v[12:15], s[32:33] offset:{16 * k} sc1")
            A("s_mov_b64 exec, -1")
        self.label("L_sv_noclr")
        C("zero region: each service wave clears 1 KiB")
        A("s_lshl_b32 s48, s35, 10")
        A("v_add_u32 v6, s48, v4")
        A(f"ds_write_b128 v6, v[8:11] offset:{L_ZERO}")
        A("s_waitcnt lgkmcnt(0)")
        A("s_barrier")
        A("s_add_u32 s93, s93, 1")
        C("LN1 of 2 rows")
        A("s_cmp_lg_u32 s35, 0")
        A("s_cbranch_scc1 L_sv_w0")
        A("s_waitcnt vmcnt(32)")
        A("s_branch L_sv_w1")
        self.label("L_sv_w0")
        A(f"s_waitcnt vmcnt({10 if self.dyn else 6})")
        A("s_cmp_eq_u32 s35, 1")
        A("s_cbranch_scc1 L_sv_w1")
        A("s_waitcnt vmcnt(0)")
        self.label("L_sv_w1")
        X0, X1 = 24, 32
        self.unpack8(ST, X0)
        self.unpack8(ST + 4, X1)
        self.layernorm([([X0 + e for e in range(8)], ST), ([X1 + e for e in range(8)], ST + 4)], 52, 40)
        A("s_mul_i32 s48, s35, 1792")
        A("v_add_u32 v6, s48, v4")
        A("s_mov_b64 exec, s[52:53]")
        A(f"ds_write_b128 v6, v[{ST}:{ST + 3}] offset:{L_XN}")
        A(f"ds_write_b128 v6, v[{ST + 4}:{ST + 7}] offset:{L_XN + 896}")
        A("v_mov_b32 v7, 1")
        A("s_waitcnt lgkmcnt(0)")
        A("s_mov_b64 exec, 1")
        A("ds_add_u32 v5, v7")
        A("s_mov_b64 exec, -1")
        A("s_cmp_eq_u32 s35, 0")
        A("s_cbranch_scc1 L_sv_q")
        A("s_cmp_lg_u32 s35, 1")
        A("s_cbranch_scc1 L_sv_weights")
        C("S1: arrival flag (slots cleared; every service wave read the epoch before B0)")
        if self.dyn:
            A("s_cmp_lg_u32 s6, 0")
            A("s_cbranch_scc1 L_sv_notk")
            A("s_lshl_b32 s48, s7, 7")
            A(f"s_add_u32 s48, s48, {W_TK}")
            A("v_mov_b32 v6, s48")
            A("v_mov_b32 v7, 0")
            A("s_mov_b64 exec, 1")
            A("global_store_dword v6, v7, s[32:33] sc1")
            A("s_mov_b64 exec, -1")
            self.label("L_sv_notk")
        A("s_lshl_b32 s48, s4, 5")
        A("s_add_u32 s48, s48, s34")
        A("s_add_u32 s48, s48, 4")
        A("s_lshl_b32 s48, s48, 3")
        A(f"s_add_u32 s48, s48, {W_AR}")
        A("v_mov_b32 v6, s48")
        A("v_mov_b32 v12, s92")
        A("v_mov_b32 v13, s93")
        A("s_waitcnt vmcnt(0)")
        A("s_mov_b64 exec, 1")
        A("global_store_dwordx2 v6, v[12:13], s[32:33] sc1")
        A("s_mov_b64 exec, -1")
        A("s_branch L_sv_weights")
        self.label("L_sv_q")
        C("---- S0: q partial (64 columns x 8 batches, K quarter c) ----")
        QB = WO + 64
        C("A frag address: (rho&7)*896 + c*224 + g*16 (+kk*64); B is zero for kk=3,g>=2")
        A("v_and_b32 v6, 7, v2")
        A("v_mul_u32_u24 v6, 896, v6")
        A("v_lshl_add_u32 v6, v3, 4, v6")
        A("s_mul_i32 s48, s6, 224")
        A("v_add_u32 v6, s48, v6")
        A(f"v_add_u32 v7, {L_XN + 192}, v6")
        A(f"v_mov_b32 v12, {L_ZERO}")
        A("v_cmp_gt_u32 vcc, 2, v3")
        A("s_nop 1")
        A("v_cndmask_b32 v7, v12, v7, vcc")
        for kk in range(4):
            A(f"s_waitcnt vmcnt({24 - 8 * kk})")
            for c in range(2):
                for u in range(2):
                    dst = QB + kk * 16 + (2 * c + u) * 4
                    sel = "s56" if u == 0 else "s57"
                    for r in range(4):
                        s0 = WO + kk * 16 + (2 * r + 1) * 2 + c
                        s1 = WO + kk * 16 + (2 * r) * 2 + c
                        A(f"v_perm_b32 v{dst + r}, v{s0}, v{s1}, {sel}")
        self.lds_spin(5, 0, 4, 12, 50)
        for kk in range(3):
            A(f"ds_read_b128 v[{ST + 4 * kk}:{ST + 4 * kk + 3}], v6 offset:{L_XN + 64 * kk}")
        A(f"ds_read_b128 v[{ST + 12}:{ST + 15}], v7")
        C("QP[h = cg>>3][row b'][c][64*(cg&7) + 4j]; lane (j,g<2) rows 4g+r")
        A(f"s_mov_b32 s48, {W_QP}")
        self.srd(44, 32, 0x80000, 48)
        A("v_lshlrev_b32 v6, 15, v3")
        A("v_lshl_add_u32 v6, v2, 4, v6")
        A("s_lshr_b32 s48, s54, 3")
        A("s_lshl_b32 s48, s48, 16")
        A("s_lshl_b32 s49, s6, 11")
        A("s_add_u32 s48, s48, s49")
        A("s_and_b32 s49, s54, 7")
        A("s_lshl_b32 s49, s49, 8")
        A("s_add_u32 s48, s48, s49")
        DQ = 32
        for kk in range(4):
            A(f"s_waitcnt lgkmcnt({3 - kk})")
            for t in range(4):
                d = DQ + 4 * t
                fr = QB + kk * 16 + t * 4
                c = "0" if kk == 0 else f"v[{d}:{d + 3}]"
                A(f"v_mfma_f32_16x16x32_bf16 v[{d}:{d + 3}], v[{ST + 4 * kk}:{ST + 4 * kk + 3}], v[{fr}:{fr + 3}], {c}")
        C("flag address: QF[h][(cg&7)*4 + c] = W_QF + (cg*4 + c)*8")
        A("s_lshl_b32 s50, s54, 2")
        A("s_add_u32 s50, s50, s6")
        A("s_lshl_b32 s50, s50, 3")
        A(f"s_add_u32 s50, s50, {W_QF}")
        A("v_mov_b32 v12, s50")
        A("v_mov_b32 v14, s92")
        A("v_mov_b32 v15, s93")
        A("s_nop 1")
        for r in range(4):
            for t in range(4):
                A(f"v_mov_b32 v{48 + 4 * r + t}, v{DQ + 4 * t + r}")
        if self.now & 8:
            A("s_branch L_sv_qskip")
        A("s_mov_b32 exec_hi, 0")
        for r in range(4):
            A(f"s_add_u32 s49, s48, {r * 8192}")
            A(f"buffer_store_dwordx4 v[{48 + 4 * r}:{48 + 4 * r + 3}], v6, s[44:47], s49 offen sc1")
        A("s_mov_b64 exec, 1")
        A("s_waitcnt vmcnt(0)")
        A("global_store_dwordx2 v12, v[14:15], s[32:33] sc1")
        A("s_mov_b64 exec, -1")
        self.stamp(1)
        C("consumer: flags QF[hkv][0..31], then QP[hkv][b][qt][8l..8l+8]")
        A("s_lshl_b32 s48, s5, 8")
        A(f"s_add_u32 s48, s48, {W_QF}")
        A("v_and_b32 v12, 31, v0")
        A("v_lshl_add_u32 v13, v12, 3, s48")
        A("v_lshlrev_b32 v6, 5, v0")
        A("s_lshl_b32 s48, s5, 16")
        A("s_lshl_b32 s49, s4, 13")
        A("s_add_u32 s48, s48, s49")
        if self.margin:
            self.lds_spin(5, 16, 1, 12, 50)
        A(f"s_mov_b32 s51, {self.poll_cap}")
        self.label("L_sv_qpoll")
        A("global_load_dwordx2 v[14:15], v13, s[32:33] sc1")
        A("s_waitcnt vmcnt(0)")
        A("v_xor_b32 v14, s92, v14")
        A("v_xor_b32 v15, s93, v15")
        A("v_or_b32 v14, v14, v15")
        A("v_cmp_ne_u32 vcc, 0, v14")
        A("s_cbranch_vccz L_sv_qok")
        if self.qsleep:
            A(f"s_sleep {self.qsleep}")
        A("s_sub_u32 s51, s51, 1")
        A("s_cmp_lg_u32 s51, 0")
        A("s_cbranch_scc1 L_sv_qpoll")
        self.label("L_sv_qok")
        self.stamp(2)
        for cc in range(4):
            A(f"s_add_u32 s49, s48, {cc * 2048}")
            A(f"buffer_load_dwordx4 v[{ST + 8 * cc}:{ST + 8 * cc + 3}], v6, s[44:47], s49 offen sc1")
            A(f"buffer_load_dwordx4 v[{ST + 8 * cc + 4}:{ST + 8 * cc + 7}], v6, s[44:47], s49 offen offset:16 sc1")
        A("s_waitcnt vmcnt(0)")
        for e in range(8):
            A(f"v_add_f32 v{ST + e}, v{ST + e}, v{ST + 8 + e}")
            A(f"v_add_f32 v{ST + 16 + e}, v{ST + 16 + e}, v{ST + 24 + e}")
        for e in range(8):
            A(f"v_add_f32 v{ST + e}, v{ST + e}, v{ST + 16 + e}")
        for e in range(4):
            A(f"v_cvt_pk_bf16_f32 v{48 + e}, v{ST + 2 * e}, v{ST + 2 * e + 1}")
        self.label("L_sv_qskip")
        A(f"ds_write_b128 v4, v[48:51] offset:{L_Q}")
        A("v_mov_b32 v7, 1")
        A("s_waitcnt lgkmcnt(0)")
        A("ds_write_b32 v5, v7 offset:4")
        self.stamp(3)
        self.label("L_sv_weights")
        C("---- weights: wo frags (4 ksteps), w1 frags (4 ksteps) ----")
        if self.wdelay:
            self.lds_spin(5, 4, 1, 12, 50)
        if self.now & 1:
            A("s_branch L_sv_wskip")
        self.srd(40, 16, 4096 * 896)
        A(f"v_mul_u32_u24 v6, {8 * 896}, v3")
        A("v_lshl_add_u32 v6, v2, 4, v6")
        A("s_lshl_b32 s48, s5, 9")
        A("s_lshl_b32 s49, s35, 7")
        A("s_add_u32 s48, s48, s49")
        A("s_mul_i32 s48, s48, 896")
        A("s_lshl_b32 s49, s6, 8")
        A("s_add_u32 s48, s48, s49")
        A("s_cmp_eq_u32 s6, 3")
        A("s_cselect_b32 s50, 0x00ff00ff, -1")
        A("s_mov_b32 s51, s50")
        for kk in range(4):
            A("s_mov_b64 exec, s[50:51]")
            for i in range(8):
                if i % 4 == 0:
                    A(f"s_add_u32 s49, s48, {(kk * 32 + i) * 896}")
                r = ST + 4 * i
                if i >= self.wd:
                    A(f"s_waitcnt vmcnt({self.wd - 1})")
                A(f"buffer_load_dwordx4 v[{r}:{r + 3}], v6, s[40:43], s49 offen offset:{(i & 3) * 896} {self.wnt}")
            A("s_mov_b64 exec, -1")
            A("s_waitcnt vmcnt(0)")
            for c in range(4):
                for u in range(2):
                    dst = WO + kk * 32 + (2 * c + u) * 4
                    sel = "s56" if u == 0 else "s57"
                    for r in range(4):
                        A(f"v_perm_b32 v{dst + r}, v{ST + 4 * (2 * r + 1) + c}, v{ST + 4 * (2 * r) + c}, {sel}")
        self.srd(40, 20, 448 * 3584)
        A(f"v_mul_u32_u24 v6, {8 * 3584}, v3")
        A("v_lshl_add_u32 v6, v2, 3, v6")
        A(f"s_mul_i32 s48, s35, {32 * 3584}")
        A("s_cmp_lt_i32 s34, 0")
        A("s_cbranch_scc1 L_sv_wskip")
        A("s_lshl_b32 s49, s34, 7")
        A("s_add_u32 s48, s48, s49")
        for kp in range(2):
            for kk in (2 * kp, 2 * kp + 1):
                for i in range(8):
                    if i % 2 == 0:
                        A(f"s_add_u32 s49, s48, {(kk * 128 + i) * 3584}")
                    r = ST + (kk & 1) * 16 + 2 * i
                    if (kk & 1) * 8 + i >= 2 * self.wd:
                        A(f"s_waitcnt vmcnt({2 * self.wd - 1})")
                    A(f"buffer_load_dwordx2 v[{r}:{r + 1}], v6, s[40:43], s49 offen offset:{(i & 1) * 3584} {self.wnt}")
            A("s_waitcnt vmcnt(0)")
            for kk in (2 * kp, 2 * kp + 1):
                base = ST + (kk & 1) * 16
                for c in range(2):
                    for u in range(2):
                        dst = W1 + kk * 16 + (2 * c + u) * 4
                        sel = "s56" if u == 0 else "s57"
                        for r in range(4):
                            A(f"v_perm_b32 v{dst + r}, v{base + 2 * (2 * r + 1) + c}, v{base + 2 * (2 * r) + c}, {sel}")
        self.label("L_sv_wskip")
        C("workgroup 0 / S2: once all 256 arrival flags are in, advance the epoch")
        A("s_cmp_lg_u32 s2, 0")
        A("s_cbranch_scc1 L_sv_noepw")
        A("s_cmp_lg_u32 s35, 2")
        A("s_cbranch_scc1 L_sv_noepw")
        A(f"v_add_u32 v6, {W_AR}, v4")
        A(f"s_mov_b32 s51, {self.poll_cap}")
        self.label("L_sv_epoll")
        A("global_load_dwordx4 v[16:19], v6, s[32:33] sc1")
        A("global_load_dwordx4 v[20:23], v6, s[32:33] offset:1024 sc1")
        A("s_waitcnt vmcnt(0)")
        for k in range(4):
            A(f"v_xor_b32 v{16 + 2 * k}, s92, v{16 + 2 * k}")
            A(f"v_xor_b32 v{17 + 2 * k}, s93, v{17 + 2 * k}")
        A("v_or3_b32 v16, v16, v17, v18")
        A("v_or3_b32 v16, v16, v19, v20")
        A("v_or3_b32 v16, v16, v21, v22")
        A("v_or_b32 v16, v16, v23")
        A("v_cmp_ne_u32 vcc, 0, v16")
        A("s_cbranch_vccz L_sv_eok")
        A("s_sleep 16")
        A("s_sub_u32 s51, s51, 1")
        A("s_cmp_lg_u32 s51, 0")
        A("s_cbranch_scc1 L_sv_epoll")
        self.label("L_sv_eok")
        A(f"v_mov_b32 v6, {W_EP}")
        A("v_mov_b32 v7, s93")
        A("s_mov_b64 exec, 1")
        A("global_store_dword v6, v7, s[32:33] offset:4 sc1")
        A("s_mov_b64 exec, -1")
        self.label("L_sv_noepw")
        A("s_cmp_lg_u32 s35, 0")
        A("s_cbranch_scc1 L_sv_tail")
        C("---- S0: softmax stats, exchange, P ----")
        self.stamp(4)
        self.lds_spin(5, 8, 4, 12, 50)
        self.stamp(5)
        A("v_lshlrev_b32 v6, 6, v0")
        for k in range(4):
            A(f"ds_read_b128 v[{48 + 4 * k}:{48 + 4 * k + 3}], v6 offset:{L_SC + 16 * k}")
        A("s_lshl_b32 s48, s7, 7")
        A(f"s_add_u32 s48, s48, {W_ST}")
        self.srd(44, 32, 64, 48)
        A("s_mov_b32 s50, 0x3db8aa3b")
        A("s_waitcnt lgkmcnt(0)")
        H0, H1 = 16, 32
        for k in range(16):
            A(f"v_lshlrev_b32 v{H0 + k}, 16, v{48 + k}")
            A(f"v_and_b32 v{H1 + k}, 0xffff0000, v{48 + k}")
        for h, base in ((0, H0), (1, H1)):
            m = 8 + h
            A(f"v_max3_f32 v{m}, v{base}, v{base + 1}, v{base + 2}")
            for k in range(3, 15, 2):
                A(f"v_max3_f32 v{m}, v{m}, v{base + k}, v{base + k + 1}")
            A(f"v_max_f32 v{m}, v{m}, v{base + 15}")
        self.allreduce("max", [8, 9], [12, 13])
        for h, base in ((0, H0), (1, H1)):
            m = 8 + h
            sreg = 10 + h
            for k in range(16):
                A(f"v_sub_f32 v{48 + k}, v{base + k}, v{m}")
            for k in range(16):
                A(f"v_mul_f32 v{48 + k}, s50, v{48 + k}")
            for k in range(16):
                A(f"v_exp_f32 v{48 + k}, v{48 + k}")
            A("s_nop 0")
            A(f"v_add_f32 v{sreg}, v48, v49")
            for k in range(2, 16):
                A(f"v_add_f32 v{sreg}, v{sreg}, v{48 + k}")
        self.allreduce("add", [10, 11], [12, 13])
        C("publish (m0, m1, l0, l1) = v8..v11")
        for k in range(4):
            A(f"v_min_u32 v{8 + k}, -2, v{8 + k}")
        A("s_lshl_b32 s48, s6, 4")
        A("v_mov_b32 v7, 0")
        A("s_mov_b64 exec, 1")
        A("buffer_store_dwordx4 v[8:11], v7, s[44:47], s48 offen sc1")
        A("s_mov_b64 exec, -1")
        lds = [f"buffer_load_dwordx4 v[{48 + 4 * cc}:{48 + 4 * cc + 3}], v7, s[44:47], 0 offen offset:{16 * cc} sc1" for cc in range(4)]
        C("the 32 workgroups of this batch must have cleared their slots before any slot is polled")
        A("s_lshl_b32 s48, s4, 8")
        A(f"s_add_u32 s48, s48, {W_AR}")
        A("v_and_b32 v12, 31, v0")
        A("v_lshl_add_u32 v12, v12, 3, s48")
        A(f"s_mov_b32 s51, {self.poll_cap}")
        self.label("L_sv_apoll")
        A("global_load_dwordx2 v[14:15], v12, s[32:33] sc1")
        A("s_waitcnt vmcnt(0)")
        A("v_xor_b32 v14, s92, v14")
        A("v_xor_b32 v15, s93, v15")
        A("v_or_b32 v14, v14, v15")
        A("v_cmp_ne_u32 vcc, 0, v14")
        A("s_cbranch_vccz L_sv_aok")
        A("s_sleep 8")
        A("s_sub_u32 s51, s51, 1")
        A("s_cmp_lg_u32 s51, 0")
        A("s_cbranch_scc1 L_sv_apoll")
        self.label("L_sv_aok")
        if self.margin:
            self.lds_spin(5, 20, 1, 12, 51)
        self.poll_sentinel(lds, [48 + i for i in range(16)], 12, 51, retry_sleep=self.ssleep)
        self.stamp(6)
        for h in range(2):
            A(f"v_max3_f32 v{8 + h}, v{48 + h}, v{52 + h}, v{56 + h}")
            A(f"v_max_f32 v{8 + h}, v{8 + h}, v{60 + h}")
        for h in range(2):
            for cc in range(4):
                A(f"v_sub_f32 v{48 + 4 * cc + h}, v{48 + 4 * cc + h}, v{8 + h}")
                A(f"v_mul_f32 v{48 + 4 * cc + h}, s50, v{48 + 4 * cc + h}")
                A(f"v_exp_f32 v{48 + 4 * cc + h}, v{48 + 4 * cc + h}")
            A("s_nop 0")
            A(f"v_mul_f32 v{10 + h}, v{48 + h}, v{50 + h}")
            for cc in range(1, 4):
                A(f"v_fmac_f32 v{10 + h}, v{48 + 4 * cc + h}, v{50 + 4 * cc + h}")
            A(f"v_rcp_f32 v{10 + h}, v{10 + h}")
        for h, base in ((0, H0), (1, H1)):
            for k in range(16):
                A(f"v_sub_f32 v{base + k}, v{base + k}, v{8 + h}")
            for k in range(16):
                A(f"v_mul_f32 v{base + k}, s50, v{base + k}")
            for k in range(16):
                A(f"v_exp_f32 v{base + k}, v{base + k}")
            A("s_nop 0")
            for k in range(16):
                A(f"v_mul_f32 v{base + k}, v{base + k}, v{10 + h}")
            for par in range(2):
                for d in range(4):
                    A(f"v_cvt_pk_bf16_f32 v{48 + h * 8 + par * 4 + d}, v{base + 4 * d + par}, v{base + 4 * d + 2 + par}")
        for k in range(4):
            A(f"ds_write_b128 v6, v[{48 + 4 * k}:{48 + 4 * k + 3}] offset:{L_P + 16 * k}")
        A("v_mov_b32 v7, 1")
        A("s_waitcnt lgkmcnt(0)")
        A("ds_write_b32 v5, v7 offset:12")
        self.stamp(7)
        if self.dyn:
            C("publish the pool part of P, then gather the cluster's pool P into LDS")
            NPL = 16 - self.RS
            self.pp_addr(6, 48)
            for k in range(16):
                A(f"v_min_u32 v{48 + k}, -2, v{48 + k}")
            A("s_mov_b64 exec, s[50:51]")
            for k in range(4):
                A(f"global_store_dwordx4 v6, v[{48 + 4 * k}:{48 + 4 * k + 3}], s[32:33] offset:{16 * k} sc1")
            A("s_mov_b64 exec, -1")
            A("s_lshl_b32 s48, s7, 13")
            A(f"s_add_u32 s48, s48, {W_PP}")
            self.srd(44, 32, 8192, 48)
            A("s_mov_b32 s48, 4096")
            self.lds_spin(5, 28, 1, 12, 50)
            lds = [f"buffer_load_dwordx4 v[{16 + 4 * k}:{16 + 4 * k + 3}], v4, s[44:47], {'0' if k < 4 else 's48'} offen offset:{1024 * (k & 3)} sc1" for k in range(NPL)]
            self.poll_sentinel(lds, [16 + i for i in range(4 * NPL)], 12, 51, retry_sleep=self.ssleep)
            for k in range(NPL):
                A(f"ds_write_b128 v4, v[{16 + 4 * k}:{16 + 4 * k + 3}] offset:{L_PP + 1024 * k}")
            A("v_mov_b32 v7, 1")
            A("s_waitcnt lgkmcnt(0)")
            A("ds_write_b32 v5, v7 offset:24")
        C("preload x row b (for h) and b2")
        self.srd(36, 8, 8 * 896)
        A("s_mul_i32 s48, s4, 896")
        A("buffer_load_dwordx4 v[56:59], v4, s[36:39], s48 offen")
        self.srd(36, 26, 896)
        A("v_and_b32 v7, 3, v0")
        A("v_lshlrev_b32 v7, 3, v7")
        A("s_max_i32 s48, s34, 0")
        A("s_lshl_b32 s48, s48, 5")
        A("buffer_load_dwordx2 v[60:61], v7, s[36:39], s48 offen")
        self.label("L_sv_tail")
        C("---- tail ----")
        A("v_lshlrev_b32 v6, 4, v3")
        A("s_lshl_b32 s48, s35, 8")
        A("v_add_u32 v6, s48, v6")
        A("s_barrier")
        A("s_barrier")
        for kk in range(4):
            A(f"ds_read_b128 v[{ST + 4 * kk}:{ST + 4 * kk + 3}], v6 offset:{L_O + 64 * kk}")
        A("s_lshl_b32 s48, s35, 9")
        A("v_lshl_add_u32 v7, v2, 5, s48")
        DT = 24
        accs = [32, 36, 40, 44, 48, 52, 8, 12]
        for kk in range(4):
            A(f"s_waitcnt lgkmcnt({3 - kk})")
            for t in range(8):
                d = accs[t]
                fr = WO + kk * 32 + t * 4
                c = "0" if kk == 0 else f"v[{d}:{d + 3}]"
                A(f"v_mfma_f32_16x16x32_bf16 v[{d}:{d + 3}], v[{ST + 4 * kk}:{ST + 4 * kk + 3}], v[{fr}:{fr + 3}], {c}")
        A("s_nop 1")
        for t in range(8):
            A(f"v_mov_b32 v{ST + t}, v{accs[t]}")
        A(f"ds_write_b128 v7, v[{ST}:{ST + 3}] offset:{L_T1}")
        A(f"ds_write_b128 v7, v[{ST + 4}:{ST + 7}] offset:{L_T1 + 16}")
        A("s_waitcnt lgkmcnt(0)")
        A("s_barrier")
        A("s_cmp_lg_u32 s35, 0")
        A("s_cbranch_scc1 L_sv_skip2")
        self.stamp(8)
        C("S0: P4: lanes<28: sum 4 waves, publish AP[b][hkv][112c + 4l]")
        for w in range(4):
            A(f"ds_read_b128 v[{ST + 4 * w}:{ST + 4 * w + 3}], v4 offset:{L_T1 + 512 * w}")
        A("s_mul_i32 s48, s4, 14336")
        A(f"s_add_u32 s48, s48, {W_AP}")
        self.srd(44, 32, 14336, 48)
        A("s_mul_i32 s48, s5, 1792")
        A("s_lshl_b32 s49, s6, 9")
        A("s_add_u32 s48, s48, s49")
        A("s_cmp_eq_u32 s6, 3")
        A("s_cselect_b32 s50, 0xffff, -1")
        A("s_mov_b32 s51, 0")
        A("v_lshlrev_b32 v7, 5, v0")
        A("s_waitcnt lgkmcnt(0)")
        for e in range(4):
            A(f"v_add_f32 v{ST + e}, v{ST + e}, v{ST + 4 + e}")
            A(f"v_add_f32 v{ST + 8 + e}, v{ST + 8 + e}, v{ST + 12 + e}")
        for e in range(4):
            A(f"v_add_f32 v{ST + e}, v{ST + e}, v{ST + 8 + e}")
        for e in range(4):
            A(f"v_min_u32 v{ST + e}, -2, v{ST + e}")
        A("s_mov_b64 exec, s[50:51]")
        A(f"buffer_store_dwordx4 v[{ST}:{ST + 3}], v4, s[44:47], s48 offen sc1")
        C("P5: lanes<56: gather AP[b][h'][8l..8l+8] (wo frags are dead now)")
        A("s_mov_b64 exec, s[52:53]")
        G = WO
        for hh in range(1, 4):
            A(f"s_mov_b32 s{40 + hh}, {hh * 3584}")
        lds = []
        for hh in range(8):
            so = "0" if hh < 2 else f"s{40 + hh // 2}"
            for u in range(2):
                r = G + hh * 8 + u * 4
                lds.append(f"buffer_load_dwordx4 v[{r}:{r + 3}], v7, s[44:47], {so} offen offset:{(hh & 1) * 1792 + 16 * u} sc1")
        self.poll_sentinel(lds, [G + i for i in range(64)], 12, 51, retry_sleep=self.tsleep)
        A("s_mov_b64 exec, -1")
        self.stamp(9)
        for e in range(8):
            for hh in range(0, 8, 2):
                A(f"v_add_f32 v{G + hh * 8 + e}, v{G + hh * 8 + e}, v{G + hh * 8 + 8 + e}")
        for e in range(8):
            A(f"v_add_f32 v{G + e}, v{G + e}, v{G + 16 + e}")
            A(f"v_add_f32 v{G + 32 + e}, v{G + 32 + e}, v{G + 48 + e}")
        for e in range(8):
            A(f"v_add_f32 v{G + e}, v{G + e}, v{G + 32 + e}")
        for e in range(4):
            A(f"v_cvt_pk_bf16_f32 v{ST + e}, v{G + 2 * e}, v{G + 2 * e + 1}")
        self.unpack8(ST, G)
        self.unpack8(56, G + 8)
        for e in range(8):
            A(f"v_add_f32 v{G + e}, v{G + e}, v{G + 8 + e}")
        for e in range(4):
            A(f"v_cvt_pk_bf16_f32 v{ST + e}, v{G + 2 * e}, v{G + 2 * e + 1}")
        self.unpack8(ST, G)
        self.layernorm([([G + e for e in range(8)], ST)], 52, G + 16)
        A("s_mov_b64 exec, s[52:53]")
        A(f"ds_write_b128 v4, v[{ST}:{ST + 3}] offset:{L_HN}")
        A(f"ds_write_b128 v7, v[{G}:{G + 3}] offset:{L_H}")
        A(f"ds_write_b128 v7, v[{G + 4}:{G + 7}] offset:{L_H + 16}")
        A("s_mov_b64 exec, -1")
        A("s_waitcnt lgkmcnt(0)")
        self.label("L_sv_skip2")
        A("s_barrier")
        C("T2a: ksteps s, s+4, s+8, s+12")
        A("v_lshlrev_b32 v6, 4, v3")
        A("s_lshl_b32 s48, s35, 6")
        A("v_add_u32 v6, s48, v6")
        for kk in range(4):
            A(f"ds_read_b128 v[{ST + 4 * kk}:{ST + 4 * kk + 3}], v6 offset:{L_HN + 256 * kk}")
        A("s_lshl_b32 s48, s35, 8")
        A("v_lshl_add_u32 v7, v2, 4, s48")
        for kk in range(4):
            A(f"s_waitcnt lgkmcnt({3 - kk})")
            for t in range(4):
                d = 32 + 4 * t
                fr = W1 + kk * 16 + t * 4
                c = "0" if kk == 0 else f"v[{d}:{d + 3}]"
                A(f"v_mfma_f32_16x16x32_bf16 v[{d}:{d + 3}], v[{ST + 4 * kk}:{ST + 4 * kk + 3}], v[{fr}:{fr + 3}], {c}")
        A("s_nop 5")
        for t in range(4):
            A(f"v_mov_b32 v{ST + t}, v{32 + 4 * t}")
        A(f"ds_write_b128 v7, v[{ST}:{ST + 3}] offset:{L_R1}")
        A("s_waitcnt lgkmcnt(0)")
        A("s_barrier")
        A("s_cmp_lg_u32 s35, 0")
        A("s_cbranch_scc1 L_end")
        self.stamp(10)
        A("s_cmp_lt_i32 s34, 0")
        A("s_cbranch_scc1 L_sv_fin")
        C("P8: final reduce: FP[b][src][16f + 4q]; lane l: src = l>>2 (+16), q = l&3")
        A("s_mul_i32 s48, s4, 57344")
        A(f"s_add_u32 s48, s48, {W_FP}")
        self.srd(44, 32, 28 * 1792, 48)
        A("v_lshrrev_b32 v6, 2, v0")
        A("v_mul_u32_u24 v6, 1792, v6")
        A("v_and_b32 v7, 3, v0")
        A("v_lshl_add_u32 v6, v7, 4, v6")
        A("s_lshl_b32 s48, s34, 6")
        A(f"s_add_u32 s49, s48, {16 * 1792}")
        A("v_lshl_add_u32 v8, v7, 4, s48")
        A(f"ds_read_b128 v[40:43], v8 offset:{L_H}")
        self.srd(36, 28, 7168)
        lds = [f"buffer_load_dwordx4 v[{ST}:{ST + 3}], v6, s[44:47], s48 offen sc1",
               f"buffer_load_dwordx4 v[{ST + 4}:{ST + 7}], v6, s[44:47], s49 offen sc1"]
        self.poll_sentinel(lds, [ST + i for i in range(8)], 12, 51)
        self.stamp(11)
        for e in range(4):
            A(f"v_add_f32 v{ST + e}, v{ST + e}, v{ST + 4 + e}")
        for ctrl in ("row_ror:4", "row_ror:8"):
            A("s_nop 1")
            for e in range(4):
                A(f"v_add_f32_dpp v{ST + e}, v{ST + e}, v{ST + e} {ctrl} row_mask:0xf bank_mask:0xf")
        for sw in ("v_permlane16_swap_b32", "v_permlane32_swap_b32"):
            for e in range(4):
                A(f"v_mov_b32 v{ST + 4 + e}, v{ST + e}")
            A("s_nop 1")
            for e in range(4):
                A(f"{sw} v{ST + e}, v{ST + 4 + e}")
            A("s_nop 1")
            for e in range(4):
                A(f"v_add_f32 v{ST + e}, v{ST + e}, v{ST + 4 + e}")
        A(f"v_cvt_pk_bf16_f32 v{ST + 4}, v{ST}, v{ST + 1}")
        A(f"v_cvt_pk_bf16_f32 v{ST + 5}, v{ST + 2}, v{ST + 3}")
        for e in range(2):
            A(f"v_lshlrev_b32 v{ST + 2 * e}, 16, v{ST + 4 + e}")
            A(f"v_and_b32 v{ST + 2 * e + 1}, 0xffff0000, v{ST + 4 + e}")
            A(f"v_lshlrev_b32 v{32 + 2 * e}, 16, v{60 + e}")
            A(f"v_and_b32 v{32 + 2 * e + 1}, 0xffff0000, v{60 + e}")
        for e in range(4):
            A(f"v_add_f32 v{ST + e}, v{ST + e}, v{32 + e}")
        A(f"v_cvt_pk_bf16_f32 v{ST + 4}, v{ST}, v{ST + 1}")
        A(f"v_cvt_pk_bf16_f32 v{ST + 5}, v{ST + 2}, v{ST + 3}")
        for e in range(2):
            A(f"v_lshlrev_b32 v{ST + 2 * e}, 16, v{ST + 4 + e}")
            A(f"v_and_b32 v{ST + 2 * e + 1}, 0xffff0000, v{ST + 4 + e}")
        A("s_waitcnt lgkmcnt(0)")
        for e in range(4):
            A(f"v_add_f32 v{ST + e}, v{ST + e}, v{40 + e}")
        A(f"v_cvt_pk_bf16_f32 v{ST + 4}, v{ST}, v{ST + 1}")
        A(f"v_cvt_pk_bf16_f32 v{ST + 5}, v{ST + 2}, v{ST + 3}")
        A("v_lshlrev_b32 v7, 3, v7")
        A("s_mul_i32 s48, s4, 896")
        A("s_lshl_b32 s49, s34, 5")
        A("s_add_u32 s48, s48, s49")
        A("s_mov_b64 exec, 0xf")
        A(f"buffer_store_dwordx2 v[{ST + 4}:{ST + 5}], v7, s[36:39], s48 offen")
        A("s_mov_b64 exec, -1")
        self.label("L_sv_fin")
        self.stamp(12)
        self.dump_stamps(13, 8)


if __name__ == "__main__":
    import argparse
    ap = argparse.ArgumentParser()
    ap.add_argument("-o", default=f"cdna_kernels/{NAME}.s")
    ap.add_argument("--D", type=int, default=5)
    ap.add_argument("--R", type=int, default=42)
    ap.add_argument("--stamps", action="store_true")
    ap.add_argument("--wnt", default="")
    ap.add_argument("--knt", default="nt")
    ap.add_argument("--nowdelay", action="store_true")
    ap.add_argument("--qnt", default="nt")
    ap.add_argument("--wd", type=int, default=8)
    ap.add_argument("--now", type=int, default=0)
    ap.add_argument("--DV", type=int, default=0)
    ap.add_argument("--wsoff", type=lambda x: int(x, 0), default=0)
    ap.add_argument("--qsleep", type=int, default=0)
    ap.add_argument("--ssleep", type=int, default=0)
    ap.add_argument("--DE", type=int, default=0)
    ap.add_argument("--tsleep", type=int, default=0)
    ap.add_argument("--margin", type=int, default=12)
    ap.add_argument("--w2pos", type=int, default=8)
    ap.add_argument("--yrot", type=int, default=0)
    ap.add_argument("--ilv", type=int, default=0)
    ap.add_argument("--RS", type=int, default=16)
    ap.add_argument("--kmargin", type=int, default=18)
    ap.add_argument("--cap", type=int, default=200000)
    ap.add_argument("--Dh", type=int, default=0)
    ap.add_argument("--cmap", type=int, default=0)
    ap.add_argument("--vnt", default=None)
    ap.add_argument("--NE", type=int, default=0)
    a = ap.parse_args()
    g = Gen(D=a.D, R=a.R, stamps=a.stamps, wnt=a.wnt, knt=a.knt, wdelay=not a.nowdelay, qnt=a.qnt, wd=a.wd, now=a.now, DV=a.DV, wsoff=a.wsoff, qsleep=a.qsleep, ssleep=a.ssleep, DE=a.DE, NE=a.NE, tsleep=a.tsleep, margin=a.margin, w2pos=a.w2pos, yrot=a.yrot, ilv=a.ilv, RS=a.RS, kmargin=a.kmargin, poll_cap=a.cap, Dh=a.Dh, cmap=a.cmap, vnt=a.vnt)
    open(a.o, "w").write(g.build())
```

```python
import sys

NAME = "sequential_preLN__gqa_block_cached__dense_activation_squared_relu__decode"

HEADER = """; Kernarg layout for this problem (104 bytes, ptrs only, base s[0:1]):
"""

L_XN = 0x0000
L_Q = 0x1C00
L_SC = 0x2000
L_SCD = 0x3000
L_P = 0x4000
L_ZERO = 0x5000
L_ACC = 0x6000
L_O = 0x8000
L_T1 = 0x8400
L_HN = 0x8C00
L_H = 0x9000
L_R1 = 0x9800
L_H1 = 0x9C00
L_FLAG = 0x9E00
L_PP = 0xA000
LDS_BYTES = 0xC000

W_QG = 0x000000
W_QF = 0x072000
W_EP = 0x070000
W_AR = 0x071000
W_ST = 0x080000
W_OP = 0x090000
W_AP = 0x110000
W_FP = 0x130000
W_PP = 0x1A0000
W_TK = 0x230000
W_END = 0x380000
W_STAMP = 0x1000000


class Gen:
    def __init__(self, D=5, R=40, stamps=False, wnt="", knt="nt", poll_cap=200000, wdelay=True, wsleep=0, qnt="nt", wd=8, now=0, DV=None, wsoff=0, qsleep=0, ssleep=0, DE=0, NE=0, tsleep=0, margin=12, w2pos=8, yrot=0, ilv=0, RS=16, kmargin=18, Dh=0, cmap=0, vnt=None, eager=4, opst=""):
        self.L = []
        self.D = D
        self.R = R
        self.stamps = stamps
        self.wnt = wnt
        self.knt = knt
        self.poll_cap = poll_cap
        self.nlabel = 0
        self.wdelay = wdelay
        self.wsleep = wsleep
        self.qnt = qnt
        self.wd = wd
        self.now = now
        self.wsoff = wsoff
        self.qsleep = qsleep
        self.ssleep = ssleep
        self.DE = DE
        self.tsleep = tsleep
        self.margin = margin
        self.yrot = yrot
        self.ilv = ilv
        self.RS = RS
        self.kmargin = kmargin
        self.Dh = Dh
        self.cmap = cmap
        self.eager = eager
        self.opst = opst
        self.vnt = knt if vnt is None else vnt
        self.dyn = RS < 16
        if self.dyn:
            self.ilv = 1
        self.w2pos = w2pos
        self.NE = NE
        self.DV = DV if DV else D

    def A(self, s):
        self.L.append("    " + s)

    def C(self, s):
        self.L.append("    ; " + s)

    def label(self, name):
        self.L.append(name + ":")

    def newlabel(self, base):
        self.nlabel += 1
        return f"L_{base}_{self.nlabel}"

    def stamp(self, idx):
        if self.stamps:
            self.A(f"s_memrealtime s[{60 + 2 * idx}:{61 + 2 * idx}]")

    def dump_stamps(self, n, vbase):
        if not self.stamps:
            return
        A = self.A
        A("s_waitcnt lgkmcnt(0)")
        A("s_lshl_b32 s58, s99, 3")
        A("s_add_u32 s58, s58, s3")
        A("s_lshl_b32 s58, s58, 7")
        A(f"s_add_u32 s58, s58, {W_STAMP}")
        A("s_mov_b64 exec, 1")
        A(f"v_mov_b32 v{vbase}, s58")
        for i in range(n):
            A(f"v_mov_b32 v{vbase + 2}, s{60 + 2 * i}")
            A(f"v_mov_b32 v{vbase + 3}, s{61 + 2 * i}")
            A(f"global_store_dwordx2 v{vbase}, v[{vbase + 2}:{vbase + 3}], s[32:33] offset:{8 * i}")
            A("s_nop 1")
        A(f"v_mov_b32 v{vbase + 2}, s90")
        A(f"v_mov_b32 v{vbase + 3}, s91")
        A(f"global_store_dwordx2 v{vbase}, v[{vbase + 2}:{vbase + 3}], s[32:33] offset:120")
        A("s_mov_b64 exec, -1")

    def wsadj(self):
        if self.wsoff:
            self.A(f"s_add_u32 s32, s32, {self.wsoff}")
            self.A("s_addc_u32 s33, s33, 0")

    def pp_addr(self, v, st):
        A = self.A
        RS = self.RS
        A(f"v_lshrrev_b32 v{v}, 2, v0")
        A(f"v_subrev_u32 v{v}, {RS}, v{v}")
        A(f"v_lshlrev_b32 v{v}, 10, v{v}")
        A(f"v_and_b32 v{v + 1}, 3, v0")
        A(f"v_lshl_add_u32 v{v}, v{v + 1}, 6, v{v}")
        A(f"s_lshl_b32 s{st}, s7, 13")
        A(f"s_lshl_b32 s{st + 1}, s6, 8")
        A(f"s_add_u32 s{st}, s{st}, s{st + 1}")
        A(f"s_add_u32 s{st}, s{st}, {W_PP}")
        A(f"v_add_u32 v{v}, s{st}, v{v}")
        A(f"v_cmp_le_u32 s[50:51], {4 * RS}, v0")

    def epoch_load(self):
        self.A(f"s_load_dwordx2 s[92:93], s[32:33], {W_EP}")

    def srd(self, d, ptr, size, off_sgpr=None):
        A = self.A
        if off_sgpr is None:
            A(f"s_mov_b32 s{d}, s{ptr}")
            A(f"s_mov_b32 s{d + 1}, s{ptr + 1}")
        else:
            A(f"s_add_u32 s{d}, s{ptr}, s{off_sgpr}")
            A(f"s_addc_u32 s{d + 1}, s{ptr + 1}, 0")
        A(f"s_mov_b32 s{d + 2}, {size}")
        A(f"s_mov_b32 s{d + 3}, 0x20000")

    def allreduce(self, op, regs, tmps):
        A = self.A
        for ctrl in ("quad_perm:[1,0,3,2]", "quad_perm:[2,3,0,1]", "row_half_mirror", "row_mirror"):
            A("s_nop 1")
            for r in regs:
                A(f"v_{op}_f32_dpp v{r}, v{r}, v{r} {ctrl} row_mask:0xf bank_mask:0xf")
        for sw in ("v_permlane16_swap_b32", "v_permlane32_swap_b32"):
            for r, t in zip(regs, tmps):
                A(f"v_mov_b32 v{t}, v{r}")
            A("s_nop 1")
            for r, t in zip(regs, tmps):
                A(f"{sw} v{r}, v{t}")
            A("s_nop 1")
            for r, t in zip(regs, tmps):
                A(f"v_{op}_f32 v{r}, v{r}, v{t}")

    def lds_spin(self, vaddr, off, target, vtmp, stmp):
        A = self.A
        l = self.newlabel("spin")
        d = self.newlabel("spun")
        A(f"s_mov_b32 s59, {max(self.poll_cap * 20, 100000)}")
        self.label(l)
        A(f"ds_read_b32 v{vtmp}, v{vaddr} offset:{off}")
        A("s_waitcnt lgkmcnt(0)")
        A(f"v_readfirstlane_b32 s{stmp}, v{vtmp}")
        A("s_nop 0")
        A(f"s_cmp_eq_u32 s{stmp}, {target}")
        A(f"s_cbranch_scc1 {d}")
        A("s_sleep 1")
        A("s_sub_u32 s59, s59, 1")
        A("s_cmp_lg_u32 s59, 0")
        A(f"s_cbranch_scc1 {l}")
        self.label(d)

    def poll_sentinel(self, loads, regs, vtmp, scnt, sleep=0, retry_sleep=0, first_issued=False):
        A = self.A
        l = self.newlabel("poll")
        d = self.newlabel("polled")
        A(f"s_mov_b32 s{scnt}, {self.poll_cap}")
        if first_issued:
            l2 = self.newlabel("pollchk")
            A(f"s_branch {l2}")
        self.label(l)
        if sleep:
            A(f"s_sleep {sleep}")
        for s in loads:
            A(s)
        if first_issued:
            self.label(l2)
        A("s_waitcnt vmcnt(0)")
        A(f"v_max3_u32 v{vtmp}, v{regs[0]}, v{regs[1]}, v{regs[2]}")
        rest = regs[3:]
        while len(rest) >= 2:
            A(f"v_max3_u32 v{vtmp}, v{vtmp}, v{rest[0]}, v{rest[1]}")
            rest = rest[2:]
        if rest:
            A(f"v_max_u32 v{vtmp}, v{vtmp}, v{rest[0]}")
        A(f"v_cmp_eq_u32 vcc, -1, v{vtmp}")
        A(f"s_cbranch_vccz {d}")
        if retry_sleep:
            A(f"s_sleep {retry_sleep}")
        A(f"s_sub_u32 s{scnt}, s{scnt}, 1")
        A(f"s_cmp_lg_u32 s{scnt}, 0")
        A(f"s_cbranch_scc1 {l}")
        self.label(d)

    def layernorm(self, rows, smask, t):
        A = self.A
        n = len(rows)
        S = [t + i for i in range(n)]
        T = [t + n + i for i in range(n)]
        M = [t + 2 * n + i for i in range(n)]
        DD = t + 3 * n
        for k, (x, o) in enumerate(rows):
            A(f"v_add_f32 v{S[k]}, v{x[0]}, v{x[1]}")
            for e in range(2, 8):
                A(f"v_add_f32 v{S[k]}, v{S[k]}, v{x[e]}")
            A(f"v_cndmask_b32 v{S[k]}, 0, v{S[k]}, s[{smask}:{smask + 1}]")
        self.allreduce("add", S, T)
        for k, (x, o) in enumerate(rows):
            A(f"v_mul_f32 v{M[k]}, 0x3b124925, v{S[k]}")
        for k, (x, o) in enumerate(rows):
            for e in range(8):
                A(f"v_sub_f32 v{DD + e}, v{x[e]}, v{M[k]}")
            A(f"v_mul_f32 v{S[k]}, v{DD}, v{DD}")
            for e in range(1, 8):
                A(f"v_fmac_f32 v{S[k]}, v{DD + e}, v{DD + e}")
            A(f"v_cndmask_b32 v{S[k]}, 0, v{S[k]}, s[{smask}:{smask + 1}]")
        self.allreduce("add", S, T)
        for k, (x, o) in enumerate(rows):
            A(f"v_mul_f32 v{S[k]}, 0x3b124925, v{S[k]}")
            A(f"v_cvt_pk_bf16_f32 v{T[k]}, v{M[k]}, v{S[k]}")
            A(f"v_lshlrev_b32 v{M[k]}, 16, v{T[k]}")
            A(f"v_and_b32 v{S[k]}, 0xffff0000, v{T[k]}")
            A(f"v_add_f32 v{S[k]}, 0x3727c5ac, v{S[k]}")
            A(f"v_cvt_pk_bf16_f32 v{S[k]}, v{S[k]}, v{S[k]}")
            A(f"v_lshlrev_b32 v{S[k]}, 16, v{S[k]}")
            A(f"v_sqrt_f32 v{S[k]}, v{S[k]}")
            A("s_nop 0")
            A(f"v_cvt_pk_bf16_f32 v{S[k]}, v{S[k]}, v{S[k]}")
            A(f"v_lshlrev_b32 v{S[k]}, 16, v{S[k]}")
            A(f"v_rcp_f32 v{S[k]}, v{S[k]}")
            for e in range(8):
                A(f"v_sub_f32 v{DD + e}, v{x[e]}, v{M[k]}")
            for e in range(4):
                A(f"v_cvt_pk_bf16_f32 v{o + e}, v{DD + 2 * e}, v{DD + 2 * e + 1}")
            for e in range(4):
                A(f"v_lshlrev_b32 v{DD + 2 * e}, 16, v{o + e}")
                A(f"v_and_b32 v{DD + 2 * e + 1}, 0xffff0000, v{o + e}")
            for e in range(8):
                A(f"v_mul_f32 v{DD + e}, v{DD + e}, v{S[k]}")
            for e in range(4):
                A(f"v_cvt_pk_bf16_f32 v{o + e}, v{DD + 2 * e}, v{DD + 2 * e + 1}")

    def unpack8(self, src, dst):
        for e in range(4):
            self.A(f"v_lshlrev_b32 v{dst + 2 * e}, 16, v{src + e}")
            self.A(f"v_and_b32 v{dst + 2 * e + 1}, 0xffff0000, v{src + e}")

    def build(self):
        A, C = self.A, self.C
        D, R = self.D, self.R
        self.L.append(HEADER.rstrip())
        self.L.append(f"; @launch grid=(256,1,1) block=(512,1,1) lds={LDS_BYTES}")
        self.L.append('.amdgcn_target "amdgcn-amd-amdhsa--gfx950"')
        self.L.append(".text")
        self.L.append(f".globl {NAME}_kernel")
        self.L.append(".p2align 8")
        self.L.append(f".type {NAME}_kernel,@function")
        self.label(f"{NAME}_kernel")
        A("s_cmp_ge_u32 s2, 256")
        A("s_cbranch_scc1 L_end")
        self.stamp(0)
        A("s_mov_b32 s99, s2")
        if self.yrot:
            A("s_xor_b32 s2, s2, 16")
        if self.stamps:
            A("s_getreg_b32 s90, hwreg(HW_REG_HW_ID)")
            A("s_getreg_b32 s91, hwreg(HW_REG_XCC_ID)")
        A("s_load_dwordx16 s[8:23], s[0:1], 0")
        A("s_load_dwordx8 s[24:31], s[0:1], 64")
        A("s_load_dwordx2 s[32:33], s[0:1], 96")
        A("v_lshrrev_b32 v1, 6, v0")
        A("v_and_b32 v0, 63, v0")
        A("v_readfirstlane_b32 s3, v1")
        C("decode wg -> b (s4), hkv (s5), c (s6), pair (s7), f = hkv*4+c (s34)")
        A("s_lshr_b32 s4, s2, 3")
        A("s_lshr_b32 s5, s4, 3")
        A("s_and_b32 s4, s4, 7")
        A("s_lshl_b32 s5, s5, 1")
        if self.cmap == 2:
            A("s_and_b32 s5, s2, 7")
            A("s_lshr_b32 s6, s2, 6")
        elif self.cmap:
            A("s_and_b32 s6, s2, 1")
            A("s_add_u32 s5, s5, s6")
            A("s_bfe_u32 s6, s2, 0x20001")
        else:
            A("s_bfe_u32 s6, s2, 0x10002")
            A("s_add_u32 s5, s5, s6")
            A("s_and_b32 s6, s2, 3")
        A("s_lshl_b32 s7, s4, 3")
        A("s_add_u32 s7, s7, s5")
        A("s_lshl_b32 s34, s6, 3")
        A("s_add_u32 s34, s34, s5")
        A("s_sub_u32 s34, s34, 4")
        A("s_mov_b32 s56, 0x05040100")
        A("s_mov_b32 s57, 0x07060302")
        A("v_and_b32 v2, 15, v0")
        A("v_lshrrev_b32 v3, 4, v0")
        A("s_cmp_ge_u32 s3, 4")
        A("s_cbranch_scc1 L_service")
        self.stream()
        self.service()
        self.label("L_end")
        A("s_endpgm")
        self.L.append('.section .rodata,"a"')
        self.L.append(".p2align 6")
        self.L.append(f".amdhsa_kernel {NAME}_kernel")
        self.L.append("  .amdhsa_next_free_vgpr 256")
        self.L.append("  .amdhsa_next_free_sgpr 102")
        self.L.append("  .amdhsa_accum_offset 256")
        self.L.append("  .amdhsa_group_segment_fixed_size 0")
        self.L.append("  .amdhsa_kernarg_size 104")
        self.L.append("  .amdhsa_user_sgpr_count 2")
        self.L.append("  .amdhsa_user_sgpr_kernarg_segment_ptr 1")
        self.L.append("  .amdhsa_system_sgpr_workgroup_id_x 1")
        self.L.append("  .amdhsa_float_denorm_mode_32 3")
        self.L.append(".end_amdhsa_kernel")
        return "\n".join(self.L) + "\n"

    def stream(self):
        A, C = self.A, self.C
        D, R = self.D, self.R
        C("================= stream waves (0..3) =================")
        vK, vV, vSC, vP, vFL, vW2, vT = 4, 5, 6, 7, 8, 9, 10
        QF = 16
        DK = 48
        ACC = 16
        TP = 48
        PF = 80
        RING = 88
        assert RING + 4 * R <= 256
        A("v_and_b32 v10, 7, v0")
        A("v_lshrrev_b32 v11, 3, v0")
        A("v_lshlrev_b32 v4, 9, v11")
        A("v_lshl_add_u32 v4, v10, 4, v4")
        A("s_lshl_b32 s35, s3, 12")
        A("v_add_u32 v4, s35, v4")
        A("v_lshlrev_b32 v5, 4, v0")
        A("s_lshl_b32 s35, s3, 13")
        A("v_add_u32 v5, s35, v5")
        A("s_lshl_b32 s35, s7, 21")
        A(f"s_lshl_b32 s36, s6, {15 if self.ilv else 19}")
        A("s_add_u32 s35, s35, s36")
        A("s_waitcnt lgkmcnt(0)")
        self.wsadj()
        ksz = 0x200000 - 3 * 32768 if self.ilv else 0x80000
        self.srd(36, 10, ksz, 35)
        self.srd(40, 12, ksz, 35)
        self.srd(44, 24, 1792 * 896)
        loads = []
        for nb in range(32):
            for j in range(4):
                loads.append(("K", nb, j))
        RS = self.RS
        NP = (16 - RS) * 16
        vTK, vPM, vPB, vTA, vVL = 6, 12, 13, 14, 15
        for nu in range(RS):
            for i in range(8):
                loads.append(("V", nu, i))
            if nu in (self.w2pos, self.w2pos + 1):
                for i in range(8):
                    loads.append(("W", nu - self.w2pos, i))
        free = list(range(R))
        slot_of = {}
        order = []
        st = {"soff": None}

        def sreg(slot):
            return RING + 4 * slot

        def set_soff(val):
            if st["soff"] != val:
                A(f"s_mov_b32 s48, {val}")
                st["soff"] = val

        cur = {"D": D}

        cur["landed"] = -1

        def vmwait(n):
            idx = len(order) - n - 1
            if idx > cur["landed"]:
                A(f"s_waitcnt vmcnt({n})")
                cur["landed"] = idx

        def pace():
            d = cur["D"]
            if self.Dh and (len(order) & 1):
                d -= 1
            if len(order) >= d:
                vmwait(d - 1)

        def ticket(sd):
            A(f"s_mov_b32 s{sd}, 1")
            A(f"s_atomic_add s{sd}, s[94:95], 0 glc")

        def issue(ld):
            pace()
            slot = free.pop(0)
            slot_of[ld] = slot
            r = sreg(slot)
            kind, a, b = ld
            if kind == "K":
                set_soff(((a >> 1) * 131072 + (a & 1) * 16384) if self.ilv else a * 16384)
                A(f"buffer_load_dwordx4 v[{r}:{r + 3}], v{vK}, s[36:39], s48 offen offset:{b * 128} {self.knt}")
            elif kind == "V":
                set_soff(a * (131072 if self.ilv else 32768) + (b >> 2) * 4096)
                A(f"buffer_load_dwordx4 v[{r}:{r + 3}], v{vV}, s[40:43], s48 offen offset:{(b & 3) * 1024} {self.vnt}")
            elif kind == "W":
                A(f"s_add_u32 s48, s49, {(a * 32 + (b & 4)) * 896}")
                st["soff"] = None
                A("s_mov_b64 exec, s[52:53]")
                A(f"buffer_load_dwordx4 v[{r}:{r + 3}], v{vW2}, s[44:47], s48 offen offset:{(b & 3) * 896} {self.wnt}")
                A("s_mov_b64 exec, -1")
            order.append(ld)

        def waitfor(ld):
            vmwait(len(order) - 1 - order.index(ld))

        nxt = [0]

        def issue_next(k=1):
            for _ in range(k):
                if nxt[0] < len(loads) and free:
                    issue(loads[nxt[0]])
                    nxt[0] += 1

        issue_next(D)
        C("score write address: L_SC + (wave*8 + (l>>3))*4")
        A("s_lshl_b32 s35, s3, 5")
        A("v_lshrrev_b32 v10, 3, v0")
        A(f"v_lshl_add_u32 v{vSC}, v10, 2, s35")
        C("P frag address: combo = rho>>2 = 2*half+h ; active iff (g&1)==half")
        A("v_lshrrev_b32 v10, 2, v2")
        A("v_and_b32 v11, 1, v10")
        A("v_lshrrev_b32 v12, 1, v10")
        A("v_and_b32 v13, 1, v3")
        A("v_lshrrev_b32 v14, 1, v3")
        A("v_lshlrev_b32 v11, 5, v11")
        A("v_lshl_add_u32 v11, v14, 4, v11")
        A("s_lshl_b32 s35, s3, 6")
        A(f"s_add_u32 s35, s35, {L_P}")
        A(f"v_add_u32 v11, s35, v11")
        A(f"v_mov_b32 v10, {L_ZERO}")
        A("v_cmp_eq_u32 vcc, v12, v13")
        A("s_nop 1")
        A(f"v_cndmask_b32 v{vP}, v10, v11, vcc")
        A(f"v_mov_b32 v{vFL}, {L_FLAG}")
        C("w2 lane offset: g*8*896 + wave*256 + j*16 ; s49 = f*56*896")
        A(f"v_mul_u32_u24 v{vW2}, {8 * 896}, v3")
        A(f"v_lshl_add_u32 v{vW2}, v2, 4, v{vW2}")
        A("s_lshl_b32 s35, s3, 8")
        A(f"v_add_u32 v{vW2}, s35, v{vW2}")
        A(f"s_max_i32 s49, s34, 0")
        A(f"s_mul_i32 s49, s49, {64 * 896}")
        C("exec mask for the w2 loads: wave 3 covers only 64 columns; no FFN slice -> skip via 0-size SRD")
        A("s_mov_b64 s[52:53], -1")
        A("s_cmp_eq_u32 s3, 3")
        A("s_cselect_b32 s52, 0x00ff00ff, s52")
        A("s_cselect_b32 s53, 0x00ff00ff, s53")
        A("s_cmp_lt_i32 s34, 0")
        A("s_cselect_b32 s46, 0, s46")
        A("v_and_b32 v10, 7, v0")
        A("v_lshlrev_b32 v15, 4, v10")
        A("s_barrier")
        M = self.margin

        def progress_flag(off):
            A("v_mov_b32 v10, 1")
            A(f"ds_write_b32 v{vFL}, v10 offset:{off}")

        issue_next(R - self.kmargin - D)
        progress_flag(16)
        issue_next(R)
        self.stamp(1)
        self.lds_spin(vFL, 4, 1, 10, 50)
        self.stamp(2)
        for j in range(4):
            for h in range(2):
                r = QF + 8 * j + 4 * h
                A(f"ds_read_b128 v[{r}:{r + 3}], v15 offset:{L_Q + 512 * h + 128 * j}")
        A("s_waitcnt lgkmcnt(0)")

        def k_post(nb):
            d = DK + 2 * (nb & 1)
            for ctrl in ("quad_perm:[1,0,3,2]", "quad_perm:[2,3,0,1]", "row_half_mirror"):
                for h in range(2):
                    A(f"v_add_f32_dpp v{d + h}, v{d + h}, v{d + h} {ctrl} row_mask:0xf bank_mask:0xf")
                A("s_nop 0")
            A(f"v_cvt_pk_bf16_f32 v10, v{d}, v{d + 1}")
            A(f"ds_write_b32 v{vSC}, v10 offset:{L_SC + nb * 128}")

        since = [0]
        eager = [self.eager]

        def feed(e, ratio):
            want = e + 1 + cur["D"]
            if nxt[0] < want:
                issue_next(want - nxt[0])
                since[0] = 0
            else:
                since[0] += 1
                if since[0] >= ratio or eager[0] > 0:
                    n0 = nxt[0]
                    issue_next(2 if eager[0] > 0 else 1)
                    eager[0] -= nxt[0] - n0
                    since[0] = 0

        for nb in range(32):
            d = DK + 2 * (nb & 1)
            for j in range(4):
                ld = ("K", nb, j)
                feed(loads.index(ld), 3)
                waitfor(ld)
                r = sreg(slot_of[ld])
                for e in range(4):
                    for h in range(2):
                        c = "0" if (j == 0 and e == 0) else f"v{d + h}"
                        A(f"v_dot2_f32_bf16 v{d + h}, v{r + e}, v{QF + 8 * j + 4 * h + e}, {c}")
                free.append(slot_of[ld])
                if j == 0 and nb > 0:
                    k_post(nb - 1)
        A("s_nop 3")
        k_post(31)
        A("v_mov_b32 v10, 1")
        A("s_waitcnt lgkmcnt(0)")
        A("s_mov_b64 exec, 1")
        A(f"ds_add_u32 v{vFL}, v10 offset:8")
        A("s_mov_b64 exec, -1")
        self.stamp(3)
        cur["D"] = D = self.DV
        issue_next(len(free) - M)
        progress_flag(20)
        issue_next(R)
        for r in range(32):
            A(f"v_mov_b32 v{ACC + r}, 0")
        self.stamp(4)
        self.lds_spin(vFL, 12, 1, 10, 50)
        self.stamp(5)
        A(f"ds_read_b32 v10, v{vFL} offset:32")
        A("s_waitcnt lgkmcnt(0)")
        A("v_readfirstlane_b32 s97, v10")
        A(f"ds_read_b128 v[{PF}:{PF + 3}], v{vP} offset:0")
        eager[0] = self.eager
        w2_frag = {}
        if self.dyn:
            C("dynamic-phase registers")
            A(f"v_cmp_gt_u32 vcc, {L_ZERO}, v{vP}")
            A("s_lshl_b32 s35, s3, 6")
            A(f"s_add_u32 s35, s35, {L_P}")
            A(f"v_cndmask_b32 v{vPM}, 0, -1, vcc")
            A(f"v_and_b32 v{vPB}, s35, v{vPM}")
            A(f"v_sub_u32 v{vPB}, v{vP}, v{vPB}")
            A("s_lshl_b32 s35, s7, 7")
            A(f"s_add_u32 s35, s35, {W_TK}")
            A("s_add_u32 s94, s32, s35")
            A("s_addc_u32 s95, s33, 0")
            A(f"v_lshlrev_b32 v{vVL}, 4, v0")
            A("s_lshl_b32 s35, s7, 21")
            self.srd(36, 12, 0x200000, 35)

        def pair(kind, a, r, dsts):
            l0, l1 = (kind, a, 2 * r), (kind, a, 2 * r + 1)
            feed(loads.index(l1), 2)
            waitfor(l1)
            s0, s1 = sreg(slot_of[l0]), sreg(slot_of[l1])
            for t in range(8):
                sel = "s56" if (t & 1) == 0 else "s57"
                A(f"v_perm_b32 v{dsts[t] + r}, v{s1 + (t >> 1)}, v{s0 + (t >> 1)}, {sel}")
            free.append(slot_of[l0])
            free.append(slot_of[l1])

        NST = RS - 1 if self.dyn else 16
        for nu in range(NST):
            if self.DE and nu >= 16 - self.NE:
                cur["D"] = self.DE
            if self.dyn and nu == RS - 4:
                progress_flag(28)
            if self.dyn and nu == RS - 2:
                ticket(96)
            pf = PF + 4 * (nu & 1)
            for r in range(4):
                pair("V", nu, r, [TP + 4 * t for t in range(8)])
            A("s_waitcnt lgkmcnt(0)")
            if nu + 1 < NST:
                pn = PF + 4 * ((nu + 1) & 1)
                A(f"ds_read_b128 v[{pn}:{pn + 3}], v{vP} offset:{(nu + 1) * 256}")
            for t in range(8):
                a = ACC + 4 * t
                A(f"v_mfma_f32_16x16x32_bf16 v[{a}:{a + 3}], v[{pf}:{pf + 3}], v[{TP + 4 * t}:{TP + 4 * t + 3}], v[{a}:{a + 3}]")
            if nu in (self.w2pos, self.w2pos + 1):
                a = nu - self.w2pos
                assert len(free) >= 8
                outs = [sreg(free.pop()) for _ in range(8)]
                for t in range(8):
                    w2_frag[(a, t)] = outs[t]
                for r in range(4):
                    pair("W", a, r, outs)
        if self.dyn:
            C("---- dynamic phase: units drawn from the cluster's pool ----")
            issue_next(16)
            assert nxt[0] == len(loads)
            sl = [sreg(slot_of[("V", RS - 1, i)]) for i in range(8)]
            self.stamp(9)
            self.lds_spin(vFL, 24, 1, 10, 50)
            self.stamp(10)
            A("s_mov_b32 s82, 0")
            A("s_mov_b32 s83, 0")
            A("s_lshl_b32 s54, s3, 6")
            A(f"s_add_u32 s54, s54, {L_P + (RS - 1) * 256}")
            self.label("L_dyn")
            A("s_mov_b32 s50, s96")
            A("s_add_u32 s82, s82, 1")
            A(f"v_and_b32 v10, s54, v{vPM}")
            A(f"v_add_u32 v10, v10, v{vPB}")
            A(f"ds_read_b128 v[{PF}:{PF + 3}], v10")
            ticket(96)
            A("s_lshl_b32 s54, s50, 6")
            A(f"s_add_u32 s54, s54, {L_PP}")
            A("s_lshl_b32 s48, s50, 13")
            A(f"s_add_u32 s48, s48, {RS * 131072}")
            A(f"s_cmp_lt_u32 s50, {NP}")
            A("s_cselect_b32 s48, s48, 0x7fff0000")
            A("s_cselect_b32 s55, 1, 0")
            A("s_add_u32 s51, s48, 4096")
            for r in range(4):
                A("s_waitcnt vmcnt(6)")
                s0, s1 = sl[2 * r], sl[2 * r + 1]
                for t in range(8):
                    sel = "s56" if (t & 1) == 0 else "s57"
                    A(f"v_perm_b32 v{TP + 4 * t + r}, v{s1 + (t >> 1)}, v{s0 + (t >> 1)}, {sel}")
                for i in (2 * r, 2 * r + 1):
                    so = "s48" if i < 4 else "s51"
                    A(f"buffer_load_dwordx4 v[{sl[i]}:{sl[i] + 3}], v{vVL}, s[36:39], {so} offen offset:{(i & 3) * 1024} {self.vnt}")
            A("s_waitcnt lgkmcnt(0)")
            for t in range(8):
                a = ACC + 4 * t
                A(f"v_mfma_f32_16x16x32_bf16 v[{a}:{a + 3}], v[{PF}:{PF + 3}], v[{TP + 4 * t}:{TP + 4 * t + 3}], v[{a}:{a + 3}]")
            A("s_cmp_eq_u32 s55, 1")
            A("s_cbranch_scc1 L_dyn")
        self.stamp(6)
        C("---- tail: write acc to LDS: lane (j,g): combo g, cols j*8..+8 -> [h][256] layout")
        A("v_and_b32 v10, 1, v3")
        A("v_lshrrev_b32 v11, 1, v3")
        A("v_lshlrev_b32 v10, 10, v10")
        A("v_lshl_add_u32 v10, v11, 9, v10")
        A("v_lshl_add_u32 v10, v2, 5, v10")
        A("s_lshl_b32 s35, s3, 11")
        A("v_add_u32 v10, s35, v10")
        A("s_nop 2")
        for t in range(8):
            A(f"v_mov_b32 v{TP + t}, v{ACC + 4 * t}")
        A(f"ds_write_b128 v10, v[{TP}:{TP + 3}] offset:{L_ACC}")
        A(f"ds_write_b128 v10, v[{TP + 4}:{TP + 7}] offset:{L_ACC + 16}")
        A("s_waitcnt lgkmcnt(0)")
        A("s_barrier")
        C("P1/P2: waves 0,1: lane t=wave*64+l handles cols 4t..4t+3")
        A("s_cmp_ge_u32 s3, 2")
        A("s_cbranch_scc1 L_st_skip1")
        A("s_lshl_b32 s35, s3, 10")
        A("v_lshl_add_u32 v10, v0, 4, s35")
        for w in range(4):
            A(f"ds_read_b128 v[{ACC + 4 * w}:{ACC + 4 * w + 3}], v10 offset:{L_ACC + 2048 * w}")
        A("s_lshl_b32 s35, s7, 13")
        A(f"s_add_u32 s35, s35, {W_OP}")
        self.srd(36, 32, 0x2000, 35)
        A("s_lshl_b32 s48, s6, 11")
        A("s_waitcnt lgkmcnt(0)")
        for e in range(4):
            A(f"v_add_f32 v{ACC + e}, v{ACC + e}, v{ACC + 4 + e}")
            A(f"v_add_f32 v{ACC + 8 + e}, v{ACC + 8 + e}, v{ACC + 12 + e}")
        for e in range(4):
            A(f"v_add_f32 v{ACC + e}, v{ACC + e}, v{ACC + 8 + e}")
        for e in range(4):
            A(f"v_min_u32 v{ACC + e}, -2, v{ACC + e}")
        A("s_cmp_lg_u32 s97, 0")
        A("s_cbranch_scc1 L_st_far")
        A(f"buffer_store_dwordx4 v[{ACC}:{ACC + 3}], v10, s[36:39], s48 offen {self.opst}")
        A("s_branch L_st_stored")
        self.label("L_st_far")
        A(f"buffer_store_dwordx4 v[{ACC}:{ACC + 3}], v10, s[36:39], s48 offen sc1")
        self.label("L_st_stored")
        A("v_add_u32 v11, 0x1000, v10")
        lds = []
        for cc in range(4):
            r = ACC + 16 + 4 * cc
            va = "v10" if cc < 2 else "v11"
            lds.append(f"buffer_load_dwordx4 v[{r}:{r + 3}], {va}, s[36:39], 0 offen offset:{(cc & 1) * 2048} sc1")
        self.poll_sentinel(lds, [ACC + 16 + i for i in range(16)], 12, 50, retry_sleep=self.tsleep)
        self.stamp(7)
        b = ACC + 16
        for e in range(4):
            A(f"v_add_f32 v{b + e}, v{b + e}, v{b + 4 + e}")
            A(f"v_add_f32 v{b + 8 + e}, v{b + 8 + e}, v{b + 12 + e}")
        for e in range(4):
            A(f"v_add_f32 v{b + e}, v{b + e}, v{b + 8 + e}")
        A(f"v_cvt_pk_bf16_f32 v12, v{b}, v{b + 1}")
        A(f"v_cvt_pk_bf16_f32 v13, v{b + 2}, v{b + 3}")
        A("v_lshrrev_b32 v10, 1, v10")
        A(f"ds_write_b64 v10, v[12:13] offset:{L_O}")
        A("s_waitcnt lgkmcnt(0)")
        self.label("L_st_skip1")
        A("s_barrier")
        C("b1 preload: lane k<56 b1[56f+k]")
        self.srd(36, 22, 1792 * 2)
        A("s_max_i32 s48, s34, 0")
        A("s_lshl_b32 s48, s48, 7")
        A("v_lshlrev_b32 v10, 1, v0")
        A("buffer_load_ushort v14, v10, s[36:39], s48 offen")
        A("s_barrier")
        A("s_barrier")
        A("s_barrier")
        A("s_cmp_lt_i32 s34, 0")
        A("s_cbranch_scc1 L_st_end")
        C("h1: lane k: sum R1[w][k], +b1, relu^2 -> private LDS row, then A frags")
        A("v_lshlrev_b32 v10, 2, v0")
        for w in range(4):
            A(f"ds_read_b32 v{ACC + w}, v10 offset:{L_R1 + 256 * w}")
        A("s_lshl_b32 s35, s3, 7")
        A(f"s_add_u32 s35, s35, {L_H1}")
        A("v_lshl_add_u32 v11, v0, 1, s35")
        A("v_lshl_add_u32 v12, v3, 4, s35")
        A("s_waitcnt vmcnt(0) lgkmcnt(0)")
        A(f"v_add_f32 v{ACC}, v{ACC}, v{ACC + 1}")
        A(f"v_add_f32 v{ACC + 2}, v{ACC + 2}, v{ACC + 3}")
        A(f"v_add_f32 v{ACC}, v{ACC}, v{ACC + 2}")
        A("v_lshlrev_b32 v14, 16, v14")
        A(f"v_cvt_pk_bf16_f32 v{ACC}, v{ACC}, v{ACC}")
        A(f"v_lshlrev_b32 v{ACC}, 16, v{ACC}")
        A(f"v_add_f32 v{ACC}, v{ACC}, v14")
        A(f"v_cvt_pk_bf16_f32 v{ACC}, v{ACC}, v{ACC}")
        A(f"v_lshlrev_b32 v{ACC}, 16, v{ACC}")
        A(f"v_max_f32 v{ACC}, 0, v{ACC}")
        A(f"v_mul_f32 v{ACC}, v{ACC}, v{ACC}")
        A(f"v_cvt_pk_bf16_f32 v{ACC}, v{ACC}, v{ACC}")
        A(f"ds_write_b16 v11, v{ACC}")
        A("s_waitcnt lgkmcnt(0)")
        A(f"ds_read_b128 v[{PF}:{PF + 3}], v12")
        A(f"ds_read_b128 v[{PF + 4}:{PF + 7}], v12 offset:64")
        C("FP[b][f] row: 448 f32")
        A("s_lshl_b32 s35, s4, 5")
        A("s_add_u32 s35, s35, s34")
        A("s_mul_i32 s35, s35, 1792")
        A(f"s_add_u32 s35, s35, {W_FP}")
        self.srd(36, 32, 1792, 35)
        A("s_lshl_b32 s35, s3, 9")
        A("v_lshl_add_u32 v10, v2, 5, s35")
        A("s_waitcnt lgkmcnt(0)")
        for a in range(2):
            for t in range(8):
                d = ACC + 4 * t
                fr = w2_frag[(a, t)]
                c = "0" if a == 0 else f"v[{d}:{d + 3}]"
                A(f"v_mfma_f32_16x16x32_bf16 v[{d}:{d + 3}], v[{PF + 4 * a}:{PF + 4 * a + 3}], v[{fr}:{fr + 3}], {c}")
        A("s_nop 1")
        for t in range(8):
            A(f"v_min_u32 v{TP + t}, -2, v{ACC + 4 * t}")
            if t < 7:
                pass
        A("s_mov_b64 exec, 0xffff")
        A(f"buffer_store_dwordx4 v[{TP}:{TP + 3}], v10, s[36:39], 0 offen sc1")
        A(f"buffer_store_dwordx4 v[{TP + 4}:{TP + 7}], v10, s[36:39], 0 offen offset:16 sc1")
        A("s_mov_b64 exec, -1")
        self.label("L_st_end")
        self.stamp(8)
        self.dump_stamps(12, 10)
        A("s_endpgm")

    def service(self):
        A, C = self.A, self.C
        self.label("L_service")
        C("================= service waves (4..7), s3 -> 0..3 in s35 =================")
        WO = 64
        W1 = 192
        ST = 16
        A("s_sub_u32 s35, s3, 4")
        A("v_cmp_gt_u32 s[52:53], 56, v0")
        A("v_lshlrev_b32 v4, 4, v0")
        A(f"v_mov_b32 v5, {L_FLAG}")
        A("v_mov_b32 v8, 0")
        A("v_mov_b32 v9, 0")
        A("v_mov_b32 v10, 0")
        A("v_mov_b32 v11, 0")
        A("s_waitcnt lgkmcnt(0)")
        self.wsadj()
        C("x rows 2s, 2s+1")
        self.srd(36, 8, 8 * 896)
        A("s_mul_i32 s48, s35, 1792")
        self.epoch_load()
        A(f"buffer_load_dwordx4 v[{ST}:{ST + 3}], v4, s[36:39], s48 offen")
        A(f"buffer_load_dwordx4 v[{ST + 4}:{ST + 7}], v4, s[36:39], s48 offen offset:896")
        A("s_cmp_lg_u32 s35, 0")
        A("s_cbranch_scc1 L_sv_nowq")
        C("S0: wq loads into WO area (free for now): 56 x dword; n16 = (wg&7)*32 + (wg>>3) in s54")
        self.srd(40, 14, 448 * 8192)
        A("s_and_b32 s54, s2, 7")
        A("s_lshl_b32 s49, s54, 2")
        A("s_lshr_b32 s48, s2, 3")
        A("s_add_u32 s49, s49, s48")
        A("s_and_b32 s49, s49, 31")
        A("s_lshl_b32 s54, s54, 5")
        A("s_add_u32 s54, s54, s49")
        A("v_lshrrev_b32 v6, 3, v2")
        A("v_mul_u32_u24 v6, 224, v6")
        A("v_lshl_add_u32 v6, v3, 3, v6")
        A("v_lshlrev_b32 v6, 13, v6")
        A("v_and_b32 v7, 7, v2")
        A("v_lshl_add_u32 v6, v7, 2, v6")
        A("s_lshl_b32 s48, s54, 5")
        for kk in range(7):
            for i in range(8):
                r = WO + kk * 8 + i
                A(f"s_add_u32 s49, s48, {(kk * 32 + i) * 8192}")
                A(f"buffer_load_dword v{r}, v6, s[40:43], s49 offen {self.qnt}")
        C("flags = 0, HN tail = 0")
        A("ds_write_b128 v5, v[8:11]")
        A("ds_write_b128 v5, v[8:11] offset:16")
        A(f"ds_write_b128 v4, v[8:11] offset:{L_HN}")
        self.label("L_sv_nowq")
        A("s_cmp_lg_u32 s35, 1")
        A("s_cbranch_scc1 L_sv_noclr")
        if self.now & 2:
            A("s_branch L_sv_noclr")
        C("S1: clear own hand-off slots with the sentinel")
        A("v_mov_b32 v12, -1")
        A("v_mov_b32 v13, -1")
        A("v_mov_b32 v14, -1")
        A("v_mov_b32 v15, -1")
        A("s_lshl_b32 s48, s7, 13")
        A("s_lshl_b32 s49, s6, 11")
        A("s_add_u32 s48, s48, s49")
        A(f"s_add_u32 s48, s48, {W_OP}")
        self.srd(44, 32, 2048, 48)
        A("buffer_store_dwordx4 v[12:15], v4, s[44:47], 0 offen sc1")
        A("buffer_store_dwordx4 v[12:15], v4, s[44:47], 0 offen offset:1024 sc1")
        A("s_lshl_b32 s48, s7, 7")
        A("s_lshl_b32 s49, s6, 4")
        A("s_add_u32 s48, s48, s49")
        A(f"s_add_u32 s48, s48, {W_ST}")
        self.srd(44, 32, 16, 48)
        A("buffer_store_dwordx4 v[12:15], v4, s[44:47], 0 offen sc1")
        A("s_mul_i32 s48, s7, 1792")
        A("s_lshl_b32 s49, s6, 9")
        A("s_add_u32 s48, s48, s49")
        A(f"s_add_u32 s48, s48, {W_AP}")
        self.srd(44, 32, 512, 48)
        A("s_cmp_eq_u32 s6, 3")
        A("s_cselect_b32 s46, 256, s46")
        A("buffer_store_dwordx4 v[12:15], v4, s[44:47], 0 offen sc1")
        A("s_max_i32 s49, s34, 0")
        A("s_lshl_b32 s48, s4, 5")
        A("s_add_u32 s48, s48, s49")
        A("s_mul_i32 s48, s48, 1792")
        A(f"s_add_u32 s48, s48, {W_FP}")
        self.srd(44, 32, 1792, 48)
        A("s_cmp_lt_i32 s34, 0")
        A("s_cselect_b32 s46, 0, s46")
        A("buffer_store_dwordx4 v[12:15], v4, s[44:47], 0 offen sc1")
        A("buffer_store_dwordx4 v[12:15], v4, s[44:47], 0 offen offset:1024 sc1")
        if self.dyn:
            self.pp_addr(6, 48)
            A(f"s_mov_b64 exec, s[50:51]")
            for k in range(4):
                A(f"global_store_dwordx4 v6, v[12:15], s[32:33] offset:{16 * k} sc1")
            A("s_mov_b64 exec, -1")
        self.label("L_sv_noclr")
        C("zero region: each service wave clears 1 KiB")
        A("s_lshl_b32 s48, s35, 10")
        A("v_add_u32 v6, s48, v4")
        A(f"ds_write_b128 v6, v[8:11] offset:{L_ZERO}")
        A("s_waitcnt lgkmcnt(0)")
        A("s_barrier")
        A("s_add_u32 s93, s93, 1")
        C("LN1 of 2 rows")
        A("s_cmp_lg_u32 s35, 0")
        A("s_cbranch_scc1 L_sv_w0")
        A("s_waitcnt vmcnt(56)")
        A("s_branch L_sv_w1")
        self.label("L_sv_w0")
        A(f"s_waitcnt vmcnt({10 if self.dyn else 6})")
        A("s_cmp_eq_u32 s35, 1")
        A("s_cbranch_scc1 L_sv_w1")
        A("s_waitcnt vmcnt(0)")
        self.label("L_sv_w1")
        X0, X1 = 24, 32
        self.unpack8(ST, X0)
        self.unpack8(ST + 4, X1)
        self.layernorm([([X0 + e for e in range(8)], ST), ([X1 + e for e in range(8)], ST + 4)], 52, 40)
        A("s_mul_i32 s48, s35, 1792")
        A("v_add_u32 v6, s48, v4")
        A("s_mov_b64 exec, s[52:53]")
        A(f"ds_write_b128 v6, v[{ST}:{ST + 3}] offset:{L_XN}")
        A(f"ds_write_b128 v6, v[{ST + 4}:{ST + 7}] offset:{L_XN + 896}")
        A("v_mov_b32 v7, 1")
        A("s_waitcnt lgkmcnt(0)")
        A("s_mov_b64 exec, 1")
        A("ds_add_u32 v5, v7")
        A("s_mov_b64 exec, -1")
        A("s_cmp_eq_u32 s35, 0")
        A("s_cbranch_scc1 L_sv_q")
        A("s_cmp_lg_u32 s35, 1")
        A("s_cbranch_scc1 L_sv_weights")
        C("S1: arrival flag (slots cleared; every service wave read the epoch before B0)")
        if self.dyn:
            A("s_cmp_lg_u32 s6, 0")
            A("s_cbranch_scc1 L_sv_notk")
            A("s_lshl_b32 s48, s7, 7")
            A(f"s_add_u32 s48, s48, {W_TK}")
            A("v_mov_b32 v6, s48")
            A("v_mov_b32 v7, 0")
            A("s_mov_b64 exec, 1")
            A("global_store_dword v6, v7, s[32:33] sc1")
            A("s_mov_b64 exec, -1")
            self.label("L_sv_notk")
        A("s_lshl_b32 s48, s4, 5")
        A("s_add_u32 s48, s48, s34")
        A("s_add_u32 s48, s48, 4")
        A("s_lshl_b32 s48, s48, 3")
        A(f"s_add_u32 s48, s48, {W_AR}")
        A("v_mov_b32 v6, s48")
        A("v_mov_b32 v12, s92")
        A("v_mov_b32 v13, s93")
        A("s_waitcnt vmcnt(0)")
        A("s_mov_b64 exec, 1")
        A("global_store_dwordx2 v6, v[12:13], s[32:33] sc1")
        A("s_mov_b64 exec, -1")
        A("s_branch L_sv_weights")
        self.label("L_sv_q")
        C("---- S0: q for 16 columns x 8 batches ----")
        QB = WO + 64
        A("v_mov_b32 v62, s92")
        A("v_mov_b32 v63, s93")
        A("s_mov_b32 s55, 0x05040302")
        C("A frag address: (rho&7)*896 + (rho>>3)*448 + g*16 (+kk*64)")
        A("v_and_b32 v6, 7, v2")
        A("v_mul_u32_u24 v6, 896, v6")
        A("v_lshl_add_u32 v6, v3, 4, v6")
        A("v_lshrrev_b32 v7, 3, v2")
        A("v_mul_u32_u24 v7, 448, v7")
        A("v_add_u32 v6, v6, v7")
        for kk in range(7):
            A(f"s_waitcnt vmcnt({48 - 8 * kk})")
            for u in range(2):
                dst = QB + kk * 8 + u * 4
                sel = "s56" if u == 0 else "s57"
                for r in range(4):
                    A(f"v_perm_b32 v{dst + r}, v{WO + kk * 8 + 2 * r + 1}, v{WO + kk * 8 + 2 * r}, {sel}")
        self.lds_spin(5, 0, 4, 12, 50)
        for kk in range(7):
            A(f"ds_read_b128 v[{ST + 4 * kk}:{ST + 4 * kk + 3}], v6 offset:{L_XN + 64 * kk}")
        C("QG store addressing: (4g+r)*32768 + n16*128 + jj*16")
        A(f"s_mov_b32 s48, {W_QG}")
        self.srd(44, 32, 0x40000, 48)
        A("v_lshlrev_b32 v6, 17, v3")
        A("v_lshl_add_u32 v6, v2, 4, v6")
        A("s_lshl_b32 s48, s54, 7")
        DQ = 48
        for kk in range(7):
            A(f"s_waitcnt lgkmcnt({6 - kk})")
            for u in range(2):
                d = DQ + 4 * u
                fr = QB + kk * 8 + u * 4
                c = "0" if kk == 0 else f"v[{d}:{d + 3}]"
                A(f"v_mfma_f32_16x16x32_bf16 v[{d}:{d + 3}], v[{ST + 4 * kk}:{ST + 4 * kk + 3}], v[{fr}:{fr + 3}], {c}")
        A("s_nop 7")
        A("s_nop 1")
        for e in range(8):
            A(f"v_mov_b32_dpp v{ST + e}, v{DQ + e} row_ror:8 row_mask:0xf bank_mask:0xf")
        A("s_nop 1")
        for e in range(8):
            A(f"v_permlane32_swap_b32 v{ST + e}, v{ST + 8 + e}")
        A("s_nop 1")
        for e in range(8):
            A(f"v_add_f32 v{DQ + e}, v{DQ + e}, v{ST + 8 + e}")
        for r in range(4):
            o = ST + 16 + 4 * r
            A(f"v_cvt_pk_bf16_f32 v{ST + r}, v{DQ + r}, v{DQ + 4 + r}")
            A(f"v_perm_b32 v{o}, v62, v{ST + r}, s56")
            A(f"v_mov_b32 v{o + 1}, v63")
            A(f"v_perm_b32 v{o + 2}, v62, v{ST + r}, s55")
            A(f"v_mov_b32 v{o + 3}, v63")
        A("s_mov_b64 exec, 0x00ff00ff")
        for r in range(4):
            o = ST + 16 + 4 * r
            A(f"s_add_u32 s49, s48, {r * 32768}")
            A(f"buffer_store_dwordx4 v[{o}:{o + 3}], v6, s[44:47], s49 offen sc1")
        A("s_mov_b64 exec, -1")
        self.stamp(1)
        C("gather q granules: QG[b][hkv*512 + 8l ..]")
        A("v_lshlrev_b32 v6, 6, v0")
        A("s_lshl_b32 s48, s4, 15")
        A("s_lshl_b32 s49, s5, 12")
        A("s_add_u32 s48, s48, s49")
        A("v_lshlrev_b32 v61, 16, v62")
        if self.margin:
            self.lds_spin(5, 16, 1, 12, 50)
        A(f"s_mov_b32 s51, {self.poll_cap}")
        self.label("L_sv_qpoll")
        for k in range(4):
            A(f"buffer_load_dwordx4 v[{ST + 4 * k}:{ST + 4 * k + 3}], v6, s[44:47], s48 offen offset:{16 * k} sc1")
        A("s_waitcnt vmcnt(0)")
        for k in range(8):
            A(f"v_xor_b32 v{48 + k}, v61, v{ST + 2 * k}")
        A("v_or3_b32 v12, v48, v49, v50")
        A("v_or3_b32 v12, v12, v51, v52")
        A("v_or3_b32 v12, v12, v53, v54")
        A("v_or_b32 v12, v12, v55")
        A("v_lshrrev_b32 v12, 16, v12")
        for k in range(8):
            A(f"v_xor_b32 v{48 + k}, v63, v{ST + 2 * k + 1}")
        A("v_or3_b32 v12, v12, v48, v49")
        A("v_or3_b32 v12, v12, v50, v51")
        A("v_or3_b32 v12, v12, v52, v53")
        A("v_or3_b32 v12, v12, v54, v55")
        A("v_cmp_ne_u32 vcc, 0, v12")
        A("s_cbranch_vccz L_sv_qok")
        if self.qsleep:
            A(f"s_sleep {self.qsleep}")
        A("s_sub_u32 s51, s51, 1")
        A("s_cmp_lg_u32 s51, 0")
        A("s_cbranch_scc1 L_sv_qpoll")
        self.label("L_sv_qok")
        self.stamp(2)
        for k in range(4):
            A(f"v_perm_b32 v{48 + k}, v{ST + 4 * k + 2}, v{ST + 4 * k}, s56")
        self.label("L_sv_qskip")
        A(f"ds_write_b128 v4, v[48:51] offset:{L_Q}")
        A("v_mov_b32 v7, 1")
        A("s_waitcnt lgkmcnt(0)")
        A("ds_write_b32 v5, v7 offset:4")
        self.stamp(3)
        self.label("L_sv_weights")
        C("---- weights: wo frags (4 ksteps), w1 frags (4 ksteps) ----")
        if self.wdelay:
            self.lds_spin(5, 4, 1, 12, 50)
        if self.now & 1:
            A("s_branch L_sv_wskip")
        self.srd(40, 16, 4096 * 896)
        A(f"v_mul_u32_u24 v6, {8 * 896}, v3")
        A("v_lshl_add_u32 v6, v2, 4, v6")
        A("s_lshl_b32 s48, s5, 9")
        A("s_lshl_b32 s49, s35, 7")
        A("s_add_u32 s48, s48, s49")
        A("s_mul_i32 s48, s48, 896")
        A("s_lshl_b32 s49, s6, 8")
        A("s_add_u32 s48, s48, s49")
        A("s_cmp_eq_u32 s6, 3")
        A("s_cselect_b32 s50, 0x00ff00ff, -1")
        A("s_mov_b32 s51, s50")
        for kk in range(4):
            A("s_mov_b64 exec, s[50:51]")
            for i in range(8):
                if i % 4 == 0:
                    A(f"s_add_u32 s49, s48, {(kk * 32 + i) * 896}")
                r = ST + 4 * i
                if i >= self.wd:
                    A(f"s_waitcnt vmcnt({self.wd - 1})")
                A(f"buffer_load_dwordx4 v[{r}:{r + 3}], v6, s[40:43], s49 offen offset:{(i & 3) * 896} {self.wnt}")
            A("s_mov_b64 exec, -1")
            A("s_waitcnt vmcnt(0)")
            for c in range(4):
                for u in range(2):
                    dst = WO + kk * 32 + (2 * c + u) * 4
                    sel = "s56" if u == 0 else "s57"
                    for r in range(4):
                        A(f"v_perm_b32 v{dst + r}, v{ST + 4 * (2 * r + 1) + c}, v{ST + 4 * (2 * r) + c}, {sel}")
        self.srd(40, 20, 448 * 3584)
        A(f"v_mul_u32_u24 v6, {8 * 3584}, v3")
        A("v_lshl_add_u32 v6, v2, 3, v6")
        A(f"s_mul_i32 s48, s35, {32 * 3584}")
        A("s_cmp_lt_i32 s34, 0")
        A("s_cbranch_scc1 L_sv_wskip")
        A("s_lshl_b32 s49, s34, 7")
        A("s_add_u32 s48, s48, s49")
        for kp in range(2):
            for kk in (2 * kp, 2 * kp + 1):
                for i in range(8):
                    if i % 2 == 0:
                        A(f"s_add_u32 s49, s48, {(kk * 128 + i) * 3584}")
                    r = ST + (kk & 1) * 16 + 2 * i
                    if (kk & 1) * 8 + i >= 2 * self.wd:
                        A(f"s_waitcnt vmcnt({2 * self.wd - 1})")
                    A(f"buffer_load_dwordx2 v[{r}:{r + 1}], v6, s[40:43], s49 offen offset:{(i & 1) * 3584} {self.wnt}")
            A("s_waitcnt vmcnt(0)")
            for kk in (2 * kp, 2 * kp + 1):
                base = ST + (kk & 1) * 16
                for c in range(2):
                    for u in range(2):
                        dst = W1 + kk * 16 + (2 * c + u) * 4
                        sel = "s56" if u == 0 else "s57"
                        for r in range(4):
                            A(f"v_perm_b32 v{dst + r}, v{base + 2 * (2 * r + 1) + c}, v{base + 2 * (2 * r) + c}, {sel}")
        self.label("L_sv_wskip")
        C("workgroup 0 / S2: once all 256 arrival flags are in, advance the epoch")
        A("s_cmp_lg_u32 s2, 0")
        A("s_cbranch_scc1 L_sv_noepw")
        A("s_cmp_lg_u32 s35, 2")
        A("s_cbranch_scc1 L_sv_noepw")
        A(f"v_add_u32 v6, {W_AR}, v4")
        A(f"s_mov_b32 s51, {self.poll_cap}")
        self.label("L_sv_epoll")
        A("global_load_dwordx4 v[16:19], v6, s[32:33] sc1")
        A("global_load_dwordx4 v[20:23], v6, s[32:33] offset:1024 sc1")
        A("s_waitcnt vmcnt(0)")
        for k in range(4):
            A(f"v_xor_b32 v{16 + 2 * k}, s92, v{16 + 2 * k}")
            A(f"v_xor_b32 v{17 + 2 * k}, s93, v{17 + 2 * k}")
        A("v_or3_b32 v16, v16, v17, v18")
        A("v_or3_b32 v16, v16, v19, v20")
        A("v_or3_b32 v16, v16, v21, v22")
        A("v_or_b32 v16, v16, v23")
        A("v_cmp_ne_u32 vcc, 0, v16")
        A("s_cbranch_vccz L_sv_eok")
        A("s_sleep 16")
        A("s_sub_u32 s51, s51, 1")
        A("s_cmp_lg_u32 s51, 0")
        A("s_cbranch_scc1 L_sv_epoll")
        self.label("L_sv_eok")
        A(f"v_mov_b32 v6, {W_EP}")
        A("v_mov_b32 v7, s93")
        A("s_mov_b64 exec, 1")
        A("global_store_dword v6, v7, s[32:33] offset:4 sc1")
        A("s_mov_b64 exec, -1")
        self.label("L_sv_noepw")
        A("s_cmp_lg_u32 s35, 0")
        A("s_cbranch_scc1 L_sv_tail")
        C("---- S0: softmax stats, exchange, P ----")
        self.stamp(4)
        self.lds_spin(5, 8, 4, 12, 50)
        self.stamp(5)
        A("v_lshlrev_b32 v6, 6, v0")
        for k in range(4):
            A(f"ds_read_b128 v[{48 + 4 * k}:{48 + 4 * k + 3}], v6 offset:{L_SC + 16 * k}")
        A("s_lshl_b32 s48, s7, 7")
        A(f"s_add_u32 s48, s48, {W_ST}")
        self.srd(44, 32, 64, 48)
        A("s_mov_b32 s50, 0x3db8aa3b")
        A("s_waitcnt lgkmcnt(0)")
        H0, H1 = 16, 32
        for k in range(16):
            A(f"v_lshlrev_b32 v{H0 + k}, 16, v{48 + k}")
            A(f"v_and_b32 v{H1 + k}, 0xffff0000, v{48 + k}")
        for h, base in ((0, H0), (1, H1)):
            m = 8 + h
            A(f"v_max3_f32 v{m}, v{base}, v{base + 1}, v{base + 2}")
            for k in range(3, 15, 2):
                A(f"v_max3_f32 v{m}, v{m}, v{base + k}, v{base + k + 1}")
            A(f"v_max_f32 v{m}, v{m}, v{base + 15}")
        self.allreduce("max", [8, 9], [12, 13])
        for h, base in ((0, H0), (1, H1)):
            m = 8 + h
            sreg = 10 + h
            for k in range(16):
                A(f"v_sub_f32 v{48 + k}, v{base + k}, v{m}")
            for k in range(16):
                A(f"v_mul_f32 v{48 + k}, s50, v{48 + k}")
            for k in range(16):
                A(f"v_exp_f32 v{48 + k}, v{48 + k}")
            A("s_nop 0")
            A(f"v_add_f32 v{sreg}, v48, v49")
            for k in range(2, 16):
                A(f"v_add_f32 v{sreg}, v{sreg}, v{48 + k}")
        self.allreduce("add", [10, 11], [12, 13])
        C("publish (m0 | xcc, m1, l0, l1) = v8..v11 (m0 is a bf16 value: its low 16 bits are free)")
        A("s_getreg_b32 s91, hwreg(HW_REG_XCC_ID)")
        A("s_and_b32 s91, s91, 0xff")
        A("v_or_b32 v8, s91, v8")
        for k in range(4):
            A(f"v_min_u32 v{8 + k}, -2, v{8 + k}")
        A("s_lshl_b32 s48, s6, 4")
        A("v_mov_b32 v7, 0")
        A("s_mov_b64 exec, 1")
        A("buffer_store_dwordx4 v[8:11], v7, s[44:47], s48 offen sc1")
        A("s_mov_b64 exec, -1")
        lds = [f"buffer_load_dwordx4 v[{48 + 4 * cc}:{48 + 4 * cc + 3}], v7, s[44:47], 0 offen offset:{16 * cc} sc1" for cc in range(4)]
        C("the 32 workgroups of this batch must have cleared their slots before any slot is polled")
        A("s_lshl_b32 s48, s4, 8")
        A(f"s_add_u32 s48, s48, {W_AR}")
        A("v_and_b32 v12, 31, v0")
        A("v_lshl_add_u32 v12, v12, 3, s48")
        A(f"s_mov_b32 s51, {self.poll_cap}")
        self.label("L_sv_apoll")
        A("global_load_dwordx2 v[14:15], v12, s[32:33] sc1")
        A("s_waitcnt vmcnt(0)")
        A("v_xor_b32 v14, s92, v14")
        A("v_xor_b32 v15, s93, v15")
        A("v_or_b32 v14, v14, v15")
        A("v_cmp_ne_u32 vcc, 0, v14")
        A("s_cbranch_vccz L_sv_aok")
        A("s_sleep 8")
        A("s_sub_u32 s51, s51, 1")
        A("s_cmp_lg_u32 s51, 0")
        A("s_cbranch_scc1 L_sv_apoll")
        self.label("L_sv_aok")
        if self.margin:
            self.lds_spin(5, 20, 1, 12, 51)
        self.poll_sentinel(lds, [48 + i for i in range(16)], 12, 51, retry_sleep=self.ssleep)
        self.stamp(6)
        C("all four members on one XCD? (same answer in every member) -> LDS word for the o hand-off store flavour")
        A("v_xor_b32 v12, v48, v52")
        A("v_xor_b32 v13, v48, v56")
        A("v_xor_b32 v14, v48, v60")
        A("v_or3_b32 v12, v12, v13, v14")
        A("v_and_b32 v12, 0xffff, v12")
        A("ds_write_b32 v5, v12 offset:32")
        for cc in range(4):
            A(f"v_and_b32 v{48 + 4 * cc}, 0xffff0000, v{48 + 4 * cc}")
        for h in range(2):
            A(f"v_max3_f32 v{8 + h}, v{48 + h}, v{52 + h}, v{56 + h}")
            A(f"v_max_f32 v{8 + h}, v{8 + h}, v{60 + h}")
        for h in range(2):
            for cc in range(4):
                A(f"v_sub_f32 v{48 + 4 * cc + h}, v{48 + 4 * cc + h}, v{8 + h}")
                A(f"v_mul_f32 v{48 + 4 * cc + h}, s50, v{48 + 4 * cc + h}")
                A(f"v_exp_f32 v{48 + 4 * cc + h}, v{48 + 4 * cc + h}")
            A("s_nop 0")
            A(f"v_mul_f32 v{10 + h}, v{48 + h}, v{50 + h}")
            for cc in range(1, 4):
                A(f"v_fmac_f32 v{10 + h}, v{48 + 4 * cc + h}, v{50 + 4 * cc + h}")
            A(f"v_rcp_f32 v{10 + h}, v{10 + h}")
        for h, base in ((0, H0), (1, H1)):
            for k in range(16):
                A(f"v_sub_f32 v{base + k}, v{base + k}, v{8 + h}")
            for k in range(16):
                A(f"v_mul_f32 v{base + k}, s50, v{base + k}")
            for k in range(16):
                A(f"v_exp_f32 v{base + k}, v{base + k}")
            A("s_nop 0")
            for k in range(16):
                A(f"v_mul_f32 v{base + k}, v{base + k}, v{10 + h}")
            for par in range(2):
                for d in range(4):
                    A(f"v_cvt_pk_bf16_f32 v{48 + h * 8 + par * 4 + d}, v{base + 4 * d + par}, v{base + 4 * d + 2 + par}")
        for k in range(4):
            A(f"ds_write_b128 v6, v[{48 + 4 * k}:{48 + 4 * k + 3}] offset:{L_P + 16 * k}")
        A("v_mov_b32 v7, 1")
        A("s_waitcnt lgkmcnt(0)")
        A("ds_write_b32 v5, v7 offset:12")
        self.stamp(7)
        if self.dyn:
            C("publish the pool part of P, then gather the cluster's pool P into LDS")
            NPL = 16 - self.RS
            self.pp_addr(6, 48)
            for k in range(16):
                A(f"v_min_u32 v{48 + k}, -2, v{48 + k}")
            A("s_mov_b64 exec, s[50:51]")
            for k in range(4):
                A(f"global_store_dwordx4 v6, v[{48 + 4 * k}:{48 + 4 * k + 3}], s[32:33] offset:{16 * k} sc1")
            A("s_mov_b64 exec, -1")
            A("s_lshl_b32 s48, s7, 13")
            A(f"s_add_u32 s48, s48, {W_PP}")
            self.srd(44, 32, 8192, 48)
            A("s_mov_b32 s48, 4096")
            self.lds_spin(5, 28, 1, 12, 50)
            lds = [f"buffer_load_dwordx4 v[{16 + 4 * k}:{16 + 4 * k + 3}], v4, s[44:47], {'0' if k < 4 else 's48'} offen offset:{1024 * (k & 3)} sc1" for k in range(NPL)]
            self.poll_sentinel(lds, [16 + i for i in range(4 * NPL)], 12, 51, retry_sleep=self.ssleep)
            for k in range(NPL):
                A(f"ds_write_b128 v4, v[{16 + 4 * k}:{16 + 4 * k + 3}] offset:{L_PP + 1024 * k}")
            A("v_mov_b32 v7, 1")
            A("s_waitcnt lgkmcnt(0)")
            A("ds_write_b32 v5, v7 offset:24")
        C("preload x row b (for h) and b2")
        self.srd(36, 8, 8 * 896)
        A("s_mul_i32 s48, s4, 896")
        A("buffer_load_dwordx4 v[56:59], v4, s[36:39], s48 offen")
        self.srd(36, 26, 896)
        A("v_and_b32 v7, 3, v0")
        A("v_lshlrev_b32 v7, 3, v7")
        A("s_max_i32 s48, s34, 0")
        A("s_lshl_b32 s48, s48, 5")
        A("buffer_load_dwordx2 v[60:61], v7, s[36:39], s48 offen")
        self.label("L_sv_tail")
        C("---- tail ----")
        A("v_lshlrev_b32 v6, 4, v3")
        A("s_lshl_b32 s48, s35, 8")
        A("v_add_u32 v6, s48, v6")
        A("s_barrier")
        A("s_barrier")
        for kk in range(4):
            A(f"ds_read_b128 v[{ST + 4 * kk}:{ST + 4 * kk + 3}], v6 offset:{L_O + 64 * kk}")
        A("s_lshl_b32 s48, s35, 9")
        A("v_lshl_add_u32 v7, v2, 5, s48")
        DT = 24
        accs = [32, 36, 40, 44, 48, 52, 8, 12]
        for kk in range(4):
            A(f"s_waitcnt lgkmcnt({3 - kk})")
            for t in range(8):
                d = accs[t]
                fr = WO + kk * 32 + t * 4
                c = "0" if kk == 0 else f"v[{d}:{d + 3}]"
                A(f"v_mfma_f32_16x16x32_bf16 v[{d}:{d + 3}], v[{ST + 4 * kk}:{ST + 4 * kk + 3}], v[{fr}:{fr + 3}], {c}")
        A("s_nop 1")
        for t in range(8):
            A(f"v_mov_b32 v{ST + t}, v{accs[t]}")
        A(f"ds_write_b128 v7, v[{ST}:{ST + 3}] offset:{L_T1}")
        A(f"ds_write_b128 v7, v[{ST + 4}:{ST + 7}] offset:{L_T1 + 16}")
        A("s_waitcnt lgkmcnt(0)")
        A("s_barrier")
        A("s_cmp_lg_u32 s35, 0")
        A("s_cbranch_scc1 L_sv_skip2")
        self.stamp(8)
        C("S0: P4: lanes<28: sum 4 waves, publish AP[b][hkv][112c + 4l]")
        for w in range(4):
            A(f"ds_read_b128 v[{ST + 4 * w}:{ST + 4 * w + 3}], v4 offset:{L_T1 + 512 * w}")
        A("s_mul_i32 s48, s4, 14336")
        A(f"s_add_u32 s48, s48, {W_AP}")
        self.srd(44, 32, 14336, 48)
        A("s_mul_i32 s48, s5, 1792")
        A("s_lshl_b32 s49, s6, 9")
        A("s_add_u32 s48, s48, s49")
        A("s_cmp_eq_u32 s6, 3")
        A("s_cselect_b32 s50, 0xffff, -1")
        A("s_mov_b32 s51, 0")
        A("v_lshlrev_b32 v7, 5, v0")
        A("s_waitcnt lgkmcnt(0)")
        for e in range(4):
            A(f"v_add_f32 v{ST + e}, v{ST + e}, v{ST + 4 + e}")
            A(f"v_add_f32 v{ST + 8 + e}, v{ST + 8 + e}, v{ST + 12 + e}")
        for e in range(4):
            A(f"v_add_f32 v{ST + e}, v{ST + e}, v{ST + 8 + e}")
        for e in range(4):
            A(f"v_min_u32 v{ST + e}, -2, v{ST + e}")
        A("s_mov_b64 exec, s[50:51]")
        A(f"buffer_store_dwordx4 v[{ST}:{ST + 3}], v4, s[44:47], s48 offen sc1")
        C("P5: lanes<56: gather AP[b][h'][8l..8l+8] (wo frags are dead now)")
        A("s_mov_b64 exec, s[52:53]")
        G = WO
        for hh in range(1, 4):
            A(f"s_mov_b32 s{40 + hh}, {hh * 3584}")
        lds = []
        for hh in range(8):
            so = "0" if hh < 2 else f"s{40 + hh // 2}"
            for u in range(2):
                r = G + hh * 8 + u * 4
                lds.append(f"buffer_load_dwordx4 v[{r}:{r + 3}], v7, s[44:47], {so} offen offset:{(hh & 1) * 1792 + 16 * u} sc1")
        self.poll_sentinel(lds, [G + i for i in range(64)], 12, 51, retry_sleep=self.tsleep)
        A("s_mov_b64 exec, -1")
        self.stamp(9)
        for e in range(8):
            for hh in range(0, 8, 2):
                A(f"v_add_f32 v{G + hh * 8 + e}, v{G + hh * 8 + e}, v{G + hh * 8 + 8 + e}")
        for e in range(8):
            A(f"v_add_f32 v{G + e}, v{G + e}, v{G + 16 + e}")
            A(f"v_add_f32 v{G + 32 + e}, v{G + 32 + e}, v{G + 48 + e}")
        for e in range(8):
            A(f"v_add_f32 v{G + e}, v{G + e}, v{G + 32 + e}")
        for e in range(4):
            A(f"v_cvt_pk_bf16_f32 v{ST + e}, v{G + 2 * e}, v{G + 2 * e + 1}")
        self.unpack8(ST, G)
        self.unpack8(56, G + 8)
        for e in range(8):
            A(f"v_add_f32 v{G + e}, v{G + e}, v{G + 8 + e}")
        for e in range(4):
            A(f"v_cvt_pk_bf16_f32 v{ST + e}, v{G + 2 * e}, v{G + 2 * e + 1}")
        self.unpack8(ST, G)
        self.layernorm([([G + e for e in range(8)], ST)], 52, G + 16)
        A("s_mov_b64 exec, s[52:53]")
        A(f"ds_write_b128 v4, v[{ST}:{ST + 3}] offset:{L_HN}")
        A(f"ds_write_b128 v7, v[{G}:{G + 3}] offset:{L_H}")
        A(f"ds_write_b128 v7, v[{G + 4}:{G + 7}] offset:{L_H + 16}")
        A("s_mov_b64 exec, -1")
        A("s_waitcnt lgkmcnt(0)")
        self.label("L_sv_skip2")
        A("s_barrier")
        C("T2a: ksteps s, s+4, s+8, s+12")
        A("v_lshlrev_b32 v6, 4, v3")
        A("s_lshl_b32 s48, s35, 6")
        A("v_add_u32 v6, s48, v6")
        for kk in range(4):
            A(f"ds_read_b128 v[{ST + 4 * kk}:{ST + 4 * kk + 3}], v6 offset:{L_HN + 256 * kk}")
        A("s_lshl_b32 s48, s35, 8")
        A("v_lshl_add_u32 v7, v2, 4, s48")
        for kk in range(4):
            A(f"s_waitcnt lgkmcnt({3 - kk})")
            for t in range(4):
                d = 32 + 4 * t
                fr = W1 + kk * 16 + t * 4
                c = "0" if kk == 0 else f"v[{d}:{d + 3}]"
                A(f"v_mfma_f32_16x16x32_bf16 v[{d}:{d + 3}], v[{ST + 4 * kk}:{ST + 4 * kk + 3}], v[{fr}:{fr + 3}], {c}")
        A("s_nop 5")
        for t in range(4):
            A(f"v_mov_b32 v{ST + t}, v{32 + 4 * t}")
        A(f"ds_write_b128 v7, v[{ST}:{ST + 3}] offset:{L_R1}")
        A("s_waitcnt lgkmcnt(0)")
        A("s_barrier")
        A("s_cmp_lg_u32 s35, 0")
        A("s_cbranch_scc1 L_end")
        self.stamp(10)
        A("s_cmp_lt_i32 s34, 0")
        A("s_cbranch_scc1 L_sv_fin")
        C("P8: final reduce: FP[b][src][16f + 4q]; lane l: src = l>>2 (+16), q = l&3")
        A("s_mul_i32 s48, s4, 57344")
        A(f"s_add_u32 s48, s48, {W_FP}")
        self.srd(44, 32, 28 * 1792, 48)
        A("v_lshrrev_b32 v6, 2, v0")
        A("v_mul_u32_u24 v6, 1792, v6")
        A("v_and_b32 v7, 3, v0")
        A("v_lshl_add_u32 v6, v7, 4, v6")
        A("s_lshl_b32 s48, s34, 6")
        A(f"s_add_u32 s49, s48, {16 * 1792}")
        A("v_lshl_add_u32 v8, v7, 4, s48")
        A(f"ds_read_b128 v[40:43], v8 offset:{L_H}")
        self.srd(36, 28, 7168)
        lds = [f"buffer_load_dwordx4 v[{ST}:{ST + 3}], v6, s[44:47], s48 offen sc1",
               f"buffer_load_dwordx4 v[{ST + 4}:{ST + 7}], v6, s[44:47], s49 offen sc1"]
        self.poll_sentinel(lds, [ST + i for i in range(8)], 12, 51)
        self.stamp(11)
        for e in range(4):
            A(f"v_add_f32 v{ST + e}, v{ST + e}, v{ST + 4 + e}")
        for ctrl in ("row_ror:4", "row_ror:8"):
            A("s_nop 1")
            for e in range(4):
                A(f"v_add_f32_dpp v{ST + e}, v{ST + e}, v{ST + e} {ctrl} row_mask:0xf bank_mask:0xf")
        for sw in ("v_permlane16_swap_b32", "v_permlane32_swap_b32"):
            for e in range(4):
                A(f"v_mov_b32 v{ST + 4 + e}, v{ST + e}")
            A("s_nop 1")
            for e in range(4):
                A(f"{sw} v{ST + e}, v{ST + 4 + e}")
            A("s_nop 1")
            for e in range(4):
                A(f"v_add_f32 v{ST + e}, v{ST + e}, v{ST + 4 + e}")
        A(f"v_cvt_pk_bf16_f32 v{ST + 4}, v{ST}, v{ST + 1}")
        A(f"v_cvt_pk_bf16_f32 v{ST + 5}, v{ST + 2}, v{ST + 3}")
        for e in range(2):
            A(f"v_lshlrev_b32 v{ST + 2 * e}, 16, v{ST + 4 + e}")
            A(f"v_and_b32 v{ST + 2 * e + 1}, 0xffff0000, v{ST + 4 + e}")
            A(f"v_lshlrev_b32 v{32 + 2 * e}, 16, v{60 + e}")
            A(f"v_and_b32 v{32 + 2 * e + 1}, 0xffff0000, v{60 + e}")
        for e in range(4):
            A(f"v_add_f32 v{ST + e}, v{ST + e}, v{32 + e}")
        A(f"v_cvt_pk_bf16_f32 v{ST + 4}, v{ST}, v{ST + 1}")
        A(f"v_cvt_pk_bf16_f32 v{ST + 5}, v{ST + 2}, v{ST + 3}")
        for e in range(2):
            A(f"v_lshlrev_b32 v{ST + 2 * e}, 16, v{ST + 4 + e}")
            A(f"v_and_b32 v{ST + 2 * e + 1}, 0xffff0000, v{ST + 4 + e}")
        A("s_waitcnt lgkmcnt(0)")
        for e in range(4):
            A(f"v_add_f32 v{ST + e}, v{ST + e}, v{40 + e}")
        A(f"v_cvt_pk_bf16_f32 v{ST + 4}, v{ST}, v{ST + 1}")
        A(f"v_cvt_pk_bf16_f32 v{ST + 5}, v{ST + 2}, v{ST + 3}")
        A("v_lshlrev_b32 v7, 3, v7")
        A("s_mul_i32 s48, s4, 896")
        A("s_lshl_b32 s49, s34, 5")
        A("s_add_u32 s48, s48, s49")
        A("s_mov_b64 exec, 0xf")
        A(f"buffer_store_dwordx2 v[{ST + 4}:{ST + 5}], v7, s[36:39], s48 offen")
        A("s_mov_b64 exec, -1")
        self.label("L_sv_fin")
        self.stamp(12)
        self.dump_stamps(13, 8)


if __name__ == "__main__":
    import argparse
    ap = argparse.ArgumentParser()
    ap.add_argument("-o", default=f"cdna_kernels/{NAME}.s")
    ap.add_argument("--D", type=int, default=5)
    ap.add_argument("--R", type=int, default=42)
    ap.add_argument("--stamps", action="store_true")
    ap.add_argument("--wnt", default="")
    ap.add_argument("--knt", default="nt")
    ap.add_argument("--nowdelay", action="store_true")
    ap.add_argument("--qnt", default="nt")
    ap.add_argument("--wd", type=int, default=8)
    ap.add_argument("--now", type=int, default=0)
    ap.add_argument("--DV", type=int, default=0)
    ap.add_argument("--wsoff", type=lambda x: int(x, 0), default=0)
    ap.add_argument("--qsleep", type=int, default=0)
    ap.add_argument("--ssleep", type=int, default=0)
    ap.add_argument("--DE", type=int, default=0)
    ap.add_argument("--tsleep", type=int, default=0)
    ap.add_argument("--margin", type=int, default=12)
    ap.add_argument("--w2pos", type=int, default=8)
    ap.add_argument("--yrot", type=int, default=0)
    ap.add_argument("--ilv", type=int, default=0)
    ap.add_argument("--RS", type=int, default=16)
    ap.add_argument("--kmargin", type=int, default=18)
    ap.add_argument("--cap", type=int, default=200000)
    ap.add_argument("--Dh", type=int, default=0)
    ap.add_argument("--cmap", type=int, default=2)
    ap.add_argument("--vnt", default=None)
    ap.add_argument("--eager", type=int, default=4)
    ap.add_argument("--opst", default="")
    ap.add_argument("--NE", type=int, default=0)
    a = ap.parse_args()
    g = Gen(D=a.D, R=a.R, stamps=a.stamps, wnt=a.wnt, knt=a.knt, wdelay=not a.nowdelay, qnt=a.qnt, wd=a.wd, now=a.now, DV=a.DV, wsoff=a.wsoff, qsleep=a.qsleep, ssleep=a.ssleep, DE=a.DE, NE=a.NE, tsleep=a.tsleep, margin=a.margin, w2pos=a.w2pos, yrot=a.yrot, ilv=a.ilv, RS=a.RS, kmargin=a.kmargin, poll_cap=a.cap, Dh=a.Dh, cmap=a.cmap, vnt=a.vnt, eager=a.eager, opst=a.opst)
    open(a.o, "w").write(g.build())
```

```python
import sys

NAME = "sequential_preLN__gqa_block_cached__dense_activation_squared_relu__decode"

HEADER = """; Kernarg layout for this problem (104 bytes, ptrs only, base s[0:1]):
"""

L_XN = 0x0000
L_Q = 0x1C00
L_SC = 0x2000
L_SCD = 0x3000
L_P = 0x4000
L_ZERO = 0x5000
L_ACC = 0x6000
L_O = 0x8000
L_T1 = 0x8400
L_HN = 0x8C00
L_H = 0x9000
L_R1 = 0x9800
L_H1 = 0x9C00
L_FLAG = 0x9E00
L_PP = 0xA000
LDS_BYTES = 0xC000

W_QG = 0x000000
W_QF = 0x072000
W_EP = 0x070000
W_AR = 0x071000
W_ST = 0x080000
W_OP = 0x090000
W_AP = 0x110000
W_FP = 0x130000
W_PP = 0x1A0000
W_TK = 0x230000
W_END = 0x380000
W_STAMP = 0x1000000


class Gen:
    def __init__(self, D=5, R=40, stamps=False, wnt="", knt="nt", poll_cap=200000, wdelay=True, wsleep=0, qnt="nt", wd=8, now=0, DV=None, wsoff=0, qsleep=0, ssleep=0, DE=0, NE=0, tsleep=0, margin=12, w2pos=8, yrot=0, ilv=0, RS=16, kmargin=18, Dh=0, cmap=0, vnt=None, eager=4, opst="", bal=1, apst="sc1", spread=0):
        self.L = []
        self.D = D
        self.R = R
        self.stamps = stamps
        self.wnt = wnt
        self.knt = knt
        self.poll_cap = poll_cap
        self.nlabel = 0
        self.wdelay = wdelay
        self.wsleep = wsleep
        self.qnt = qnt
        self.wd = wd
        self.now = now
        self.wsoff = wsoff
        self.qsleep = qsleep
        self.ssleep = ssleep
        self.DE = DE
        self.tsleep = tsleep
        self.margin = margin
        self.yrot = yrot
        self.ilv = ilv
        self.RS = RS
        self.kmargin = kmargin
        self.Dh = Dh
        self.cmap = cmap
        self.eager = eager
        self.opst = opst
        self.bal = bal
        self.apst = apst
        self.spread = spread
        self.vnt = knt if vnt is None else vnt
        self.dyn = RS < 16
        if self.dyn:
            self.ilv = 1
        self.w2pos = w2pos
        self.NE = NE
        self.DV = DV if DV else D

    def A(self, s):
        self.L.append("    " + s)

    def C(self, s):
        self.L.append("    ; " + s)

    def label(self, name):
        self.L.append(name + ":")

    def newlabel(self, base):
        self.nlabel += 1
        return f"L_{base}_{self.nlabel}"

    def stamp(self, idx):
        if self.stamps:
            self.A(f"s_memrealtime s[{60 + 2 * idx}:{61 + 2 * idx}]")

    def dump_stamps(self, n, vbase):
        if not self.stamps:
            return
        A = self.A
        A("s_waitcnt lgkmcnt(0)")
        A("s_lshl_b32 s58, s99, 3")
        A("s_add_u32 s58, s58, s3")
        A("s_lshl_b32 s58, s58, 7")
        A(f"s_add_u32 s58, s58, {W_STAMP}")
        A("s_mov_b64 exec, 1")
        A(f"v_mov_b32 v{vbase}, s58")
        for i in range(n):
            A(f"v_mov_b32 v{vbase + 2}, s{60 + 2 * i}")
            A(f"v_mov_b32 v{vbase + 3}, s{61 + 2 * i}")
            A(f"global_store_dwordx2 v{vbase}, v[{vbase + 2}:{vbase + 3}], s[32:33] offset:{8 * i}")
            A("s_nop 1")
        A(f"v_mov_b32 v{vbase + 2}, s90")
        A(f"v_mov_b32 v{vbase + 3}, s91")
        A(f"global_store_dwordx2 v{vbase}, v[{vbase + 2}:{vbase + 3}], s[32:33] offset:120")
        A("s_mov_b64 exec, -1")

    def wsadj(self):
        if self.wsoff:
            self.A(f"s_add_u32 s32, s32, {self.wsoff}")
            self.A("s_addc_u32 s33, s33, 0")

    def pp_addr(self, v, st):
        A = self.A
        RS = self.RS
        A(f"v_lshrrev_b32 v{v}, 2, v0")
        A(f"v_subrev_u32 v{v}, {RS}, v{v}")
        A(f"v_lshlrev_b32 v{v}, 10, v{v}")
        A(f"v_and_b32 v{v + 1}, 3, v0")
        A(f"v_lshl_add_u32 v{v}, v{v + 1}, 6, v{v}")
        A(f"s_lshl_b32 s{st}, s7, 13")
        A(f"s_lshl_b32 s{st + 1}, s6, 8")
        A(f"s_add_u32 s{st}, s{st}, s{st + 1}")
        A(f"s_add_u32 s{st}, s{st}, {W_PP}")
        A(f"v_add_u32 v{v}, s{st}, v{v}")
        A(f"v_cmp_le_u32 s[50:51], {4 * RS}, v0")

    def epoch_load(self):
        self.A(f"s_load_dwordx2 s[92:93], s[32:33], {W_EP}")

    def srd(self, d, ptr, size, off_sgpr=None):
        A = self.A
        if off_sgpr is None:
            A(f"s_mov_b32 s{d}, s{ptr}")
            A(f"s_mov_b32 s{d + 1}, s{ptr + 1}")
        else:
            A(f"s_add_u32 s{d}, s{ptr}, s{off_sgpr}")
            A(f"s_addc_u32 s{d + 1}, s{ptr + 1}, 0")
        A(f"s_mov_b32 s{d + 2}, {size}")
        A(f"s_mov_b32 s{d + 3}, 0x20000")

    def allreduce(self, op, regs, tmps):
        A = self.A
        for ctrl in ("quad_perm:[1,0,3,2]", "quad_perm:[2,3,0,1]", "row_half_mirror", "row_mirror"):
            A("s_nop 1")
            for r in regs:
                A(f"v_{op}_f32_dpp v{r}, v{r}, v{r} {ctrl} row_mask:0xf bank_mask:0xf")
        for sw in ("v_permlane16_swap_b32", "v_permlane32_swap_b32"):
            for r, t in zip(regs, tmps):
                A(f"v_mov_b32 v{t}, v{r}")
            A("s_nop 1")
            for r, t in zip(regs, tmps):
                A(f"{sw} v{r}, v{t}")
            A("s_nop 1")
            for r, t in zip(regs, tmps):
                A(f"v_{op}_f32 v{r}, v{r}, v{t}")

    def lds_spin(self, vaddr, off, target, vtmp, stmp):
        A = self.A
        l = self.newlabel("spin")
        d = self.newlabel("spun")
        A(f"s_mov_b32 s59, {max(self.poll_cap * 20, 100000)}")
        self.label(l)
        A(f"ds_read_b32 v{vtmp}, v{vaddr} offset:{off}")
        A("s_waitcnt lgkmcnt(0)")
        A(f"v_readfirstlane_b32 s{stmp}, v{vtmp}")
        A("s_nop 0")
        A(f"s_cmp_eq_u32 s{stmp}, {target}")
        A(f"s_cbranch_scc1 {d}")
        A("s_sleep 1")
        A("s_sub_u32 s59, s59, 1")
        A("s_cmp_lg_u32 s59, 0")
        A(f"s_cbranch_scc1 {l}")
        self.label(d)

    def poll_sentinel(self, loads, regs, vtmp, scnt, sleep=0, retry_sleep=0, first_issued=False):
        A = self.A
        l = self.newlabel("poll")
        d = self.newlabel("polled")
        A(f"s_mov_b32 s{scnt}, {self.poll_cap}")
        if first_issued:
            l2 = self.newlabel("pollchk")
            A(f"s_branch {l2}")
        self.label(l)
        if sleep:
            A(f"s_sleep {sleep}")
        for s in loads:
            A(s)
        if first_issued:
            self.label(l2)
        A("s_waitcnt vmcnt(0)")
        A(f"v_max3_u32 v{vtmp}, v{regs[0]}, v{regs[1]}, v{regs[2]}")
        rest = regs[3:]
        while len(rest) >= 2:
            A(f"v_max3_u32 v{vtmp}, v{vtmp}, v{rest[0]}, v{rest[1]}")
            rest = rest[2:]
        if rest:
            A(f"v_max_u32 v{vtmp}, v{vtmp}, v{rest[0]}")
        A(f"v_cmp_eq_u32 vcc, -1, v{vtmp}")
        A(f"s_cbranch_vccz {d}")
        if retry_sleep:
            A(f"s_sleep {retry_sleep}")
        A(f"s_sub_u32 s{scnt}, s{scnt}, 1")
        A(f"s_cmp_lg_u32 s{scnt}, 0")
        A(f"s_cbranch_scc1 {l}")
        self.label(d)

    def layernorm(self, rows, smask, t):
        A = self.A
        n = len(rows)
        S = [t + i for i in range(n)]
        T = [t + n + i for i in range(n)]
        M = [t + 2 * n + i for i in range(n)]
        DD = t + 3 * n
        for k, (x, o) in enumerate(rows):
            A(f"v_add_f32 v{S[k]}, v{x[0]}, v{x[1]}")
            for e in range(2, 8):
                A(f"v_add_f32 v{S[k]}, v{S[k]}, v{x[e]}")
            A(f"v_cndmask_b32 v{S[k]}, 0, v{S[k]}, s[{smask}:{smask + 1}]")
        self.allreduce("add", S, T)
        for k, (x, o) in enumerate(rows):
            A(f"v_mul_f32 v{M[k]}, 0x3b124925, v{S[k]}")
        for k, (x, o) in enumerate(rows):
            for e in range(8):
                A(f"v_sub_f32 v{DD + e}, v{x[e]}, v{M[k]}")
            A(f"v_mul_f32 v{S[k]}, v{DD}, v{DD}")
            for e in range(1, 8):
                A(f"v_fmac_f32 v{S[k]}, v{DD + e}, v{DD + e}")
            A(f"v_cndmask_b32 v{S[k]}, 0, v{S[k]}, s[{smask}:{smask + 1}]")
        self.allreduce("add", S, T)
        for k, (x, o) in enumerate(rows):
            A(f"v_mul_f32 v{S[k]}, 0x3b124925, v{S[k]}")
            A(f"v_cvt_pk_bf16_f32 v{T[k]}, v{M[k]}, v{S[k]}")
            A(f"v_lshlrev_b32 v{M[k]}, 16, v{T[k]}")
            A(f"v_and_b32 v{S[k]}, 0xffff0000, v{T[k]}")
            A(f"v_add_f32 v{S[k]}, 0x3727c5ac, v{S[k]}")
            A(f"v_cvt_pk_bf16_f32 v{S[k]}, v{S[k]}, v{S[k]}")
            A(f"v_lshlrev_b32 v{S[k]}, 16, v{S[k]}")
            A(f"v_sqrt_f32 v{S[k]}, v{S[k]}")
            A("s_nop 0")
            A(f"v_cvt_pk_bf16_f32 v{S[k]}, v{S[k]}, v{S[k]}")
            A(f"v_lshlrev_b32 v{S[k]}, 16, v{S[k]}")
            A(f"v_rcp_f32 v{S[k]}, v{S[k]}")
            for e in range(8):
                A(f"v_sub_f32 v{DD + e}, v{x[e]}, v{M[k]}")
            for e in range(4):
                A(f"v_cvt_pk_bf16_f32 v{o + e}, v{DD + 2 * e}, v{DD + 2 * e + 1}")
            for e in range(4):
                A(f"v_lshlrev_b32 v{DD + 2 * e}, 16, v{o + e}")
                A(f"v_and_b32 v{DD + 2 * e + 1}, 0xffff0000, v{o + e}")
            for e in range(8):
                A(f"v_mul_f32 v{DD + e}, v{DD + e}, v{S[k]}")
            for e in range(4):
                A(f"v_cvt_pk_bf16_f32 v{o + e}, v{DD + 2 * e}, v{DD + 2 * e + 1}")

    def unpack8(self, src, dst):
        for e in range(4):
            self.A(f"v_lshlrev_b32 v{dst + 2 * e}, 16, v{src + e}")
            self.A(f"v_and_b32 v{dst + 2 * e + 1}, 0xffff0000, v{src + e}")

    def build(self):
        A, C = self.A, self.C
        D, R = self.D, self.R
        self.L.append(HEADER.rstrip())
        self.L.append(f"; @launch grid=(256,1,1) block=(512,1,1) lds={LDS_BYTES}")
        self.L.append('.amdgcn_target "amdgcn-amd-amdhsa--gfx950"')
        self.L.append(".text")
        self.L.append(f".globl {NAME}_kernel")
        self.L.append(".p2align 8")
        self.L.append(f".type {NAME}_kernel,@function")
        self.label(f"{NAME}_kernel")
        A("s_cmp_ge_u32 s2, 256")
        A("s_cbranch_scc1 L_end")
        self.stamp(0)
        A("s_mov_b32 s99, s2")
        if self.yrot:
            A("s_xor_b32 s2, s2, 16")
        if self.stamps:
            A("s_getreg_b32 s90, hwreg(HW_REG_HW_ID)")
            A("s_getreg_b32 s91, hwreg(HW_REG_XCC_ID)")
        A("s_load_dwordx16 s[8:23], s[0:1], 0")
        A("s_load_dwordx8 s[24:31], s[0:1], 64")
        A("s_load_dwordx2 s[32:33], s[0:1], 96")
        A("v_lshrrev_b32 v1, 6, v0")
        A("v_and_b32 v0, 63, v0")
        A("v_readfirstlane_b32 s3, v1")
        C("decode wg -> b (s4), hkv (s5), c (s6), pair (s7), f = hkv*4+c (s34)")
        A("s_lshr_b32 s4, s2, 3")
        A("s_lshr_b32 s5, s4, 3")
        A("s_and_b32 s4, s4, 7")
        A("s_lshl_b32 s5, s5, 1")
        if self.cmap == 3:
            A("s_mov_b32 s5, s4")
            A("s_and_b32 s4, s2, 7")
            A("s_lshr_b32 s6, s2, 6")
        elif self.cmap == 2:
            A("s_and_b32 s5, s2, 7")
            A("s_lshr_b32 s6, s2, 6")
        elif self.cmap:
            A("s_and_b32 s6, s2, 1")
            A("s_add_u32 s5, s5, s6")
            A("s_bfe_u32 s6, s2, 0x20001")
        else:
            A("s_bfe_u32 s6, s2, 0x10002")
            A("s_add_u32 s5, s5, s6")
            A("s_and_b32 s6, s2, 3")
        A("s_lshl_b32 s7, s4, 3")
        A("s_add_u32 s7, s7, s5")
        A("s_lshl_b32 s34, s6, 3")
        if self.bal:
            A("s_xor_b32 s35, s5, 4")
            A("s_add_u32 s34, s34, s35")
        else:
            A("s_add_u32 s34, s34, s5")
        A("s_sub_u32 s34, s34, 4")
        A(f"s_mul_i32 s98, s4, {self.spread}")
        A("s_mov_b32 s56, 0x05040100")
        A("s_mov_b32 s57, 0x07060302")
        A("v_and_b32 v2, 15, v0")
        A("v_lshrrev_b32 v3, 4, v0")
        A("s_cmp_ge_u32 s3, 4")
        A("s_cbranch_scc1 L_service")
        self.stream()
        self.service()
        self.label("L_end")
        A("s_endpgm")
        self.L.append('.section .rodata,"a"')
        self.L.append(".p2align 6")
        self.L.append(f".amdhsa_kernel {NAME}_kernel")
        self.L.append("  .amdhsa_next_free_vgpr 256")
        self.L.append("  .amdhsa_next_free_sgpr 102")
        self.L.append("  .amdhsa_accum_offset 256")
        self.L.append("  .amdhsa_group_segment_fixed_size 0")
        self.L.append("  .amdhsa_kernarg_size 104")
        self.L.append("  .amdhsa_user_sgpr_count 2")
        self.L.append("  .amdhsa_user_sgpr_kernarg_segment_ptr 1")
        self.L.append("  .amdhsa_system_sgpr_workgroup_id_x 1")
        self.L.append("  .amdhsa_float_denorm_mode_32 3")
        self.L.append(".end_amdhsa_kernel")
        return "\n".join(self.L) + "\n"

    def stream(self):
        A, C = self.A, self.C
        D, R = self.D, self.R
        C("================= stream waves (0..3) =================")
        vK, vV, vSC, vP, vFL, vW2, vT = 4, 5, 6, 7, 8, 9, 10
        QF = 16
        DK = 48
        ACC = 16
        TP = 48
        PF = 80
        RING = 88
        assert RING + 4 * R <= 256
        A("v_and_b32 v10, 7, v0")
        A("v_lshrrev_b32 v11, 3, v0")
        A("v_lshlrev_b32 v4, 9, v11")
        A("v_lshl_add_u32 v4, v10, 4, v4")
        A("s_lshl_b32 s35, s3, 12")
        A("v_add_u32 v4, s35, v4")
        A("v_lshlrev_b32 v5, 4, v0")
        A("s_lshl_b32 s35, s3, 13")
        A("v_add_u32 v5, s35, v5")
        A("s_lshl_b32 s35, s7, 21")
        A(f"s_lshl_b32 s36, s6, {15 if self.ilv else 19}")
        A("s_add_u32 s35, s35, s36")
        A("s_waitcnt lgkmcnt(0)")
        self.wsadj()
        ksz = 0x200000 - 3 * 32768 if self.ilv else 0x80000
        self.srd(36, 10, ksz, 35)
        self.srd(40, 12, ksz, 35)
        self.srd(44, 24, 1792 * 896)
        loads = []
        for nb in range(32):
            for j in range(4):
                loads.append(("K", nb, j))
        RS = self.RS
        NP = (16 - RS) * 16
        vTK, vPM, vPB, vTA, vVL = 6, 12, 13, 14, 15
        for nu in range(RS):
            for i in range(8):
                loads.append(("V", nu, i))
            if nu in (self.w2pos, self.w2pos + 1):
                for i in range(8):
                    loads.append(("W", nu - self.w2pos, i))
        free = list(range(R))
        slot_of = {}
        order = []
        st = {"soff": None}

        def sreg(slot):
            return RING + 4 * slot

        def set_soff(val):
            if st["soff"] != val:
                A(f"s_mov_b32 s48, {val}")
                st["soff"] = val

        cur = {"D": D}

        cur["landed"] = -1

        def vmwait(n):
            idx = len(order) - n - 1
            if idx > cur["landed"]:
                A(f"s_waitcnt vmcnt({n})")
                cur["landed"] = idx

        def pace():
            d = cur["D"]
            if self.Dh and (len(order) & 1):
                d -= 1
            if len(order) >= d:
                vmwait(d - 1)

        def ticket(sd):
            A(f"s_mov_b32 s{sd}, 1")
            A(f"s_atomic_add s{sd}, s[94:95], 0 glc")

        def issue(ld):
            pace()
            slot = free.pop(0)
            slot_of[ld] = slot
            r = sreg(slot)
            kind, a, b = ld
            if kind == "K":
                set_soff(((a >> 1) * 131072 + (a & 1) * 16384) if self.ilv else a * 16384)
                A(f"buffer_load_dwordx4 v[{r}:{r + 3}], v{vK}, s[36:39], s48 offen offset:{b * 128} {self.knt}")
            elif kind == "V":
                set_soff(a * (131072 if self.ilv else 32768) + (b >> 2) * 4096)
                A(f"buffer_load_dwordx4 v[{r}:{r + 3}], v{vV}, s[40:43], s48 offen offset:{(b & 3) * 1024} {self.vnt}")
            elif kind == "W":
                A(f"s_add_u32 s48, s49, {(a * 32 + (b & 4)) * 896}")
                st["soff"] = None
                A("s_mov_b64 exec, s[52:53]")
                A(f"buffer_load_dwordx4 v[{r}:{r + 3}], v{vW2}, s[44:47], s48 offen offset:{(b & 3) * 896} {self.wnt}")
                A("s_mov_b64 exec, -1")
            order.append(ld)

        def waitfor(ld):
            vmwait(len(order) - 1 - order.index(ld))

        nxt = [0]

        def issue_next(k=1):
            for _ in range(k):
                if nxt[0] < len(loads) and free:
                    issue(loads[nxt[0]])
                    nxt[0] += 1

        issue_next(D)
        C("score write address: L_SC + (wave*8 + (l>>3))*4")
        A("s_lshl_b32 s35, s3, 5")
        A("v_lshrrev_b32 v10, 3, v0")
        A(f"v_lshl_add_u32 v{vSC}, v10, 2, s35")
        C("P frag address: combo = rho>>2 = 2*half+h ; active iff (g&1)==half")
        A("v_lshrrev_b32 v10, 2, v2")
        A("v_and_b32 v11, 1, v10")
        A("v_lshrrev_b32 v12, 1, v10")
        A("v_and_b32 v13, 1, v3")
        A("v_lshrrev_b32 v14, 1, v3")
        A("v_lshlrev_b32 v11, 5, v11")
        A("v_lshl_add_u32 v11, v14, 4, v11")
        A("s_lshl_b32 s35, s3, 6")
        A(f"s_add_u32 s35, s35, {L_P}")
        A(f"v_add_u32 v11, s35, v11")
        A(f"v_mov_b32 v10, {L_ZERO}")
        A("v_cmp_eq_u32 vcc, v12, v13")
        A("s_nop 1")
        A(f"v_cndmask_b32 v{vP}, v10, v11, vcc")
        A(f"v_mov_b32 v{vFL}, {L_FLAG}")
        C("w2 lane offset: g*8*896 + wave*256 + j*16 ; s49 = f*56*896")
        A(f"v_mul_u32_u24 v{vW2}, {8 * 896}, v3")
        A(f"v_lshl_add_u32 v{vW2}, v2, 4, v{vW2}")
        A("s_lshl_b32 s35, s3, 8")
        A(f"v_add_u32 v{vW2}, s35, v{vW2}")
        A(f"s_max_i32 s49, s34, 0")
        A(f"s_mul_i32 s49, s49, {64 * 896}")
        C("exec mask for the w2 loads: wave 3 covers only 64 columns; no FFN slice -> skip via 0-size SRD")
        A("s_mov_b64 s[52:53], -1")
        A("s_cmp_eq_u32 s3, 3")
        A("s_cselect_b32 s52, 0x00ff00ff, s52")
        A("s_cselect_b32 s53, 0x00ff00ff, s53")
        A("s_cmp_lt_i32 s34, 0")
        A("s_cselect_b32 s46, 0, s46")
        A("v_and_b32 v10, 7, v0")
        A("v_lshlrev_b32 v15, 4, v10")
        A("s_barrier")
        M = self.margin

        def progress_flag(off):
            A("v_mov_b32 v10, 1")
            A(f"ds_write_b32 v{vFL}, v10 offset:{off}")

        issue_next(R - self.kmargin - D)
        progress_flag(16)
        issue_next(R)
        self.stamp(1)
        self.lds_spin(vFL, 4, 1, 10, 50)
        self.stamp(2)
        for j in range(4):
            for h in range(2):
                r = QF + 8 * j + 4 * h
                A(f"ds_read_b128 v[{r}:{r + 3}], v15 offset:{L_Q + 512 * h + 128 * j}")
        A("s_waitcnt lgkmcnt(0)")

        def k_post(nb):
            d = DK + 2 * (nb & 1)
            for ctrl in ("quad_perm:[1,0,3,2]", "quad_perm:[2,3,0,1]", "row_half_mirror"):
                for h in range(2):
                    A(f"v_add_f32_dpp v{d + h}, v{d + h}, v{d + h} {ctrl} row_mask:0xf bank_mask:0xf")
                A("s_nop 0")
            A(f"v_cvt_pk_bf16_f32 v10, v{d}, v{d + 1}")
            A(f"ds_write_b32 v{vSC}, v10 offset:{L_SC + nb * 128}")

        since = [0]
        eager = [self.eager]

        def feed(e, ratio):
            want = e + 1 + cur["D"]
            if nxt[0] < want:
                issue_next(want - nxt[0])
                since[0] = 0
            else:
                since[0] += 1
                if since[0] >= ratio or eager[0] > 0:
                    n0 = nxt[0]
                    issue_next(2 if eager[0] > 0 else 1)
                    eager[0] -= nxt[0] - n0
                    since[0] = 0

        for nb in range(32):
            d = DK + 2 * (nb & 1)
            for j in range(4):
                ld = ("K", nb, j)
                feed(loads.index(ld), 3)
                waitfor(ld)
                r = sreg(slot_of[ld])
                for e in range(4):
                    for h in range(2):
                        c = "0" if (j == 0 and e == 0) else f"v{d + h}"
                        A(f"v_dot2_f32_bf16 v{d + h}, v{r + e}, v{QF + 8 * j + 4 * h + e}, {c}")
                free.append(slot_of[ld])
                if j == 0 and nb > 0:
                    k_post(nb - 1)
        A("s_nop 3")
        k_post(31)
        A("v_mov_b32 v10, 1")
        A("s_waitcnt lgkmcnt(0)")
        A("s_mov_b64 exec, 1")
        A(f"ds_add_u32 v{vFL}, v10 offset:8")
        A("s_mov_b64 exec, -1")
        self.stamp(3)
        cur["D"] = D = self.DV
        issue_next(len(free) - M)
        progress_flag(20)
        issue_next(R)
        for r in range(32):
            A(f"v_mov_b32 v{ACC + r}, 0")
        self.stamp(4)
        self.lds_spin(vFL, 12, 1, 10, 50)
        self.stamp(5)
        A(f"ds_read_b32 v10, v{vFL} offset:32")
        A("s_waitcnt lgkmcnt(0)")
        A("v_readfirstlane_b32 s97, v10")
        A(f"ds_read_b128 v[{PF}:{PF + 3}], v{vP} offset:0")
        eager[0] = self.eager
        w2_frag = {}
        if self.dyn:
            C("dynamic-phase registers")
            A(f"v_cmp_gt_u32 vcc, {L_ZERO}, v{vP}")
            A("s_lshl_b32 s35, s3, 6")
            A(f"s_add_u32 s35, s35, {L_P}")
            A(f"v_cndmask_b32 v{vPM}, 0, -1, vcc")
            A(f"v_and_b32 v{vPB}, s35, v{vPM}")
            A(f"v_sub_u32 v{vPB}, v{vP}, v{vPB}")
            A("s_lshl_b32 s35, s7, 7")
            A(f"s_add_u32 s35, s35, {W_TK}")
            A("s_add_u32 s94, s32, s35")
            A("s_addc_u32 s95, s33, 0")
            A(f"v_lshlrev_b32 v{vVL}, 4, v0")
            A("s_lshl_b32 s35, s7, 21")
            self.srd(36, 12, 0x200000, 35)

        def pair(kind, a, r, dsts):
            l0, l1 = (kind, a, 2 * r), (kind, a, 2 * r + 1)
            feed(loads.index(l1), 2)
            waitfor(l1)
            s0, s1 = sreg(slot_of[l0]), sreg(slot_of[l1])
            for t in range(8):
                sel = "s56" if (t & 1) == 0 else "s57"
                A(f"v_perm_b32 v{dsts[t] + r}, v{s1 + (t >> 1)}, v{s0 + (t >> 1)}, {sel}")
            free.append(slot_of[l0])
            free.append(slot_of[l1])

        NST = RS - 1 if self.dyn else 16
        for nu in range(NST):
            if self.DE and nu >= 16 - self.NE:
                cur["D"] = self.DE
            if self.dyn and nu == RS - 4:
                progress_flag(28)
            if self.dyn and nu == RS - 2:
                ticket(96)
            pf = PF + 4 * (nu & 1)
            for r in range(4):
                pair("V", nu, r, [TP + 4 * t for t in range(8)])
            A("s_waitcnt lgkmcnt(0)")
            if nu + 1 < NST:
                pn = PF + 4 * ((nu + 1) & 1)
                A(f"ds_read_b128 v[{pn}:{pn + 3}], v{vP} offset:{(nu + 1) * 256}")
            for t in range(8):
                a = ACC + 4 * t
                A(f"v_mfma_f32_16x16x32_bf16 v[{a}:{a + 3}], v[{pf}:{pf + 3}], v[{TP + 4 * t}:{TP + 4 * t + 3}], v[{a}:{a + 3}]")
            if nu in (self.w2pos, self.w2pos + 1):
                a = nu - self.w2pos
                assert len(free) >= 8
                outs = [sreg(free.pop()) for _ in range(8)]
                for t in range(8):
                    w2_frag[(a, t)] = outs[t]
                for r in range(4):
                    pair("W", a, r, outs)
        if self.dyn:
            C("---- dynamic phase: units drawn from the cluster's pool ----")
            issue_next(16)
            assert nxt[0] == len(loads)
            sl = [sreg(slot_of[("V", RS - 1, i)]) for i in range(8)]
            self.stamp(9)
            self.lds_spin(vFL, 24, 1, 10, 50)
            self.stamp(10)
            A("s_mov_b32 s82, 0")
            A("s_mov_b32 s83, 0")
            A("s_lshl_b32 s54, s3, 6")
            A(f"s_add_u32 s54, s54, {L_P + (RS - 1) * 256}")
            self.label("L_dyn")
            A("s_mov_b32 s50, s96")
            A("s_add_u32 s82, s82, 1")
            A(f"v_and_b32 v10, s54, v{vPM}")
            A(f"v_add_u32 v10, v10, v{vPB}")
            A(f"ds_read_b128 v[{PF}:{PF + 3}], v10")
            ticket(96)
            A("s_lshl_b32 s54, s50, 6")
            A(f"s_add_u32 s54, s54, {L_PP}")
            A("s_lshl_b32 s48, s50, 13")
            A(f"s_add_u32 s48, s48, {RS * 131072}")
            A(f"s_cmp_lt_u32 s50, {NP}")
            A("s_cselect_b32 s48, s48, 0x7fff0000")
            A("s_cselect_b32 s55, 1, 0")
            A("s_add_u32 s51, s48, 4096")
            for r in range(4):
                A("s_waitcnt vmcnt(6)")
                s0, s1 = sl[2 * r], sl[2 * r + 1]
                for t in range(8):
                    sel = "s56" if (t & 1) == 0 else "s57"
                    A(f"v_perm_b32 v{TP + 4 * t + r}, v{s1 + (t >> 1)}, v{s0 + (t >> 1)}, {sel}")
                for i in (2 * r, 2 * r + 1):
                    so = "s48" if i < 4 else "s51"
                    A(f"buffer_load_dwordx4 v[{sl[i]}:{sl[i] + 3}], v{vVL}, s[36:39], {so} offen offset:{(i & 3) * 1024} {self.vnt}")
            A("s_waitcnt lgkmcnt(0)")
            for t in range(8):
                a = ACC + 4 * t
                A(f"v_mfma_f32_16x16x32_bf16 v[{a}:{a + 3}], v[{PF}:{PF + 3}], v[{TP + 4 * t}:{TP + 4 * t + 3}], v[{a}:{a + 3}]")
            A("s_cmp_eq_u32 s55, 1")
            A("s_cbranch_scc1 L_dyn")
        self.stamp(6)
        C("---- tail: write acc to LDS: lane (j,g): combo g, cols j*8..+8 -> [h][256] layout")
        A("v_and_b32 v10, 1, v3")
        A("v_lshrrev_b32 v11, 1, v3")
        A("v_lshlrev_b32 v10, 10, v10")
        A("v_lshl_add_u32 v10, v11, 9, v10")
        A("v_lshl_add_u32 v10, v2, 5, v10")
        A("s_lshl_b32 s35, s3, 11")
        A("v_add_u32 v10, s35, v10")
        A("s_nop 2")
        for t in range(8):
            A(f"v_mov_b32 v{TP + t}, v{ACC + 4 * t}")
        A(f"ds_write_b128 v10, v[{TP}:{TP + 3}] offset:{L_ACC}")
        A(f"ds_write_b128 v10, v[{TP + 4}:{TP + 7}] offset:{L_ACC + 16}")
        A("s_waitcnt lgkmcnt(0)")
        A("s_barrier")
        C("P1/P2: waves 0,1: lane t=wave*64+l handles cols 4t..4t+3")
        A("s_cmp_ge_u32 s3, 2")
        A("s_cbranch_scc1 L_st_skip1")
        A("s_lshl_b32 s35, s3, 10")
        A("v_lshl_add_u32 v10, v0, 4, s35")
        for w in range(4):
            A(f"ds_read_b128 v[{ACC + 4 * w}:{ACC + 4 * w + 3}], v10 offset:{L_ACC + 2048 * w}")
        A("s_lshl_b32 s35, s7, 13")
        A(f"s_add_u32 s35, s35, {W_OP}")
        A("s_add_u32 s35, s35, s98")
        self.srd(36, 32, 0x2000, 35)
        A("s_lshl_b32 s48, s6, 11")
        A("s_waitcnt lgkmcnt(0)")
        for e in range(4):
            A(f"v_add_f32 v{ACC + e}, v{ACC + e}, v{ACC + 4 + e}")
            A(f"v_add_f32 v{ACC + 8 + e}, v{ACC + 8 + e}, v{ACC + 12 + e}")
        for e in range(4):
            A(f"v_add_f32 v{ACC + e}, v{ACC + e}, v{ACC + 8 + e}")
        for e in range(4):
            A(f"v_min_u32 v{ACC + e}, -2, v{ACC + e}")
        A("s_cmp_lg_u32 s97, 0")
        A("s_cbranch_scc1 L_st_far")
        A(f"buffer_store_dwordx4 v[{ACC}:{ACC + 3}], v10, s[36:39], s48 offen {self.opst}")
        A("s_branch L_st_stored")
        self.label("L_st_far")
        A(f"buffer_store_dwordx4 v[{ACC}:{ACC + 3}], v10, s[36:39], s48 offen sc1")
        self.label("L_st_stored")
        A("v_add_u32 v11, 0x1000, v10")
        lds = []
        for cc in range(4):
            r = ACC + 16 + 4 * cc
            va = "v10" if cc < 2 else "v11"
            lds.append(f"buffer_load_dwordx4 v[{r}:{r + 3}], {va}, s[36:39], 0 offen offset:{(cc & 1) * 2048} sc1")
        self.poll_sentinel(lds, [ACC + 16 + i for i in range(16)], 12, 50, retry_sleep=self.tsleep)
        self.stamp(7)
        b = ACC + 16
        for e in range(4):
            A(f"v_add_f32 v{b + e}, v{b + e}, v{b + 4 + e}")
            A(f"v_add_f32 v{b + 8 + e}, v{b + 8 + e}, v{b + 12 + e}")
        for e in range(4):
            A(f"v_add_f32 v{b + e}, v{b + e}, v{b + 8 + e}")
        A(f"v_cvt_pk_bf16_f32 v12, v{b}, v{b + 1}")
        A(f"v_cvt_pk_bf16_f32 v13, v{b + 2}, v{b + 3}")
        A("v_lshrrev_b32 v10, 1, v10")
        A(f"ds_write_b64 v10, v[12:13] offset:{L_O}")
        A("s_waitcnt lgkmcnt(0)")
        self.label("L_st_skip1")
        A("s_barrier")
        C("b1 preload: lane k<56 b1[56f+k]")
        self.srd(36, 22, 1792 * 2)
        A("s_max_i32 s48, s34, 0")
        A("s_lshl_b32 s48, s48, 7")
        A("v_lshlrev_b32 v10, 1, v0")
        A("buffer_load_ushort v14, v10, s[36:39], s48 offen")
        A("s_barrier")
        A("s_barrier")
        A("s_barrier")
        A("s_cmp_lt_i32 s34, 0")
        A("s_cbranch_scc1 L_st_end")
        C("h1: lane k: sum R1[w][k], +b1, relu^2 -> private LDS row, then A frags")
        A("v_lshlrev_b32 v10, 2, v0")
        for w in range(4):
            A(f"ds_read_b32 v{ACC + w}, v10 offset:{L_R1 + 256 * w}")
        A("s_lshl_b32 s35, s3, 7")
        A(f"s_add_u32 s35, s35, {L_H1}")
        A("v_lshl_add_u32 v11, v0, 1, s35")
        A("v_lshl_add_u32 v12, v3, 4, s35")
        A("s_waitcnt vmcnt(0) lgkmcnt(0)")
        A(f"v_add_f32 v{ACC}, v{ACC}, v{ACC + 1}")
        A(f"v_add_f32 v{ACC + 2}, v{ACC + 2}, v{ACC + 3}")
        A(f"v_add_f32 v{ACC}, v{ACC}, v{ACC + 2}")
        A("v_lshlrev_b32 v14, 16, v14")
        A(f"v_cvt_pk_bf16_f32 v{ACC}, v{ACC}, v{ACC}")
        A(f"v_lshlrev_b32 v{ACC}, 16, v{ACC}")
        A(f"v_add_f32 v{ACC}, v{ACC}, v14")
        A(f"v_cvt_pk_bf16_f32 v{ACC}, v{ACC}, v{ACC}")
        A(f"v_lshlrev_b32 v{ACC}, 16, v{ACC}")
        A(f"v_max_f32 v{ACC}, 0, v{ACC}")
        A(f"v_mul_f32 v{ACC}, v{ACC}, v{ACC}")
        A(f"v_cvt_pk_bf16_f32 v{ACC}, v{ACC}, v{ACC}")
        A(f"ds_write_b16 v11, v{ACC}")
        A("s_waitcnt lgkmcnt(0)")
        A(f"ds_read_b128 v[{PF}:{PF + 3}], v12")
        A(f"ds_read_b128 v[{PF + 4}:{PF + 7}], v12 offset:64")
        C("FP[b][f] row: 448 f32")
        A("s_lshl_b32 s35, s4, 5")
        A("s_add_u32 s35, s35, s34")
        A("s_mul_i32 s35, s35, 1792")
        A(f"s_add_u32 s35, s35, {W_FP}")
        A("s_add_u32 s35, s35, s98")
        self.srd(36, 32, 1792, 35)
        A("s_lshl_b32 s35, s3, 9")
        A("v_lshl_add_u32 v10, v2, 5, s35")
        A("s_waitcnt lgkmcnt(0)")
        for a in range(2):
            for t in range(8):
                d = ACC + 4 * t
                fr = w2_frag[(a, t)]
                c = "0" if a == 0 else f"v[{d}:{d + 3}]"
                A(f"v_mfma_f32_16x16x32_bf16 v[{d}:{d + 3}], v[{PF + 4 * a}:{PF + 4 * a + 3}], v[{fr}:{fr + 3}], {c}")
        A("s_nop 1")
        for t in range(8):
            A(f"v_min_u32 v{TP + t}, -2, v{ACC + 4 * t}")
            if t < 7:
                pass
        A("s_mov_b64 exec, 0xffff")
        A(f"buffer_store_dwordx4 v[{TP}:{TP + 3}], v10, s[36:39], 0 offen {self.apst}")
        A(f"buffer_store_dwordx4 v[{TP + 4}:{TP + 7}], v10, s[36:39], 0 offen offset:16 {self.apst}")
        A("s_mov_b64 exec, -1")
        self.label("L_st_end")
        self.stamp(8)
        self.dump_stamps(12, 10)
        A("s_endpgm")

    def service(self):
        A, C = self.A, self.C
        self.label("L_service")
        C("================= service waves (4..7), s3 -> 0..3 in s35 =================")
        WO = 64
        W1 = 192
        ST = 16
        A("s_sub_u32 s35, s3, 4")
        A("v_cmp_gt_u32 s[52:53], 56, v0")
        A("v_lshlrev_b32 v4, 4, v0")
        A(f"v_mov_b32 v5, {L_FLAG}")
        A("v_mov_b32 v8, 0")
        A("v_mov_b32 v9, 0")
        A("v_mov_b32 v10, 0")
        A("v_mov_b32 v11, 0")
        A("s_waitcnt lgkmcnt(0)")
        self.wsadj()
        C("x rows 2s, 2s+1")
        self.srd(36, 8, 8 * 896)
        A("s_mul_i32 s48, s35, 1792")
        self.epoch_load()
        A(f"buffer_load_dwordx4 v[{ST}:{ST + 3}], v4, s[36:39], s48 offen")
        A(f"buffer_load_dwordx4 v[{ST + 4}:{ST + 7}], v4, s[36:39], s48 offen offset:896")
        A("s_cmp_lg_u32 s35, 0")
        A("s_cbranch_scc1 L_sv_nowq")
        C("S0: wq loads into WO area (free for now): 56 x dword; n16 = (wg&7)*32 + (wg>>3) in s54")
        self.srd(40, 14, 448 * 8192)
        A("s_and_b32 s54, s2, 7")
        if self.bal:
            A("s_mov_b32 s49, 20")
        else:
            A("s_lshl_b32 s49, s54, 2")
        A("s_lshr_b32 s48, s2, 3")
        A("s_add_u32 s49, s49, s48")
        A("s_and_b32 s49, s49, 31")
        A("s_lshl_b32 s54, s54, 5")
        A("s_add_u32 s54, s54, s49")
        A("v_lshrrev_b32 v6, 3, v2")
        A("v_mul_u32_u24 v6, 224, v6")
        A("v_lshl_add_u32 v6, v3, 3, v6")
        A("v_lshlrev_b32 v6, 13, v6")
        A("v_and_b32 v7, 7, v2")
        A("v_lshl_add_u32 v6, v7, 2, v6")
        A("s_lshl_b32 s48, s54, 5")
        for kk in range(7):
            for i in range(8):
                r = WO + kk * 8 + i
                A(f"s_add_u32 s49, s48, {(kk * 32 + i) * 8192}")
                A(f"buffer_load_dword v{r}, v6, s[40:43], s49 offen {self.qnt}")
        C("flags = 0, HN tail = 0")
        A("ds_write_b128 v5, v[8:11]")
        A("ds_write_b128 v5, v[8:11] offset:16")
        A(f"ds_write_b128 v4, v[8:11] offset:{L_HN}")
        self.label("L_sv_nowq")
        A("s_cmp_lg_u32 s35, 1")
        A("s_cbranch_scc1 L_sv_noclr")
        if self.now & 2:
            A("s_branch L_sv_noclr")
        C("S1: clear own hand-off slots with the sentinel")
        A("v_mov_b32 v12, -1")
        A("v_mov_b32 v13, -1")
        A("v_mov_b32 v14, -1")
        A("v_mov_b32 v15, -1")
        A("s_lshl_b32 s48, s7, 13")
        A("s_lshl_b32 s49, s6, 11")
        A("s_add_u32 s48, s48, s49")
        A(f"s_add_u32 s48, s48, {W_OP}")
        A("s_add_u32 s48, s48, s98")
        self.srd(44, 32, 2048, 48)
        A("buffer_store_dwordx4 v[12:15], v4, s[44:47], 0 offen sc1")
        A("buffer_store_dwordx4 v[12:15], v4, s[44:47], 0 offen offset:1024 sc1")
        A("s_lshl_b32 s48, s7, 7")
        A("s_lshl_b32 s49, s6, 4")
        A("s_add_u32 s48, s48, s49")
        A(f"s_add_u32 s48, s48, {W_ST}")
        A("s_add_u32 s48, s48, s98")
        self.srd(44, 32, 16, 48)
        A("buffer_store_dwordx4 v[12:15], v4, s[44:47], 0 offen sc1")
        A("s_mul_i32 s48, s7, 1792")
        A("s_lshl_b32 s49, s6, 9")
        A("s_add_u32 s48, s48, s49")
        A(f"s_add_u32 s48, s48, {W_AP}")
        A("s_add_u32 s48, s48, s98")
        self.srd(44, 32, 512, 48)
        A("s_cmp_eq_u32 s6, 3")
        A("s_cselect_b32 s46, 256, s46")
        A("buffer_store_dwordx4 v[12:15], v4, s[44:47], 0 offen sc1")
        A("s_max_i32 s49, s34, 0")
        A("s_lshl_b32 s48, s4, 5")
        A("s_add_u32 s48, s48, s49")
        A("s_mul_i32 s48, s48, 1792")
        A(f"s_add_u32 s48, s48, {W_FP}")
        A("s_add_u32 s48, s48, s98")
        self.srd(44, 32, 1792, 48)
        A("s_cmp_lt_i32 s34, 0")
        A("s_cselect_b32 s46, 0, s46")
        A("buffer_store_dwordx4 v[12:15], v4, s[44:47], 0 offen sc1")
        A("buffer_store_dwordx4 v[12:15], v4, s[44:47], 0 offen offset:1024 sc1")
        if self.dyn:
            self.pp_addr(6, 48)
            A(f"s_mov_b64 exec, s[50:51]")
            for k in range(4):
                A(f"global_store_dwordx4 v6, v[12:15], s[32:33] offset:{16 * k} sc1")
            A("s_mov_b64 exec, -1")
        self.label("L_sv_noclr")
        C("zero region: each service wave clears 1 KiB")
        A("s_lshl_b32 s48, s35, 10")
        A("v_add_u32 v6, s48, v4")
        A(f"ds_write_b128 v6, v[8:11] offset:{L_ZERO}")
        A("s_waitcnt lgkmcnt(0)")
        A("s_barrier")
        A("s_add_u32 s93, s93, 1")
        C("LN1 of 2 rows")
        A("s_cmp_lg_u32 s35, 0")
        A("s_cbranch_scc1 L_sv_w0")
        A("s_waitcnt vmcnt(56)")
        A("s_branch L_sv_w1")
        self.label("L_sv_w0")
        A(f"s_waitcnt vmcnt({10 if self.dyn else 6})")
        A("s_cmp_eq_u32 s35, 1")
        A("s_cbranch_scc1 L_sv_w1")
        A("s_waitcnt vmcnt(0)")
        self.label("L_sv_w1")
        X0, X1 = 24, 32
        self.unpack8(ST, X0)
        self.unpack8(ST + 4, X1)
        self.layernorm([([X0 + e for e in range(8)], ST), ([X1 + e for e in range(8)], ST + 4)], 52, 40)
        A("s_mul_i32 s48, s35, 1792")
        A("v_add_u32 v6, s48, v4")
        A("s_mov_b64 exec, s[52:53]")
        A(f"ds_write_b128 v6, v[{ST}:{ST + 3}] offset:{L_XN}")
        A(f"ds_write_b128 v6, v[{ST + 4}:{ST + 7}] offset:{L_XN + 896}")
        A("v_mov_b32 v7, 1")
        A("s_waitcnt lgkmcnt(0)")
        A("s_mov_b64 exec, 1")
        A("ds_add_u32 v5, v7")
        A("s_mov_b64 exec, -1")
        A("s_cmp_eq_u32 s35, 0")
        A("s_cbranch_scc1 L_sv_q")
        A("s_cmp_lg_u32 s35, 1")
        A("s_cbranch_scc1 L_sv_weights")
        C("S1: arrival flag (slots cleared; every service wave read the epoch before B0)")
        if self.dyn:
            A("s_cmp_lg_u32 s6, 0")
            A("s_cbranch_scc1 L_sv_notk")
            A("s_lshl_b32 s48, s7, 7")
            A(f"s_add_u32 s48, s48, {W_TK}")
            A("v_mov_b32 v6, s48")
            A("v_mov_b32 v7, 0")
            A("s_mov_b64 exec, 1")
            A("global_store_dword v6, v7, s[32:33] sc1")
            A("s_mov_b64 exec, -1")
            self.label("L_sv_notk")
        A("s_lshl_b32 s48, s4, 5")
        A("s_add_u32 s48, s48, s34")
        A("s_add_u32 s48, s48, 4")
        A("s_lshl_b32 s48, s48, 3")
        A(f"s_add_u32 s48, s48, {W_AR}")
        A("v_mov_b32 v6, s48")
        A("v_mov_b32 v12, s92")
        A("v_mov_b32 v13, s93")
        A("s_waitcnt vmcnt(0)")
        A("s_mov_b64 exec, 1")
        A("global_store_dwordx2 v6, v[12:13], s[32:33] sc1")
        A("s_mov_b64 exec, -1")
        A("s_branch L_sv_weights")
        self.label("L_sv_q")
        C("---- S0: q for 16 columns x 8 batches ----")
        QB = WO + 64
        A("v_mov_b32 v62, s92")
        A("v_mov_b32 v63, s93")
        A("s_mov_b32 s55, 0x05040302")
        C("A frag address: (rho&7)*896 + (rho>>3)*448 + g*16 (+kk*64)")
        A("v_and_b32 v6, 7, v2")
        A("v_mul_u32_u24 v6, 896, v6")
        A("v_lshl_add_u32 v6, v3, 4, v6")
        A("v_lshrrev_b32 v7, 3, v2")
        A("v_mul_u32_u24 v7, 448, v7")
        A("v_add_u32 v6, v6, v7")
        for kk in range(7):
            A(f"s_waitcnt vmcnt({48 - 8 * kk})")
            for u in range(2):
                dst = QB + kk * 8 + u * 4
                sel = "s56" if u == 0 else "s57"
                for r in range(4):
                    A(f"v_perm_b32 v{dst + r}, v{WO + kk * 8 + 2 * r + 1}, v{WO + kk * 8 + 2 * r}, {sel}")
        self.lds_spin(5, 0, 4, 12, 50)
        for kk in range(7):
            A(f"ds_read_b128 v[{ST + 4 * kk}:{ST + 4 * kk + 3}], v6 offset:{L_XN + 64 * kk}")
        C("QG store addressing: (4g+r)*32768 + n16*128 + jj*16")
        A(f"s_mov_b32 s48, {W_QG}")
        QS = 32768 + self.spread
        self.srd(44, 32, 8 * QS, 48)
        A(f"s_mov_b32 s49, {4 * QS}")
        A("v_mul_lo_u32 v6, s49, v3")
        A("v_lshl_add_u32 v6, v2, 4, v6")
        A("s_lshl_b32 s48, s54, 7")
        DQ = 48
        for kk in range(7):
            A(f"s_waitcnt lgkmcnt({6 - kk})")
            for u in range(2):
                d = DQ + 4 * u
                fr = QB + kk * 8 + u * 4
                c = "0" if kk == 0 else f"v[{d}:{d + 3}]"
                A(f"v_mfma_f32_16x16x32_bf16 v[{d}:{d + 3}], v[{ST + 4 * kk}:{ST + 4 * kk + 3}], v[{fr}:{fr + 3}], {c}")
        A("s_nop 7")
        A("s_nop 1")
        for e in range(8):
            A(f"v_mov_b32_dpp v{ST + e}, v{DQ + e} row_ror:8 row_mask:0xf bank_mask:0xf")
        A("s_nop 1")
        for e in range(8):
            A(f"v_permlane32_swap_b32 v{ST + e}, v{ST + 8 + e}")
        A("s_nop 1")
        for e in range(8):
            A(f"v_add_f32 v{DQ + e}, v{DQ + e}, v{ST + 8 + e}")
        for r in range(4):
            o = ST + 16 + 4 * r
            A(f"v_cvt_pk_bf16_f32 v{ST + r}, v{DQ + r}, v{DQ + 4 + r}")
            A(f"v_perm_b32 v{o}, v62, v{ST + r}, s56")
            A(f"v_mov_b32 v{o + 1}, v63")
            A(f"v_perm_b32 v{o + 2}, v62, v{ST + r}, s55")
            A(f"v_mov_b32 v{o + 3}, v63")
        A("s_mov_b64 exec, 0x00ff00ff")
        for r in range(4):
            o = ST + 16 + 4 * r
            A(f"s_add_u32 s49, s48, {r * QS}")
            A(f"buffer_store_dwordx4 v[{o}:{o + 3}], v6, s[44:47], s49 offen sc1")
        A("s_mov_b64 exec, -1")
        self.stamp(1)
        C("gather q granules: QG[b][hkv*512 + 8l ..]")
        A("v_lshlrev_b32 v6, 6, v0")
        A("s_lshl_b32 s48, s4, 15")
        A("s_lshl_b32 s49, s5, 12")
        A("s_add_u32 s48, s48, s49")
        A("s_add_u32 s48, s48, s98")
        A("v_lshlrev_b32 v61, 16, v62")
        if self.margin:
            self.lds_spin(5, 16, 1, 12, 50)
        A(f"s_mov_b32 s51, {self.poll_cap}")
        self.label("L_sv_qpoll")
        for k in range(4):
            A(f"buffer_load_dwordx4 v[{ST + 4 * k}:{ST + 4 * k + 3}], v6, s[44:47], s48 offen offset:{16 * k} sc1")
        A("s_waitcnt vmcnt(0)")
        for k in range(8):
            A(f"v_xor_b32 v{48 + k}, v61, v{ST + 2 * k}")
        A("v_or3_b32 v12, v48, v49, v50")
        A("v_or3_b32 v12, v12, v51, v52")
        A("v_or3_b32 v12, v12, v53, v54")
        A("v_or_b32 v12, v12, v55")
        A("v_lshrrev_b32 v12, 16, v12")
        for k in range(8):
            A(f"v_xor_b32 v{48 + k}, v63, v{ST + 2 * k + 1}")
        A("v_or3_b32 v12, v12, v48, v49")
        A("v_or3_b32 v12, v12, v50, v51")
        A("v_or3_b32 v12, v12, v52, v53")
        A("v_or3_b32 v12, v12, v54, v55")
        A("v_cmp_ne_u32 vcc, 0, v12")
        A("s_cbranch_vccz L_sv_qok")
        if self.qsleep:
            A(f"s_sleep {self.qsleep}")
        A("s_sub_u32 s51, s51, 1")
        A("s_cmp_lg_u32 s51, 0")
        A("s_cbranch_scc1 L_sv_qpoll")
        self.label("L_sv_qok")
        self.stamp(2)
        for k in range(4):
            A(f"v_perm_b32 v{48 + k}, v{ST + 4 * k + 2}, v{ST + 4 * k}, s56")
        self.label("L_sv_qskip")
        A(f"ds_write_b128 v4, v[48:51] offset:{L_Q}")
        A("v_mov_b32 v7, 1")
        A("s_waitcnt lgkmcnt(0)")
        A("ds_write_b32 v5, v7 offset:4")
        self.stamp(3)
        self.label("L_sv_weights")
        C("---- weights: wo frags (4 ksteps), w1 frags (4 ksteps) ----")
        if self.wdelay:
            self.lds_spin(5, 4, 1, 12, 50)
        if self.now & 1:
            A("s_branch L_sv_wskip")
        self.srd(40, 16, 4096 * 896)
        A(f"v_mul_u32_u24 v6, {8 * 896}, v3")
        A("v_lshl_add_u32 v6, v2, 4, v6")
        A("s_lshl_b32 s48, s5, 9")
        A("s_lshl_b32 s49, s35, 7")
        A("s_add_u32 s48, s48, s49")
        A("s_mul_i32 s48, s48, 896")
        A("s_lshl_b32 s49, s6, 8")
        A("s_add_u32 s48, s48, s49")
        A("s_cmp_eq_u32 s6, 3")
        A("s_cselect_b32 s50, 0x00ff00ff, -1")
        A("s_mov_b32 s51, s50")
        for kk in range(4):
            A("s_mov_b64 exec, s[50:51]")
            for i in range(8):
                if i % 4 == 0:
                    A(f"s_add_u32 s49, s48, {(kk * 32 + i) * 896}")
                r = ST + 4 * i
                if i >= self.wd:
                    A(f"s_waitcnt vmcnt({self.wd - 1})")
                A(f"buffer_load_dwordx4 v[{r}:{r + 3}], v6, s[40:43], s49 offen offset:{(i & 3) * 896} {self.wnt}")
            A("s_mov_b64 exec, -1")
            A("s_waitcnt vmcnt(0)")
            for c in range(4):
                for u in range(2):
                    dst = WO + kk * 32 + (2 * c + u) * 4
                    sel = "s56" if u == 0 else "s57"
                    for r in range(4):
                        A(f"v_perm_b32 v{dst + r}, v{ST + 4 * (2 * r + 1) + c}, v{ST + 4 * (2 * r) + c}, {sel}")
        self.srd(40, 20, 448 * 3584)
        A(f"v_mul_u32_u24 v6, {8 * 3584}, v3")
        A("v_lshl_add_u32 v6, v2, 3, v6")
        A(f"s_mul_i32 s48, s35, {32 * 3584}")
        A("s_cmp_lt_i32 s34, 0")
        A("s_cbranch_scc1 L_sv_wskip")
        A("s_lshl_b32 s49, s34, 7")
        A("s_add_u32 s48, s48, s49")
        for kp in range(2):
            for kk in (2 * kp, 2 * kp + 1):
                for i in range(8):
                    if i % 2 == 0:
                        A(f"s_add_u32 s49, s48, {(kk * 128 + i) * 3584}")
                    r = ST + (kk & 1) * 16 + 2 * i
                    if (kk & 1) * 8 + i >= 2 * self.wd:
                        A(f"s_waitcnt vmcnt({2 * self.wd - 1})")
                    A(f"buffer_load_dwordx2 v[{r}:{r + 1}], v6, s[40:43], s49 offen offset:{(i & 1) * 3584} {self.wnt}")
            A("s_waitcnt vmcnt(0)")
            for kk in (2 * kp, 2 * kp + 1):
                base = ST + (kk & 1) * 16
                for c in range(2):
                    for u in range(2):
                        dst = W1 + kk * 16 + (2 * c + u) * 4
                        sel = "s56" if u == 0 else "s57"
                        for r in range(4):
                            A(f"v_perm_b32 v{dst + r}, v{base + 2 * (2 * r + 1) + c}, v{base + 2 * (2 * r) + c}, {sel}")
        self.label("L_sv_wskip")
        C("workgroup 0 / S2: once all 256 arrival flags are in, advance the epoch")
        A("s_cmp_lg_u32 s2, 0")
        A("s_cbranch_scc1 L_sv_noepw")
        A("s_cmp_lg_u32 s35, 2")
        A("s_cbranch_scc1 L_sv_noepw")
        A(f"v_add_u32 v6, {W_AR}, v4")
        A(f"s_mov_b32 s51, {self.poll_cap}")
        self.label("L_sv_epoll")
        A("global_load_dwordx4 v[16:19], v6, s[32:33] sc1")
        A("global_load_dwordx4 v[20:23], v6, s[32:33] offset:1024 sc1")
        A("s_waitcnt vmcnt(0)")
        for k in range(4):
            A(f"v_xor_b32 v{16 + 2 * k}, s92, v{16 + 2 * k}")
            A(f"v_xor_b32 v{17 + 2 * k}, s93, v{17 + 2 * k}")
        A("v_or3_b32 v16, v16, v17, v18")
        A("v_or3_b32 v16, v16, v19, v20")
        A("v_or3_b32 v16, v16, v21, v22")
        A("v_or_b32 v16, v16, v23")
        A("v_cmp_ne_u32 vcc, 0, v16")
        A("s_cbranch_vccz L_sv_eok")
        A("s_sleep 16")
        A("s_sub_u32 s51, s51, 1")
        A("s_cmp_lg_u32 s51, 0")
        A("s_cbranch_scc1 L_sv_epoll")
        self.label("L_sv_eok")
        A(f"v_mov_b32 v6, {W_EP}")
        A("v_mov_b32 v7, s93")
        A("s_mov_b64 exec, 1")
        A("global_store_dword v6, v7, s[32:33] offset:4 sc1")
        A("s_mov_b64 exec, -1")
        self.label("L_sv_noepw")
        A("s_cmp_lg_u32 s35, 0")
        A("s_cbranch_scc1 L_sv_tail")
        C("---- S0: softmax stats, exchange, P ----")
        self.stamp(4)
        self.lds_spin(5, 8, 4, 12, 50)
        self.stamp(5)
        A("v_lshlrev_b32 v6, 6, v0")
        for k in range(4):
            A(f"ds_read_b128 v[{48 + 4 * k}:{48 + 4 * k + 3}], v6 offset:{L_SC + 16 * k}")
        A("s_lshl_b32 s48, s7, 7")
        A(f"s_add_u32 s48, s48, {W_ST}")
        A("s_add_u32 s48, s48, s98")
        self.srd(44, 32, 64, 48)
        A("s_mov_b32 s50, 0x3db8aa3b")
        A("s_waitcnt lgkmcnt(0)")
        H0, H1 = 16, 32
        for k in range(16):
            A(f"v_lshlrev_b32 v{H0 + k}, 16, v{48 + k}")
            A(f"v_and_b32 v{H1 + k}, 0xffff0000, v{48 + k}")
        for h, base in ((0, H0), (1, H1)):
            m = 8 + h
            A(f"v_max3_f32 v{m}, v{base}, v{base + 1}, v{base + 2}")
            for k in range(3, 15, 2):
                A(f"v_max3_f32 v{m}, v{m}, v{base + k}, v{base + k + 1}")
            A(f"v_max_f32 v{m}, v{m}, v{base + 15}")
        self.allreduce("max", [8, 9], [12, 13])
        for h, base in ((0, H0), (1, H1)):
            m = 8 + h
            sreg = 10 + h
            for k in range(16):
                A(f"v_sub_f32 v{48 + k}, v{base + k}, v{m}")
            for k in range(16):
                A(f"v_mul_f32 v{48 + k}, s50, v{48 + k}")
            for k in range(16):
                A(f"v_exp_f32 v{48 + k}, v{48 + k}")
            A("s_nop 0")
            A(f"v_add_f32 v{sreg}, v48, v49")
            for k in range(2, 16):
                A(f"v_add_f32 v{sreg}, v{sreg}, v{48 + k}")
        self.allreduce("add", [10, 11], [12, 13])
        C("publish (m0 | xcc, m1, l0, l1) = v8..v11 (m0 is a bf16 value: its low 16 bits are free)")
        A("s_getreg_b32 s91, hwreg(HW_REG_XCC_ID)")
        A("s_and_b32 s91, s91, 0xff")
        A("v_or_b32 v8, s91, v8")
        for k in range(4):
            A(f"v_min_u32 v{8 + k}, -2, v{8 + k}")
        A("s_lshl_b32 s48, s6, 4")
        A("v_mov_b32 v7, 0")
        A("s_mov_b64 exec, 1")
        A("buffer_store_dwordx4 v[8:11], v7, s[44:47], s48 offen sc1")
        A("s_mov_b64 exec, -1")
        lds = [f"buffer_load_dwordx4 v[{48 + 4 * cc}:{48 + 4 * cc + 3}], v7, s[44:47], 0 offen offset:{16 * cc} sc1" for cc in range(4)]
        C("the 32 workgroups of this batch must have cleared their slots before any slot is polled")
        A("s_lshl_b32 s48, s4, 8")
        A(f"s_add_u32 s48, s48, {W_AR}")
        A("v_and_b32 v12, 31, v0")
        A("v_lshl_add_u32 v12, v12, 3, s48")
        A(f"s_mov_b32 s51, {self.poll_cap}")
        self.label("L_sv_apoll")
        A("global_load_dwordx2 v[14:15], v12, s[32:33] sc1")
        A("s_waitcnt vmcnt(0)")
        A("v_xor_b32 v14, s92, v14")
        A("v_xor_b32 v15, s93, v15")
        A("v_or_b32 v14, v14, v15")
        A("v_cmp_ne_u32 vcc, 0, v14")
        A("s_cbranch_vccz L_sv_aok")
        A("s_sleep 8")
        A("s_sub_u32 s51, s51, 1")
        A("s_cmp_lg_u32 s51, 0")
        A("s_cbranch_scc1 L_sv_apoll")
        self.label("L_sv_aok")
        if self.margin:
            self.lds_spin(5, 20, 1, 12, 51)
        self.poll_sentinel(lds, [48 + i for i in range(16)], 12, 51, retry_sleep=self.ssleep)
        self.stamp(6)
        C("all four members on one XCD? (same answer in every member) -> LDS word for the o hand-off store flavour")
        A("v_xor_b32 v12, v48, v52")
        A("v_xor_b32 v13, v48, v56")
        A("v_xor_b32 v14, v48, v60")
        A("v_or3_b32 v12, v12, v13, v14")
        A("v_and_b32 v12, 0xffff, v12")
        A("ds_write_b32 v5, v12 offset:32")
        for cc in range(4):
            A(f"v_and_b32 v{48 + 4 * cc}, 0xffff0000, v{48 + 4 * cc}")
        for h in range(2):
            A(f"v_max3_f32 v{8 + h}, v{48 + h}, v{52 + h}, v{56 + h}")
            A(f"v_max_f32 v{8 + h}, v{8 + h}, v{60 + h}")
        for h in range(2):
            for cc in range(4):
                A(f"v_sub_f32 v{48 + 4 * cc + h}, v{48 + 4 * cc + h}, v{8 + h}")
                A(f"v_mul_f32 v{48 + 4 * cc + h}, s50, v{48 + 4 * cc + h}")
                A(f"v_exp_f32 v{48 + 4 * cc + h}, v{48 + 4 * cc + h}")
            A("s_nop 0")
            A(f"v_mul_f32 v{10 + h}, v{48 + h}, v{50 + h}")
            for cc in range(1, 4):
                A(f"v_fmac_f32 v{10 + h}, v{48 + 4 * cc + h}, v{50 + 4 * cc + h}")
            A(f"v_rcp_f32 v{10 + h}, v{10 + h}")
        for h, base in ((0, H0), (1, H1)):
            for k in range(16):
                A(f"v_sub_f32 v{base + k}, v{base + k}, v{8 + h}")
            for k in range(16):
                A(f"v_mul_f32 v{base + k}, s50, v{base + k}")
            for k in range(16):
                A(f"v_exp_f32 v{base + k}, v{base + k}")
            A("s_nop 0")
            for k in range(16):
                A(f"v_mul_f32 v{base + k}, v{base + k}, v{10 + h}")
            for par in range(2):
                for d in range(4):
                    A(f"v_cvt_pk_bf16_f32 v{48 + h * 8 + par * 4 + d}, v{base + 4 * d + par}, v{base + 4 * d + 2 + par}")
        for k in range(4):
            A(f"ds_write_b128 v6, v[{48 + 4 * k}:{48 + 4 * k + 3}] offset:{L_P + 16 * k}")
        A("v_mov_b32 v7, 1")
        A("s_waitcnt lgkmcnt(0)")
        A("ds_write_b32 v5, v7 offset:12")
        self.stamp(7)
        if self.dyn:
            C("publish the pool part of P, then gather the cluster's pool P into LDS")
            NPL = 16 - self.RS
            self.pp_addr(6, 48)
            for k in range(16):
                A(f"v_min_u32 v{48 + k}, -2, v{48 + k}")
            A("s_mov_b64 exec, s[50:51]")
            for k in range(4):
                A(f"global_store_dwordx4 v6, v[{48 + 4 * k}:{48 + 4 * k + 3}], s[32:33] offset:{16 * k} sc1")
            A("s_mov_b64 exec, -1")
            A("s_lshl_b32 s48, s7, 13")
            A(f"s_add_u32 s48, s48, {W_PP}")
            self.srd(44, 32, 8192, 48)
            A("s_mov_b32 s48, 4096")
            self.lds_spin(5, 28, 1, 12, 50)
            lds = [f"buffer_load_dwordx4 v[{16 + 4 * k}:{16 + 4 * k + 3}], v4, s[44:47], {'0' if k < 4 else 's48'} offen offset:{1024 * (k & 3)} sc1" for k in range(NPL)]
            self.poll_sentinel(lds, [16 + i for i in range(4 * NPL)], 12, 51, retry_sleep=self.ssleep)
            for k in range(NPL):
                A(f"ds_write_b128 v4, v[{16 + 4 * k}:{16 + 4 * k + 3}] offset:{L_PP + 1024 * k}")
            A("v_mov_b32 v7, 1")
            A("s_waitcnt lgkmcnt(0)")
            A("ds_write_b32 v5, v7 offset:24")
        C("preload x row b (for h) and b2")
        self.srd(36, 8, 8 * 896)
        A("s_mul_i32 s48, s4, 896")
        A("buffer_load_dwordx4 v[56:59], v4, s[36:39], s48 offen")
        self.srd(36, 26, 896)
        A("v_and_b32 v7, 3, v0")
        A("v_lshlrev_b32 v7, 3, v7")
        A("s_max_i32 s48, s34, 0")
        A("s_lshl_b32 s48, s48, 5")
        A("buffer_load_dwordx2 v[60:61], v7, s[36:39], s48 offen")
        self.label("L_sv_tail")
        C("---- tail ----")
        A("v_lshlrev_b32 v6, 4, v3")
        A("s_lshl_b32 s48, s35, 8")
        A("v_add_u32 v6, s48, v6")
        A("s_barrier")
        A("s_barrier")
        for kk in range(4):
            A(f"ds_read_b128 v[{ST + 4 * kk}:{ST + 4 * kk + 3}], v6 offset:{L_O + 64 * kk}")
        A("s_lshl_b32 s48, s35, 9")
        A("v_lshl_add_u32 v7, v2, 5, s48")
        DT = 24
        accs = [32, 36, 40, 44, 48, 52, 8, 12]
        for kk in range(4):
            A(f"s_waitcnt lgkmcnt({3 - kk})")
            for t in range(8):
                d = accs[t]
                fr = WO + kk * 32 + t * 4
                c = "0" if kk == 0 else f"v[{d}:{d + 3}]"
                A(f"v_mfma_f32_16x16x32_bf16 v[{d}:{d + 3}], v[{ST + 4 * kk}:{ST + 4 * kk + 3}], v[{fr}:{fr + 3}], {c}")
        A("s_nop 1")
        for t in range(8):
            A(f"v_mov_b32 v{ST + t}, v{accs[t]}")
        A(f"ds_write_b128 v7, v[{ST}:{ST + 3}] offset:{L_T1}")
        A(f"ds_write_b128 v7, v[{ST + 4}:{ST + 7}] offset:{L_T1 + 16}")
        A("s_waitcnt lgkmcnt(0)")
        A("s_barrier")
        A("s_cmp_lg_u32 s35, 0")
        A("s_cbranch_scc1 L_sv_skip2")
        self.stamp(8)
        C("S0: P4: lanes<28: sum 4 waves, publish AP[b][hkv][112c + 4l]")
        for w in range(4):
            A(f"ds_read_b128 v[{ST + 4 * w}:{ST + 4 * w + 3}], v4 offset:{L_T1 + 512 * w}")
        A("s_mul_i32 s48, s4, 14336")
        A(f"s_add_u32 s48, s48, {W_AP}")
        A("s_add_u32 s48, s48, s98")
        self.srd(44, 32, 14336, 48)
        A("s_mul_i32 s48, s5, 1792")
        A("s_lshl_b32 s49, s6, 9")
        A("s_add_u32 s48, s48, s49")
        A("s_cmp_eq_u32 s6, 3")
        A("s_cselect_b32 s50, 0xffff, -1")
        A("s_mov_b32 s51, 0")
        A("v_lshlrev_b32 v7, 5, v0")
        A("s_waitcnt lgkmcnt(0)")
        for e in range(4):
            A(f"v_add_f32 v{ST + e}, v{ST + e}, v{ST + 4 + e}")
            A(f"v_add_f32 v{ST + 8 + e}, v{ST + 8 + e}, v{ST + 12 + e}")
        for e in range(4):
            A(f"v_add_f32 v{ST + e}, v{ST + e}, v{ST + 8 + e}")
        for e in range(4):
            A(f"v_min_u32 v{ST + e}, -2, v{ST + e}")
        A("s_mov_b64 exec, s[50:51]")
        A(f"buffer_store_dwordx4 v[{ST}:{ST + 3}], v4, s[44:47], s48 offen {self.apst}")
        A("s_mov_b64 exec, -1")
        A("s_cmp_lt_i32 s34, 0")
        A("s_cbranch_scc1 L_sv_skip2")
        C("P5: lanes<56: gather AP[b][h'][8l..8l+8] (wo frags are dead now)")
        A("s_mov_b64 exec, s[52:53]")
        G = WO
        for hh in range(1, 4):
            A(f"s_mov_b32 s{40 + hh}, {hh * 3584}")
        lds = []
        for hh in range(8):
            so = "0" if hh < 2 else f"s{40 + hh // 2}"
            for u in range(2):
                r = G + hh * 8 + u * 4
                lds.append(f"buffer_load_dwordx4 v[{r}:{r + 3}], v7, s[44:47], {so} offen offset:{(hh & 1) * 1792 + 16 * u} sc1")
        self.poll_sentinel(lds, [G + i for i in range(64)], 12, 51, retry_sleep=self.tsleep)
        A("s_mov_b64 exec, -1")
        self.stamp(9)
        for e in range(8):
            for hh in range(0, 8, 2):
                A(f"v_add_f32 v{G + hh * 8 + e}, v{G + hh * 8 + e}, v{G + hh * 8 + 8 + e}")
        for e in range(8):
            A(f"v_add_f32 v{G + e}, v{G + e}, v{G + 16 + e}")
            A(f"v_add_f32 v{G + 32 + e}, v{G + 32 + e}, v{G + 48 + e}")
        for e in range(8):
            A(f"v_add_f32 v{G + e}, v{G + e}, v{G + 32 + e}")
        for e in range(4):
            A(f"v_cvt_pk_bf16_f32 v{ST + e}, v{G + 2 * e}, v{G + 2 * e + 1}")
        self.unpack8(ST, G)
        self.unpack8(56, G + 8)
        for e in range(8):
            A(f"v_add_f32 v{G + e}, v{G + e}, v{G + 8 + e}")
        for e in range(4):
            A(f"v_cvt_pk_bf16_f32 v{ST + e}, v{G + 2 * e}, v{G + 2 * e + 1}")
        self.unpack8(ST, G)
        self.layernorm([([G + e for e in range(8)], ST)], 52, G + 16)
        A("s_mov_b64 exec, s[52:53]")
        A(f"ds_write_b128 v4, v[{ST}:{ST + 3}] offset:{L_HN}")
        A(f"ds_write_b128 v7, v[{G}:{G + 3}] offset:{L_H}")
        A(f"ds_write_b128 v7, v[{G + 4}:{G + 7}] offset:{L_H + 16}")
        A("s_mov_b64 exec, -1")
        A("s_waitcnt lgkmcnt(0)")
        self.label("L_sv_skip2")
        A("s_barrier")
        C("T2a: ksteps s, s+4, s+8, s+12")
        A("v_lshlrev_b32 v6, 4, v3")
        A("s_lshl_b32 s48, s35, 6")
        A("v_add_u32 v6, s48, v6")
        for kk in range(4):
            A(f"ds_read_b128 v[{ST + 4 * kk}:{ST + 4 * kk + 3}], v6 offset:{L_HN + 256 * kk}")
        A("s_lshl_b32 s48, s35, 8")
        A("v_lshl_add_u32 v7, v2, 4, s48")
        for kk in range(4):
            A(f"s_waitcnt lgkmcnt({3 - kk})")
            for t in range(4):
                d = 32 + 4 * t
                fr = W1 + kk * 16 + t * 4
                c = "0" if kk == 0 else f"v[{d}:{d + 3}]"
                A(f"v_mfma_f32_16x16x32_bf16 v[{d}:{d + 3}], v[{ST + 4 * kk}:{ST + 4 * kk + 3}], v[{fr}:{fr + 3}], {c}")
        A("s_nop 5")
        for t in range(4):
            A(f"v_mov_b32 v{ST + t}, v{32 + 4 * t}")
        A(f"ds_write_b128 v7, v[{ST}:{ST + 3}] offset:{L_R1}")
        A("s_waitcnt lgkmcnt(0)")
        A("s_barrier")
        A("s_cmp_lg_u32 s35, 0")
        A("s_cbranch_scc1 L_end")
        self.stamp(10)
        A("s_cmp_lt_i32 s34, 0")
        A("s_cbranch_scc1 L_sv_fin")
        C("P8: final reduce: FP[b][src][16f + 4q]; lane l: src = l>>2 (+16), q = l&3")
        A("s_mul_i32 s48, s4, 57344")
        A(f"s_add_u32 s48, s48, {W_FP}")
        A("s_add_u32 s48, s48, s98")
        self.srd(44, 32, 28 * 1792, 48)
        A("v_lshrrev_b32 v6, 2, v0")
        A("v_mul_u32_u24 v6, 1792, v6")
        A("v_and_b32 v7, 3, v0")
        A("v_lshl_add_u32 v6, v7, 4, v6")
        A("s_lshl_b32 s48, s34, 6")
        A(f"s_add_u32 s49, s48, {16 * 1792}")
        A("v_lshl_add_u32 v8, v7, 4, s48")
        A(f"ds_read_b128 v[40:43], v8 offset:{L_H}")
        self.srd(36, 28, 7168)
        lds = [f"buffer_load_dwordx4 v[{ST}:{ST + 3}], v6, s[44:47], s48 offen sc1",
               f"buffer_load_dwordx4 v[{ST + 4}:{ST + 7}], v6, s[44:47], s49 offen sc1"]
        self.poll_sentinel(lds, [ST + i for i in range(8)], 12, 51)
        self.stamp(11)
        for e in range(4):
            A(f"v_add_f32 v{ST + e}, v{ST + e}, v{ST + 4 + e}")
        for ctrl in ("row_ror:4", "row_ror:8"):
            A("s_nop 1")
            for e in range(4):
                A(f"v_add_f32_dpp v{ST + e}, v{ST + e}, v{ST + e} {ctrl} row_mask:0xf bank_mask:0xf")
        for sw in ("v_permlane16_swap_b32", "v_permlane32_swap_b32"):
            for e in range(4):
                A(f"v_mov_b32 v{ST + 4 + e}, v{ST + e}")
            A("s_nop 1")
            for e in range(4):
                A(f"{sw} v{ST + e}, v{ST + 4 + e}")
            A("s_nop 1")
            for e in range(4):
                A(f"v_add_f32 v{ST + e}, v{ST + e}, v{ST + 4 + e}")
        A(f"v_cvt_pk_bf16_f32 v{ST + 4}, v{ST}, v{ST + 1}")
        A(f"v_cvt_pk_bf16_f32 v{ST + 5}, v{ST + 2}, v{ST + 3}")
        for e in range(2):
            A(f"v_lshlrev_b32 v{ST + 2 * e}, 16, v{ST + 4 + e}")
            A(f"v_and_b32 v{ST + 2 * e + 1}, 0xffff0000, v{ST + 4 + e}")
            A(f"v_lshlrev_b32 v{32 + 2 * e}, 16, v{60 + e}")
            A(f"v_and_b32 v{32 + 2 * e + 1}, 0xffff0000, v{60 + e}")
        for e in range(4):
            A(f"v_add_f32 v{ST + e}, v{ST + e}, v{32 + e}")
        A(f"v_cvt_pk_bf16_f32 v{ST + 4}, v{ST}, v{ST + 1}")
        A(f"v_cvt_pk_bf16_f32 v{ST + 5}, v{ST + 2}, v{ST + 3}")
        for e in range(2):
            A(f"v_lshlrev_b32 v{ST + 2 * e}, 16, v{ST + 4 + e}")
            A(f"v_and_b32 v{ST + 2 * e + 1}, 0xffff0000, v{ST + 4 + e}")
        A("s_waitcnt lgkmcnt(0)")
        for e in range(4):
            A(f"v_add_f32 v{ST + e}, v{ST + e}, v{40 + e}")
        A(f"v_cvt_pk_bf16_f32 v{ST + 4}, v{ST}, v{ST + 1}")
        A(f"v_cvt_pk_bf16_f32 v{ST + 5}, v{ST + 2}, v{ST + 3}")
        A("v_lshlrev_b32 v7, 3, v7")
        A("s_mul_i32 s48, s4, 896")
        A("s_lshl_b32 s49, s34, 5")
        A("s_add_u32 s48, s48, s49")
        A("s_mov_b64 exec, 0xf")
        A(f"buffer_store_dwordx2 v[{ST + 4}:{ST + 5}], v7, s[36:39], s48 offen")
        A("s_mov_b64 exec, -1")
        self.label("L_sv_fin")
        self.stamp(12)
        self.dump_stamps(13, 8)


if __name__ == "__main__":
    import argparse
    ap = argparse.ArgumentParser()
    ap.add_argument("-o", default=f"cdna_kernels/{NAME}.s")
    ap.add_argument("--D", type=int, default=5)
    ap.add_argument("--R", type=int, default=42)
    ap.add_argument("--stamps", action="store_true")
    ap.add_argument("--wnt", default="")
    ap.add_argument("--knt", default="nt")
    ap.add_argument("--nowdelay", action="store_true")
    ap.add_argument("--qnt", default="nt")
    ap.add_argument("--wd", type=int, default=8)
    ap.add_argument("--now", type=int, default=0)
    ap.add_argument("--DV", type=int, default=0)
    ap.add_argument("--wsoff", type=lambda x: int(x, 0), default=0)
    ap.add_argument("--qsleep", type=int, default=0)
    ap.add_argument("--ssleep", type=int, default=0)
    ap.add_argument("--DE", type=int, default=0)
    ap.add_argument("--tsleep", type=int, default=0)
    ap.add_argument("--margin", type=int, default=12)
    ap.add_argument("--w2pos", type=int, default=8)
    ap.add_argument("--yrot", type=int, default=0)
    ap.add_argument("--ilv", type=int, default=0)
    ap.add_argument("--RS", type=int, default=16)
    ap.add_argument("--kmargin", type=int, default=18)
    ap.add_argument("--cap", type=int, default=200000)
    ap.add_argument("--Dh", type=int, default=0)
    ap.add_argument("--cmap", type=int, default=2)
    ap.add_argument("--vnt", default=None)
    ap.add_argument("--eager", type=int, default=4)
    ap.add_argument("--opst", default="")
    ap.add_argument("--bal", type=int, default=1)
    ap.add_argument("--apst", default="sc1")
    ap.add_argument("--spread", type=lambda x: int(x, 0), default=0)
    ap.add_argument("--NE", type=int, default=0)
    a = ap.parse_args()
    g = Gen(D=a.D, R=a.R, stamps=a.stamps, wnt=a.wnt, knt=a.knt, wdelay=not a.nowdelay, qnt=a.qnt, wd=a.wd, now=a.now, DV=a.DV, wsoff=a.wsoff, qsleep=a.qsleep, ssleep=a.ssleep, DE=a.DE, NE=a.NE, tsleep=a.tsleep, margin=a.margin, w2pos=a.w2pos, yrot=a.yrot, ilv=a.ilv, RS=a.RS, kmargin=a.kmargin, poll_cap=a.cap, Dh=a.Dh, cmap=a.cmap, vnt=a.vnt, eager=a.eager, opst=a.opst, bal=a.bal, apst=a.apst, spread=a.spread)
    open(a.o, "w").write(g.build())
```

```python
import sys

NAME = "sequential_preLN__gqa_block_cached__dense_activation_squared_relu__decode"

HEADER = """; Kernarg layout for this problem (104 bytes, ptrs only, base s[0:1]):
"""

L_XN = 0x0000
L_Q = 0x1C00
L_SC = 0x2000
L_SCD = 0x3000
L_P = 0x4000
L_ZERO = 0x5000
L_ACC = 0x6000
L_O = 0x8000
L_T1 = 0x8400
L_HN = 0x8C00
L_H = 0x9000
L_R1 = 0x9800
L_H1 = 0x9C00
L_FLAG = 0x9E00
L_PP = 0xA000
LDS_BYTES = 0xC000

W_QG = 0x000000
W_QF = 0x072000
W_EP = 0x070000
W_AR = 0x071000
W_ST = 0x080000
W_OP = 0x090000
W_AP = 0x110000
W_FP = 0x130000
W_PP = 0x1A0000
W_TK = 0x230000
W_END = 0x380000
W_STAMP = 0x1000000


class Gen:
    def __init__(self, D=5, R=40, stamps=False, wnt="", knt="nt", poll_cap=200000, wdelay=True, wsleep=0, qnt="nt", wd=8, now=0, DV=None, wsoff=0, qsleep=0, ssleep=0, DE=0, NE=0, tsleep=0, margin=12, w2pos=8, yrot=0, ilv=0, RS=16, kmargin=18, Dh=0, cmap=0, vnt=None, eager=4, opst="", bal=1, apst="sc1", spread=0, late=0, DS=0, NS=0, fastp5=1):
        self.L = []
        self.D = D
        self.R = R
        self.stamps = stamps
        self.wnt = wnt
        self.knt = knt
        self.poll_cap = poll_cap
        self.nlabel = 0
        self.wdelay = wdelay
        self.wsleep = wsleep
        self.qnt = qnt
        self.wd = wd
        self.now = now
        self.wsoff = wsoff
        self.qsleep = qsleep
        self.ssleep = ssleep
        self.DE = DE
        self.tsleep = tsleep
        self.margin = margin
        self.yrot = yrot
        self.ilv = ilv
        self.RS = RS
        self.kmargin = kmargin
        self.Dh = Dh
        self.cmap = cmap
        self.eager = eager
        self.opst = opst
        self.bal = bal
        self.apst = apst
        self.spread = spread
        self.late = late
        self.DS = DS
        self.fastp5 = fastp5
        self.NS = NS
        if late & 2:
            self.w2pos = 99
        self.vnt = knt if vnt is None else vnt
        self.dyn = RS < 16
        if self.dyn:
            self.ilv = 1
        self.w2pos = w2pos
        self.NE = NE
        self.DV = DV if DV else D

    def A(self, s):
        self.L.append("    " + s)

    def C(self, s):
        self.L.append("    ; " + s)

    def label(self, name):
        self.L.append(name + ":")

    def newlabel(self, base):
        self.nlabel += 1
        return f"L_{base}_{self.nlabel}"

    def stamp(self, idx):
        if self.stamps:
            self.A(f"s_memrealtime s[{60 + 2 * idx}:{61 + 2 * idx}]")

    def dump_stamps(self, n, vbase):
        if not self.stamps:
            return
        A = self.A
        A("s_waitcnt lgkmcnt(0)")
        A("s_lshl_b32 s58, s99, 3")
        A("s_add_u32 s58, s58, s3")
        A("s_lshl_b32 s58, s58, 7")
        A(f"s_add_u32 s58, s58, {W_STAMP}")
        A("s_mov_b64 exec, 1")
        A(f"v_mov_b32 v{vbase}, s58")
        for i in range(n):
            A(f"v_mov_b32 v{vbase + 2}, s{60 + 2 * i}")
            A(f"v_mov_b32 v{vbase + 3}, s{61 + 2 * i}")
            A(f"global_store_dwordx2 v{vbase}, v[{vbase + 2}:{vbase + 3}], s[32:33] offset:{8 * i}")
            A("s_nop 1")
        A(f"v_mov_b32 v{vbase + 2}, s90")
        A(f"v_mov_b32 v{vbase + 3}, s91")
        A(f"global_store_dwordx2 v{vbase}, v[{vbase + 2}:{vbase + 3}], s[32:33] offset:120")
        A("s_mov_b64 exec, -1")

    def wsadj(self):
        if self.wsoff:
            self.A(f"s_add_u32 s32, s32, {self.wsoff}")
            self.A("s_addc_u32 s33, s33, 0")

    def pp_addr(self, v, st):
        A = self.A
        RS = self.RS
        A(f"v_lshrrev_b32 v{v}, 2, v0")
        A(f"v_subrev_u32 v{v}, {RS}, v{v}")
        A(f"v_lshlrev_b32 v{v}, 10, v{v}")
        A(f"v_and_b32 v{v + 1}, 3, v0")
        A(f"v_lshl_add_u32 v{v}, v{v + 1}, 6, v{v}")
        A(f"s_lshl_b32 s{st}, s7, 13")
        A(f"s_lshl_b32 s{st + 1}, s6, 8")
        A(f"s_add_u32 s{st}, s{st}, s{st + 1}")
        A(f"s_add_u32 s{st}, s{st}, {W_PP}")
        A(f"v_add_u32 v{v}, s{st}, v{v}")
        A(f"v_cmp_le_u32 s[50:51], {4 * RS}, v0")

    def epoch_load(self):
        self.A(f"s_load_dwordx2 s[92:93], s[32:33], {W_EP}")

    def srd(self, d, ptr, size, off_sgpr=None):
        A = self.A
        if off_sgpr is None:
            A(f"s_mov_b32 s{d}, s{ptr}")
            A(f"s_mov_b32 s{d + 1}, s{ptr + 1}")
        else:
            A(f"s_add_u32 s{d}, s{ptr}, s{off_sgpr}")
            A(f"s_addc_u32 s{d + 1}, s{ptr + 1}, 0")
        A(f"s_mov_b32 s{d + 2}, {size}")
        A(f"s_mov_b32 s{d + 3}, 0x20000")

    def allreduce(self, op, regs, tmps):
        A = self.A
        for ctrl in ("quad_perm:[1,0,3,2]", "quad_perm:[2,3,0,1]", "row_half_mirror", "row_mirror"):
            A("s_nop 1")
            for r in regs:
                A(f"v_{op}_f32_dpp v{r}, v{r}, v{r} {ctrl} row_mask:0xf bank_mask:0xf")
        for sw in ("v_permlane16_swap_b32", "v_permlane32_swap_b32"):
            for r, t in zip(regs, tmps):
                A(f"v_mov_b32 v{t}, v{r}")
            A("s_nop 1")
            for r, t in zip(regs, tmps):
                A(f"{sw} v{r}, v{t}")
            A("s_nop 1")
            for r, t in zip(regs, tmps):
                A(f"v_{op}_f32 v{r}, v{r}, v{t}")

    def lds_spin(self, vaddr, off, target, vtmp, stmp):
        A = self.A
        l = self.newlabel("spin")
        d = self.newlabel("spun")
        A(f"s_mov_b32 s59, {max(self.poll_cap * 20, 100000)}")
        self.label(l)
        A(f"ds_read_b32 v{vtmp}, v{vaddr} offset:{off}")
        A("s_waitcnt lgkmcnt(0)")
        A(f"v_readfirstlane_b32 s{stmp}, v{vtmp}")
        A("s_nop 0")
        A(f"s_cmp_eq_u32 s{stmp}, {target}")
        A(f"s_cbranch_scc1 {d}")
        A("s_sleep 1")
        A("s_sub_u32 s59, s59, 1")
        A("s_cmp_lg_u32 s59, 0")
        A(f"s_cbranch_scc1 {l}")
        self.label(d)

    def poll_sentinel(self, loads, regs, vtmp, scnt, sleep=0, retry_sleep=0, first_issued=False):
        A = self.A
        l = self.newlabel("poll")
        d = self.newlabel("polled")
        A(f"s_mov_b32 s{scnt}, {self.poll_cap}")
        if first_issued:
            l2 = self.newlabel("pollchk")
            A(f"s_branch {l2}")
        self.label(l)
        if sleep:
            A(f"s_sleep {sleep}")
        for s in loads:
            A(s)
        if first_issued:
            self.label(l2)
        A("s_waitcnt vmcnt(0)")
        A(f"v_max3_u32 v{vtmp}, v{regs[0]}, v{regs[1]}, v{regs[2]}")
        rest = regs[3:]
        while len(rest) >= 2:
            A(f"v_max3_u32 v{vtmp}, v{vtmp}, v{rest[0]}, v{rest[1]}")
            rest = rest[2:]
        if rest:
            A(f"v_max_u32 v{vtmp}, v{vtmp}, v{rest[0]}")
        A(f"v_cmp_eq_u32 vcc, -1, v{vtmp}")
        A(f"s_cbranch_vccz {d}")
        if retry_sleep:
            A(f"s_sleep {retry_sleep}")
        A(f"s_sub_u32 s{scnt}, s{scnt}, 1")
        A(f"s_cmp_lg_u32 s{scnt}, 0")
        A(f"s_cbranch_scc1 {l}")
        self.label(d)

    def layernorm(self, rows, smask, t):
        A = self.A
        n = len(rows)
        S = [t + i for i in range(n)]
        T = [t + n + i for i in range(n)]
        M = [t + 2 * n + i for i in range(n)]
        DD = t + 3 * n
        for k, (x, o) in enumerate(rows):
            A(f"v_add_f32 v{S[k]}, v{x[0]}, v{x[1]}")
            for e in range(2, 8):
                A(f"v_add_f32 v{S[k]}, v{S[k]}, v{x[e]}")
            A(f"v_cndmask_b32 v{S[k]}, 0, v{S[k]}, s[{smask}:{smask + 1}]")
        self.allreduce("add", S, T)
        for k, (x, o) in enumerate(rows):
            A(f"v_mul_f32 v{M[k]}, 0x3b124925, v{S[k]}")
        for k, (x, o) in enumerate(rows):
            for e in range(8):
                A(f"v_sub_f32 v{DD + e}, v{x[e]}, v{M[k]}")
            A(f"v_mul_f32 v{S[k]}, v{DD}, v{DD}")
            for e in range(1, 8):
                A(f"v_fmac_f32 v{S[k]}, v{DD + e}, v{DD + e}")
            A(f"v_cndmask_b32 v{S[k]}, 0, v{S[k]}, s[{smask}:{smask + 1}]")
        self.allreduce("add", S, T)
        for k, (x, o) in enumerate(rows):
            A(f"v_mul_f32 v{S[k]}, 0x3b124925, v{S[k]}")
            A(f"v_cvt_pk_bf16_f32 v{T[k]}, v{M[k]}, v{S[k]}")
            A(f"v_lshlrev_b32 v{M[k]}, 16, v{T[k]}")
            A(f"v_and_b32 v{S[k]}, 0xffff0000, v{T[k]}")
            A(f"v_add_f32 v{S[k]}, 0x3727c5ac, v{S[k]}")
            A(f"v_cvt_pk_bf16_f32 v{S[k]}, v{S[k]}, v{S[k]}")
            A(f"v_lshlrev_b32 v{S[k]}, 16, v{S[k]}")
            A(f"v_sqrt_f32 v{S[k]}, v{S[k]}")
            A("s_nop 0")
            A(f"v_cvt_pk_bf16_f32 v{S[k]}, v{S[k]}, v{S[k]}")
            A(f"v_lshlrev_b32 v{S[k]}, 16, v{S[k]}")
            A(f"v_rcp_f32 v{S[k]}, v{S[k]}")
            for e in range(8):
                A(f"v_sub_f32 v{DD + e}, v{x[e]}, v{M[k]}")
            for e in range(4):
                A(f"v_cvt_pk_bf16_f32 v{o + e}, v{DD + 2 * e}, v{DD + 2 * e + 1}")
            for e in range(4):
                A(f"v_lshlrev_b32 v{DD + 2 * e}, 16, v{o + e}")
                A(f"v_and_b32 v{DD + 2 * e + 1}, 0xffff0000, v{o + e}")
            for e in range(8):
                A(f"v_mul_f32 v{DD + e}, v{DD + e}, v{S[k]}")
            for e in range(4):
                A(f"v_cvt_pk_bf16_f32 v{o + e}, v{DD + 2 * e}, v{DD + 2 * e + 1}")

    def unpack8(self, src, dst):
        for e in range(4):
            self.A(f"v_lshlrev_b32 v{dst + 2 * e}, 16, v{src + e}")
            self.A(f"v_and_b32 v{dst + 2 * e + 1}, 0xffff0000, v{src + e}")

    def build(self):
        A, C = self.A, self.C
        D, R = self.D, self.R
        self.L.append(HEADER.rstrip())
        self.L.append(f"; @launch grid=(256,1,1) block=(512,1,1) lds={LDS_BYTES}")
        self.L.append('.amdgcn_target "amdgcn-amd-amdhsa--gfx950"')
        self.L.append(".text")
        self.L.append(f".globl {NAME}_kernel")
        self.L.append(".p2align 8")
        self.L.append(f".type {NAME}_kernel,@function")
        self.label(f"{NAME}_kernel")
        A("s_cmp_ge_u32 s2, 256")
        A("s_cbranch_scc1 L_end")
        self.stamp(0)
        A("s_mov_b32 s99, s2")
        if self.yrot:
            A("s_xor_b32 s2, s2, 16")
        if self.stamps:
            A("s_getreg_b32 s90, hwreg(HW_REG_HW_ID)")
            A("s_getreg_b32 s91, hwreg(HW_REG_XCC_ID)")
        A("s_load_dwordx16 s[8:23], s[0:1], 0")
        A("s_load_dwordx8 s[24:31], s[0:1], 64")
        A("s_load_dwordx2 s[32:33], s[0:1], 96")
        A("v_lshrrev_b32 v1, 6, v0")
        A("v_and_b32 v0, 63, v0")
        A("v_readfirstlane_b32 s3, v1")
        C("decode wg -> b (s4), hkv (s5), c (s6), pair (s7), f = hkv*4+c (s34)")
        A("s_lshr_b32 s4, s2, 3")
        A("s_lshr_b32 s5, s4, 3")
        A("s_and_b32 s4, s4, 7")
        A("s_lshl_b32 s5, s5, 1")
        if self.cmap == 3:
            A("s_mov_b32 s5, s4")
            A("s_and_b32 s4, s2, 7")
            A("s_lshr_b32 s6, s2, 6")
        elif self.cmap == 2:
            A("s_and_b32 s5, s2, 7")
            A("s_lshr_b32 s6, s2, 6")
        elif self.cmap:
            A("s_and_b32 s6, s2, 1")
            A("s_add_u32 s5, s5, s6")
            A("s_bfe_u32 s6, s2, 0x20001")
        else:
            A("s_bfe_u32 s6, s2, 0x10002")
            A("s_add_u32 s5, s5, s6")
            A("s_and_b32 s6, s2, 3")
        A("s_lshl_b32 s7, s4, 3")
        A("s_add_u32 s7, s7, s5")
        A("s_lshl_b32 s34, s6, 3")
        if self.bal:
            A("s_xor_b32 s35, s5, 4")
            A("s_add_u32 s34, s34, s35")
        else:
            A("s_add_u32 s34, s34, s5")
        A("s_sub_u32 s34, s34, 4")
        A(f"s_mul_i32 s98, s4, {self.spread}")
        A("s_mov_b32 s56, 0x05040100")
        A("s_mov_b32 s57, 0x07060302")
        A("v_and_b32 v2, 15, v0")
        A("v_lshrrev_b32 v3, 4, v0")
        A("s_cmp_ge_u32 s3, 4")
        A("s_cbranch_scc1 L_service")
        self.stream()
        self.service()
        self.label("L_end")
        A("s_endpgm")
        self.L.append('.section .rodata,"a"')
        self.L.append(".p2align 6")
        self.L.append(f".amdhsa_kernel {NAME}_kernel")
        self.L.append("  .amdhsa_next_free_vgpr 256")
        self.L.append("  .amdhsa_next_free_sgpr 102")
        self.L.append("  .amdhsa_accum_offset 256")
        self.L.append("  .amdhsa_group_segment_fixed_size 0")
        self.L.append("  .amdhsa_kernarg_size 104")
        self.L.append("  .amdhsa_user_sgpr_count 2")
        self.L.append("  .amdhsa_user_sgpr_kernarg_segment_ptr 1")
        self.L.append("  .amdhsa_system_sgpr_workgroup_id_x 1")
        self.L.append("  .amdhsa_float_denorm_mode_32 3")
        self.L.append(".end_amdhsa_kernel")
        return "\n".join(self.L) + "\n"

    def stream(self):
        A, C = self.A, self.C
        D, R = self.D, self.R
        C("================= stream waves (0..3) =================")
        vK, vV, vSC, vP, vFL, vW2, vT = 4, 5, 6, 7, 8, 9, 10
        QF = 16
        DK = 48
        ACC = 16
        TP = 48
        PF = 80
        RING = 88
        assert RING + 4 * R <= 256
        A("v_and_b32 v10, 7, v0")
        A("v_lshrrev_b32 v11, 3, v0")
        A("v_lshlrev_b32 v4, 9, v11")
        A("v_lshl_add_u32 v4, v10, 4, v4")
        A("s_lshl_b32 s35, s3, 12")
        A("v_add_u32 v4, s35, v4")
        A("v_lshlrev_b32 v5, 4, v0")
        A("s_lshl_b32 s35, s3, 13")
        A("v_add_u32 v5, s35, v5")
        A("s_lshl_b32 s35, s7, 21")
        A(f"s_lshl_b32 s36, s6, {15 if self.ilv else 19}")
        A("s_add_u32 s35, s35, s36")
        A("s_waitcnt lgkmcnt(0)")
        self.wsadj()
        ksz = 0x200000 - 3 * 32768 if self.ilv else 0x80000
        self.srd(36, 10, ksz, 35)
        self.srd(40, 12, ksz, 35)
        self.srd(44, 24, 1792 * 896)
        loads = []
        for nb in range(32):
            for j in range(4):
                loads.append(("K", nb, j))
        RS = self.RS
        NP = (16 - RS) * 16
        vTK, vPM, vPB, vTA, vVL = 6, 12, 13, 14, 15
        for nu in range(RS):
            for i in range(8):
                loads.append(("V", nu, i))
            if nu in (self.w2pos, self.w2pos + 1):
                for i in range(8):
                    loads.append(("W", nu - self.w2pos, i))
        free = list(range(R))
        slot_of = {}
        order = []
        st = {"soff": None}

        def sreg(slot):
            return RING + 4 * slot

        def set_soff(val):
            if st["soff"] != val:
                A(f"s_mov_b32 s48, {val}")
                st["soff"] = val

        cur = {"D": D}

        cur["landed"] = -1

        def vmwait(n):
            idx = len(order) - n - 1
            if idx > cur["landed"]:
                A(f"s_waitcnt vmcnt({n})")
                cur["landed"] = idx

        def pace():
            d = cur["D"]
            if self.DS and len(order) < self.NS:
                d = self.DS
            if self.Dh and (len(order) & 1):
                d -= 1
            if len(order) >= d:
                vmwait(d - 1)

        def ticket(sd):
            A(f"s_mov_b32 s{sd}, 1")
            A(f"s_atomic_add s{sd}, s[94:95], 0 glc")

        def issue(ld):
            pace()
            slot = free.pop(0)
            slot_of[ld] = slot
            r = sreg(slot)
            kind, a, b = ld
            if kind == "K":
                set_soff(((a >> 1) * 131072 + (a & 1) * 16384) if self.ilv else a * 16384)
                A(f"buffer_load_dwordx4 v[{r}:{r + 3}], v{vK}, s[36:39], s48 offen offset:{b * 128} {self.knt}")
            elif kind == "V":
                set_soff(a * (131072 if self.ilv else 32768) + (b >> 2) * 4096)
                A(f"buffer_load_dwordx4 v[{r}:{r + 3}], v{vV}, s[40:43], s48 offen offset:{(b & 3) * 1024} {self.vnt}")
            elif kind == "W":
                A(f"s_add_u32 s48, s49, {(a * 32 + (b & 4)) * 896}")
                st["soff"] = None
                A("s_mov_b64 exec, s[52:53]")
                A(f"buffer_load_dwordx4 v[{r}:{r + 3}], v{vW2}, s[44:47], s48 offen offset:{(b & 3) * 896} {self.wnt}")
                A("s_mov_b64 exec, -1")
            order.append(ld)

        def waitfor(ld):
            vmwait(len(order) - 1 - order.index(ld))

        nxt = [0]

        def issue_next(k=1):
            for _ in range(k):
                if nxt[0] < len(loads) and free:
                    issue(loads[nxt[0]])
                    nxt[0] += 1

        issue_next(self.DS if self.DS else D)
        C("score write address: L_SC + (wave*8 + (l>>3))*4")
        A("s_lshl_b32 s35, s3, 5")
        A("v_lshrrev_b32 v10, 3, v0")
        A(f"v_lshl_add_u32 v{vSC}, v10, 2, s35")
        C("P frag address: combo = rho>>2 = 2*half+h ; active iff (g&1)==half")
        A("v_lshrrev_b32 v10, 2, v2")
        A("v_and_b32 v11, 1, v10")
        A("v_lshrrev_b32 v12, 1, v10")
        A("v_and_b32 v13, 1, v3")
        A("v_lshrrev_b32 v14, 1, v3")
        A("v_lshlrev_b32 v11, 5, v11")
        A("v_lshl_add_u32 v11, v14, 4, v11")
        A("s_lshl_b32 s35, s3, 6")
        A(f"s_add_u32 s35, s35, {L_P}")
        A(f"v_add_u32 v11, s35, v11")
        A(f"v_mov_b32 v10, {L_ZERO}")
        A("v_cmp_eq_u32 vcc, v12, v13")
        A("s_nop 1")
        A(f"v_cndmask_b32 v{vP}, v10, v11, vcc")
        A(f"v_mov_b32 v{vFL}, {L_FLAG}")
        C("w2 lane offset: g*8*896 + wave*256 + j*16 ; s49 = f*56*896")
        A(f"v_mul_u32_u24 v{vW2}, {8 * 896}, v3")
        A(f"v_lshl_add_u32 v{vW2}, v2, 4, v{vW2}")
        A("s_lshl_b32 s35, s3, 8")
        A(f"v_add_u32 v{vW2}, s35, v{vW2}")
        A(f"s_max_i32 s49, s34, 0")
        A(f"s_mul_i32 s49, s49, {64 * 896}")
        C("exec mask for the w2 loads: wave 3 covers only 64 columns; no FFN slice -> skip via 0-size SRD")
        A("s_mov_b64 s[52:53], -1")
        A("s_cmp_eq_u32 s3, 3")
        A("s_cselect_b32 s52, 0x00ff00ff, s52")
        A("s_cselect_b32 s53, 0x00ff00ff, s53")
        A("s_cmp_lt_i32 s34, 0")
        A("s_cselect_b32 s46, 0, s46")
        A("v_and_b32 v10, 7, v0")
        A("v_lshlrev_b32 v15, 4, v10")
        A("s_barrier")
        M = self.margin

        def progress_flag(off):
            A("v_mov_b32 v10, 1")
            A(f"ds_write_b32 v{vFL}, v10 offset:{off}")

        issue_next(R - self.kmargin - nxt[0])
        progress_flag(16)
        issue_next(R)
        self.stamp(1)
        self.lds_spin(vFL, 4, 1, 10, 50)
        self.stamp(2)
        for j in range(4):
            for h in range(2):
                r = QF + 8 * j + 4 * h
                A(f"ds_read_b128 v[{r}:{r + 3}], v15 offset:{L_Q + 512 * h + 128 * j}")
        A("s_waitcnt lgkmcnt(0)")

        def k_post(nb):
            d = DK + 2 * (nb & 1)
            for ctrl in ("quad_perm:[1,0,3,2]", "quad_perm:[2,3,0,1]", "row_half_mirror"):
                for h in range(2):
                    A(f"v_add_f32_dpp v{d + h}, v{d + h}, v{d + h} {ctrl} row_mask:0xf bank_mask:0xf")
                A("s_nop 0")
            A(f"v_cvt_pk_bf16_f32 v10, v{d}, v{d + 1}")
            A(f"ds_write_b32 v{vSC}, v10 offset:{L_SC + nb * 128}")

        since = [0]
        eager = [self.eager]

        def feed(e, ratio):
            want = e + 1 + cur["D"]
            if nxt[0] < want:
                issue_next(want - nxt[0])
                since[0] = 0
            else:
                since[0] += 1
                if since[0] >= ratio or eager[0] > 0:
                    n0 = nxt[0]
                    issue_next(2 if eager[0] > 0 else 1)
                    eager[0] -= nxt[0] - n0
                    since[0] = 0

        for nb in range(32):
            d = DK + 2 * (nb & 1)
            for j in range(4):
                ld = ("K", nb, j)
                feed(loads.index(ld), 3)
                waitfor(ld)
                r = sreg(slot_of[ld])
                for e in range(4):
                    for h in range(2):
                        c = "0" if (j == 0 and e == 0) else f"v{d + h}"
                        A(f"v_dot2_f32_bf16 v{d + h}, v{r + e}, v{QF + 8 * j + 4 * h + e}, {c}")
                free.append(slot_of[ld])
                if j == 0 and nb > 0:
                    k_post(nb - 1)
        A("s_nop 3")
        k_post(31)
        A("v_mov_b32 v10, 1")
        A("s_waitcnt lgkmcnt(0)")
        A("s_mov_b64 exec, 1")
        A(f"ds_add_u32 v{vFL}, v10 offset:8")
        A("s_mov_b64 exec, -1")
        self.stamp(3)
        cur["D"] = D = self.DV
        issue_next(len(free) - M)
        progress_flag(20)
        issue_next(R)
        for r in range(32):
            A(f"v_mov_b32 v{ACC + r}, 0")
        self.stamp(4)
        self.lds_spin(vFL, 12, 1, 10, 50)
        self.stamp(5)
        A(f"ds_read_b32 v10, v{vFL} offset:32")
        A("s_waitcnt lgkmcnt(0)")
        A("v_readfirstlane_b32 s97, v10")
        A(f"ds_read_b128 v[{PF}:{PF + 3}], v{vP} offset:0")
        eager[0] = self.eager
        w2_frag = {}
        if self.dyn:
            C("dynamic-phase registers")
            A(f"v_cmp_gt_u32 vcc, {L_ZERO}, v{vP}")
            A("s_lshl_b32 s35, s3, 6")
            A(f"s_add_u32 s35, s35, {L_P}")
            A(f"v_cndmask_b32 v{vPM}, 0, -1, vcc")
            A(f"v_and_b32 v{vPB}, s35, v{vPM}")
            A(f"v_sub_u32 v{vPB}, v{vP}, v{vPB}")
            A("s_lshl_b32 s35, s7, 7")
            A(f"s_add_u32 s35, s35, {W_TK}")
            A("s_add_u32 s94, s32, s35")
            A("s_addc_u32 s95, s33, 0")
            A(f"v_lshlrev_b32 v{vVL}, 4, v0")
            A("s_lshl_b32 s35, s7, 21")
            self.srd(36, 12, 0x200000, 35)

        def pair(kind, a, r, dsts):
            l0, l1 = (kind, a, 2 * r), (kind, a, 2 * r + 1)
            feed(loads.index(l1), 2)
            waitfor(l1)
            s0, s1 = sreg(slot_of[l0]), sreg(slot_of[l1])
            for t in range(8):
                sel = "s56" if (t & 1) == 0 else "s57"
                A(f"v_perm_b32 v{dsts[t] + r}, v{s1 + (t >> 1)}, v{s0 + (t >> 1)}, {sel}")
            free.append(slot_of[l0])
            free.append(slot_of[l1])

        NST = RS - 1 if self.dyn else 16
        for nu in range(NST):
            if self.DE and nu >= 16 - self.NE:
                cur["D"] = self.DE
            if self.dyn and nu == RS - 4:
                progress_flag(28)
            if self.dyn and nu == RS - 2:
                ticket(96)
            pf = PF + 4 * (nu & 1)
            for r in range(4):
                pair("V", nu, r, [TP + 4 * t for t in range(8)])
            A("s_waitcnt lgkmcnt(0)")
            if nu + 1 < NST:
                pn = PF + 4 * ((nu + 1) & 1)
                A(f"ds_read_b128 v[{pn}:{pn + 3}], v{vP} offset:{(nu + 1) * 256}")
            for t in range(8):
                a = ACC + 4 * t
                A(f"v_mfma_f32_16x16x32_bf16 v[{a}:{a + 3}], v[{pf}:{pf + 3}], v[{TP + 4 * t}:{TP + 4 * t + 3}], v[{a}:{a + 3}]")
            if nu in (self.w2pos, self.w2pos + 1):
                a = nu - self.w2pos
                assert len(free) >= 8
                outs = [sreg(free.pop()) for _ in range(8)]
                for t in range(8):
                    w2_frag[(a, t)] = outs[t]
                for r in range(4):
                    pair("W", a, r, outs)
        if self.dyn:
            C("---- dynamic phase: units drawn from the cluster's pool ----")
            issue_next(16)
            assert nxt[0] == len(loads)
            sl = [sreg(slot_of[("V", RS - 1, i)]) for i in range(8)]
            self.stamp(9)
            self.lds_spin(vFL, 24, 1, 10, 50)
            self.stamp(10)
            A("s_mov_b32 s82, 0")
            A("s_mov_b32 s83, 0")
            A("s_lshl_b32 s54, s3, 6")
            A(f"s_add_u32 s54, s54, {L_P + (RS - 1) * 256}")
            self.label("L_dyn")
            A("s_mov_b32 s50, s96")
            A("s_add_u32 s82, s82, 1")
            A(f"v_and_b32 v10, s54, v{vPM}")
            A(f"v_add_u32 v10, v10, v{vPB}")
            A(f"ds_read_b128 v[{PF}:{PF + 3}], v10")
            ticket(96)
            A("s_lshl_b32 s54, s50, 6")
            A(f"s_add_u32 s54, s54, {L_PP}")
            A("s_lshl_b32 s48, s50, 13")
            A(f"s_add_u32 s48, s48, {RS * 131072}")
            A(f"s_cmp_lt_u32 s50, {NP}")
            A("s_cselect_b32 s48, s48, 0x7fff0000")
            A("s_cselect_b32 s55, 1, 0")
            A("s_add_u32 s51, s48, 4096")
            for r in range(4):
                A("s_waitcnt vmcnt(6)")
                s0, s1 = sl[2 * r], sl[2 * r + 1]
                for t in range(8):
                    sel = "s56" if (t & 1) == 0 else "s57"
                    A(f"v_perm_b32 v{TP + 4 * t + r}, v{s1 + (t >> 1)}, v{s0 + (t >> 1)}, {sel}")
                for i in (2 * r, 2 * r + 1):
                    so = "s48" if i < 4 else "s51"
                    A(f"buffer_load_dwordx4 v[{sl[i]}:{sl[i] + 3}], v{vVL}, s[36:39], {so} offen offset:{(i & 3) * 1024} {self.vnt}")
            A("s_waitcnt lgkmcnt(0)")
            for t in range(8):
                a = ACC + 4 * t
                A(f"v_mfma_f32_16x16x32_bf16 v[{a}:{a + 3}], v[{PF}:{PF + 3}], v[{TP + 4 * t}:{TP + 4 * t + 3}], v[{a}:{a + 3}]")
            A("s_cmp_eq_u32 s55, 1")
            A("s_cbranch_scc1 L_dyn")
        self.stamp(6)
        C("---- tail: write acc to LDS: lane (j,g): combo g, cols j*8..+8 -> [h][256] layout")
        A("v_and_b32 v10, 1, v3")
        A("v_lshrrev_b32 v11, 1, v3")
        A("v_lshlrev_b32 v10, 10, v10")
        A("v_lshl_add_u32 v10, v11, 9, v10")
        A("v_lshl_add_u32 v10, v2, 5, v10")
        A("s_lshl_b32 s35, s3, 11")
        A("v_add_u32 v10, s35, v10")
        A("s_nop 2")
        for t in range(8):
            A(f"v_mov_b32 v{TP + t}, v{ACC + 4 * t}")
        A(f"ds_write_b128 v10, v[{TP}:{TP + 3}] offset:{L_ACC}")
        A(f"ds_write_b128 v10, v[{TP + 4}:{TP + 7}] offset:{L_ACC + 16}")
        A("s_waitcnt lgkmcnt(0)")
        A("s_barrier")
        C("P1/P2: waves 0,1: lane t=wave*64+l handles cols 4t..4t+3")
        A("s_cmp_ge_u32 s3, 2")
        A("s_cbranch_scc1 L_st_skip1")
        A("s_lshl_b32 s35, s3, 10")
        A("v_lshl_add_u32 v10, v0, 4, s35")
        for w in range(4):
            A(f"ds_read_b128 v[{ACC + 4 * w}:{ACC + 4 * w + 3}], v10 offset:{L_ACC + 2048 * w}")
        A("s_lshl_b32 s35, s7, 13")
        A(f"s_add_u32 s35, s35, {W_OP}")
        A("s_add_u32 s35, s35, s98")
        self.srd(36, 32, 0x2000, 35)
        A("s_lshl_b32 s48, s6, 11")
        A("s_waitcnt lgkmcnt(0)")
        for e in (0, 2):
            A(f"v_pk_add_f32 v[{ACC + e}:{ACC + e + 1}], v[{ACC + e}:{ACC + e + 1}], v[{ACC + 4 + e}:{ACC + 5 + e}]")
            A(f"v_pk_add_f32 v[{ACC + 8 + e}:{ACC + 9 + e}], v[{ACC + 8 + e}:{ACC + 9 + e}], v[{ACC + 12 + e}:{ACC + 13 + e}]")
        for e in (0, 2):
            A(f"v_pk_add_f32 v[{ACC + e}:{ACC + e + 1}], v[{ACC + e}:{ACC + e + 1}], v[{ACC + 8 + e}:{ACC + 9 + e}]")
        A("s_cmp_lg_u32 s97, 0")
        A("s_cbranch_scc1 L_st_far")
        A(f"buffer_store_dwordx4 v[{ACC}:{ACC + 3}], v10, s[36:39], s48 offen {self.opst}")
        A("s_branch L_st_stored")
        self.label("L_st_far")
        A(f"buffer_store_dwordx4 v[{ACC}:{ACC + 3}], v10, s[36:39], s48 offen sc1")
        self.label("L_st_stored")
        A("v_add_u32 v11, 0x1000, v10")
        lds = []
        for cc in range(4):
            r = ACC + 16 + 4 * cc
            va = "v10" if cc < 2 else "v11"
            lds.append(f"buffer_load_dwordx4 v[{r}:{r + 3}], {va}, s[36:39], 0 offen offset:{(cc & 1) * 2048} sc1")
        b = ACC + 16

        def pk(d, x, y):
            A(f"v_pk_add_f32 v[{d}:{d + 1}], v[{x}:{x + 1}], v[{y}:{y + 1}]")
        A(f"s_mov_b32 s50, {self.poll_cap}")
        self.label("L_st_oppoll")
        for x in lds:
            A(x)
        A("s_waitcnt vmcnt(2)")
        pk(b, b, b + 4)
        pk(b + 2, b + 2, b + 6)
        A("s_waitcnt vmcnt(0)")
        pk(b + 8, b + 8, b + 12)
        pk(b + 10, b + 10, b + 14)
        pk(b, b, b + 8)
        pk(b + 2, b + 2, b + 10)
        pk(b + 4, b, b + 2)
        A(f"v_cmp_u_f32 vcc, v{b + 4}, v{b + 5}")
        A("s_cbranch_vccz L_st_opok")
        A("s_sub_u32 s50, s50, 1")
        A("s_cmp_lg_u32 s50, 0")
        A("s_cbranch_scc1 L_st_oppoll")
        self.label("L_st_opok")
        self.stamp(7)
        A(f"v_cvt_pk_bf16_f32 v12, v{b}, v{b + 1}")
        A(f"v_cvt_pk_bf16_f32 v13, v{b + 2}, v{b + 3}")
        A("v_lshrrev_b32 v10, 1, v10")
        A(f"ds_write_b64 v10, v[12:13] offset:{L_O}")
        A("s_waitcnt lgkmcnt(0)")
        self.label("L_st_skip1")
        A("s_barrier")
        C("b1 preload: lane k<56 b1[56f+k]")
        self.srd(36, 22, 1792 * 2)
        A("s_max_i32 s48, s34, 0")
        A("s_lshl_b32 s48, s48, 7")
        A("v_lshlrev_b32 v10, 1, v0")
        A("buffer_load_ushort v14, v10, s[36:39], s48 offen")
        if self.late & 2:
            raw = [sreg(k) for k in range(16)]
            A("s_mov_b64 exec, s[52:53]")
            for a in range(2):
                for i in range(8):
                    r = raw[a * 8 + i]
                    if i % 4 == 0:
                        A(f"s_add_u32 s48, s49, {(a * 32 + i) * 896}")
                    A(f"buffer_load_dwordx4 v[{r}:{r + 3}], v{vW2}, s[44:47], s48 offen offset:{(i & 3) * 896} {self.wnt}")
            A("s_mov_b64 exec, -1")
        A("s_barrier")
        if self.late & 2:
            for a in range(2):
                A(f"s_waitcnt vmcnt({8 - 8 * a})")
                for t in range(8):
                    dst = sreg(16 + a * 8 + t)
                    w2_frag[(a, t)] = dst
                    sel = "s56" if (t & 1) == 0 else "s57"
                    for r in range(4):
                        A(f"v_perm_b32 v{dst + r}, v{raw[a * 8 + 2 * r + 1] + (t >> 1)}, v{raw[a * 8 + 2 * r] + (t >> 1)}, {sel}")
        A("s_barrier")
        A("s_barrier")
        A("s_cmp_lt_i32 s34, 0")
        A("s_cbranch_scc1 L_st_end")
        C("h1: lane k: sum R1[w][k], +b1, relu^2 -> private LDS row, then A frags")
        A("v_lshlrev_b32 v10, 2, v0")
        for w in range(4):
            A(f"ds_read_b32 v{ACC + w}, v10 offset:{L_R1 + 256 * w}")
        A("s_lshl_b32 s35, s3, 7")
        A(f"s_add_u32 s35, s35, {L_H1}")
        A("v_lshl_add_u32 v11, v0, 1, s35")
        A("v_lshl_add_u32 v12, v3, 4, s35")
        A("s_waitcnt vmcnt(0) lgkmcnt(0)")
        A(f"v_add_f32 v{ACC}, v{ACC}, v{ACC + 1}")
        A(f"v_add_f32 v{ACC + 2}, v{ACC + 2}, v{ACC + 3}")
        A(f"v_add_f32 v{ACC}, v{ACC}, v{ACC + 2}")
        A("v_lshlrev_b32 v14, 16, v14")
        A(f"v_cvt_pk_bf16_f32 v{ACC}, v{ACC}, v{ACC}")
        A(f"v_lshlrev_b32 v{ACC}, 16, v{ACC}")
        A(f"v_add_f32 v{ACC}, v{ACC}, v14")
        A(f"v_cvt_pk_bf16_f32 v{ACC}, v{ACC}, v{ACC}")
        A(f"v_lshlrev_b32 v{ACC}, 16, v{ACC}")
        A(f"v_max_f32 v{ACC}, 0, v{ACC}")
        A(f"v_mul_f32 v{ACC}, v{ACC}, v{ACC}")
        A(f"v_cvt_pk_bf16_f32 v{ACC}, v{ACC}, v{ACC}")
        A(f"ds_write_b16 v11, v{ACC}")
        A("s_waitcnt lgkmcnt(0)")
        A(f"ds_read_b128 v[{PF}:{PF + 3}], v12")
        A(f"ds_read_b128 v[{PF + 4}:{PF + 7}], v12 offset:64")
        C("FP[b][f] row: 448 f32")
        A("s_lshl_b32 s35, s4, 5")
        A("s_add_u32 s35, s35, s34")
        A("s_mul_i32 s35, s35, 1792")
        A(f"s_add_u32 s35, s35, {W_FP}")
        A("s_add_u32 s35, s35, s98")
        self.srd(36, 32, 1792, 35)
        A("s_lshl_b32 s35, s3, 9")
        A("v_lshl_add_u32 v10, v2, 5, s35")
        A("s_waitcnt lgkmcnt(0)")
        for a in range(2):
            for t in range(8):
                d = ACC + 4 * t
                fr = w2_frag[(a, t)]
                c = "0" if a == 0 else f"v[{d}:{d + 3}]"
                A(f"v_mfma_f32_16x16x32_bf16 v[{d}:{d + 3}], v[{PF + 4 * a}:{PF + 4 * a + 3}], v[{fr}:{fr + 3}], {c}")
        A("s_nop 1")
        for t in range(8):
            A(f"v_min_u32 v{TP + t}, -2, v{ACC + 4 * t}")
            if t < 7:
                pass
        A("s_mov_b64 exec, 0xffff")
        A(f"buffer_store_dwordx4 v[{TP}:{TP + 3}], v10, s[36:39], 0 offen {self.apst}")
        A(f"buffer_store_dwordx4 v[{TP + 4}:{TP + 7}], v10, s[36:39], 0 offen offset:16 {self.apst}")
        A("s_mov_b64 exec, -1")
        self.label("L_st_end")
        self.stamp(8)
        self.dump_stamps(12, 10)
        A("s_endpgm")

    def service(self):
        A, C = self.A, self.C
        self.label("L_service")
        C("================= service waves (4..7), s3 -> 0..3 in s35 =================")
        WO = 64
        W1 = 192
        ST = 16
        A("s_sub_u32 s35, s3, 4")
        A("v_cmp_gt_u32 s[52:53], 56, v0")
        A("v_lshlrev_b32 v4, 4, v0")
        A(f"v_mov_b32 v5, {L_FLAG}")
        A("v_mov_b32 v8, 0")
        A("v_mov_b32 v9, 0")
        A("v_mov_b32 v10, 0")
        A("v_mov_b32 v11, 0")
        A("s_waitcnt lgkmcnt(0)")
        self.wsadj()
        C("x rows 2s, 2s+1")
        self.srd(36, 8, 8 * 896)
        A("s_mul_i32 s48, s35, 1792")
        self.epoch_load()
        A(f"buffer_load_dwordx4 v[{ST}:{ST + 3}], v4, s[36:39], s48 offen")
        A(f"buffer_load_dwordx4 v[{ST + 4}:{ST + 7}], v4, s[36:39], s48 offen offset:896")
        A("s_cmp_lg_u32 s35, 0")
        A("s_cbranch_scc1 L_sv_nowq")
        C("S0: wq loads into WO area (free for now): 56 x dword; n16 = (wg&7)*32 + (wg>>3) in s54")
        self.srd(40, 14, 448 * 8192)
        A("s_and_b32 s54, s2, 7")
        if self.bal:
            A("s_mov_b32 s49, 20")
        else:
            A("s_lshl_b32 s49, s54, 2")
        A("s_lshr_b32 s48, s2, 3")
        A("s_add_u32 s49, s49, s48")
        A("s_and_b32 s49, s49, 31")
        A("s_lshl_b32 s54, s54, 5")
        A("s_add_u32 s54, s54, s49")
        A("v_lshrrev_b32 v6, 3, v2")
        A("v_mul_u32_u24 v6, 224, v6")
        A("v_lshl_add_u32 v6, v3, 3, v6")
        A("v_lshlrev_b32 v6, 13, v6")
        A("v_and_b32 v7, 7, v2")
        A("v_lshl_add_u32 v6, v7, 2, v6")
        A("s_lshl_b32 s48, s54, 5")
        for kk in range(7):
            for i in range(8):
                r = WO + kk * 8 + i
                A(f"s_add_u32 s49, s48, {(kk * 32 + i) * 8192}")
                A(f"buffer_load_dword v{r}, v6, s[40:43], s49 offen {self.qnt}")
        C("flags = 0, HN tail = 0")
        A("ds_write_b128 v5, v[8:11]")
        A("ds_write_b128 v5, v[8:11] offset:16")
        A(f"ds_write_b128 v4, v[8:11] offset:{L_HN}")
        self.label("L_sv_nowq")
        A("s_cmp_lg_u32 s35, 1")
        A("s_cbranch_scc1 L_sv_noclr")
        if self.now & 2:
            A("s_branch L_sv_noclr")
        C("S1: clear own hand-off slots with the sentinel")
        A("v_mov_b32 v12, -1")
        A("v_mov_b32 v13, -1")
        A("v_mov_b32 v14, -1")
        A("v_mov_b32 v15, -1")
        A("s_lshl_b32 s48, s7, 13")
        A("s_lshl_b32 s49, s6, 11")
        A("s_add_u32 s48, s48, s49")
        A(f"s_add_u32 s48, s48, {W_OP}")
        A("s_add_u32 s48, s48, s98")
        self.srd(44, 32, 2048, 48)
        A("buffer_store_dwordx4 v[12:15], v4, s[44:47], 0 offen sc1")
        A("buffer_store_dwordx4 v[12:15], v4, s[44:47], 0 offen offset:1024 sc1")
        A("s_lshl_b32 s48, s7, 7")
        A("s_lshl_b32 s49, s6, 4")
        A("s_add_u32 s48, s48, s49")
        A(f"s_add_u32 s48, s48, {W_ST}")
        A("s_add_u32 s48, s48, s98")
        self.srd(44, 32, 16, 48)
        A("buffer_store_dwordx4 v[12:15], v4, s[44:47], 0 offen sc1")
        A("s_mul_i32 s48, s7, 1792")
        A("s_lshl_b32 s49, s6, 9")
        A("s_add_u32 s48, s48, s49")
        A(f"s_add_u32 s48, s48, {W_AP}")
        A("s_add_u32 s48, s48, s98")
        self.srd(44, 32, 512, 48)
        A("s_cmp_eq_u32 s6, 3")
        A("s_cselect_b32 s46, 256, s46")
        A("buffer_store_dwordx4 v[12:15], v4, s[44:47], 0 offen sc1")
        A("s_max_i32 s49, s34, 0")
        A("s_lshl_b32 s48, s4, 5")
        A("s_add_u32 s48, s48, s49")
        A("s_mul_i32 s48, s48, 1792")
        A(f"s_add_u32 s48, s48, {W_FP}")
        A("s_add_u32 s48, s48, s98")
        self.srd(44, 32, 1792, 48)
        A("s_cmp_lt_i32 s34, 0")
        A("s_cselect_b32 s46, 0, s46")
        A("buffer_store_dwordx4 v[12:15], v4, s[44:47], 0 offen sc1")
        A("buffer_store_dwordx4 v[12:15], v4, s[44:47], 0 offen offset:1024 sc1")
        if self.dyn:
            self.pp_addr(6, 48)
            A(f"s_mov_b64 exec, s[50:51]")
            for k in range(4):
                A(f"global_store_dwordx4 v6, v[12:15], s[32:33] offset:{16 * k} sc1")
            A("s_mov_b64 exec, -1")
        self.label("L_sv_noclr")
        C("zero region: each service wave clears 1 KiB")
        A("s_lshl_b32 s48, s35, 10")
        A("v_add_u32 v6, s48, v4")
        A(f"ds_write_b128 v6, v[8:11] offset:{L_ZERO}")
        A("s_waitcnt lgkmcnt(0)")
        A("s_barrier")
        A("s_add_u32 s93, s93, 1")
        C("LN1 of 2 rows")
        A("s_cmp_lg_u32 s35, 0")
        A("s_cbranch_scc1 L_sv_w0")
        A("s_waitcnt vmcnt(56)")
        A("s_branch L_sv_w1")
        self.label("L_sv_w0")
        A(f"s_waitcnt vmcnt({10 if self.dyn else 6})")
        A("s_cmp_eq_u32 s35, 1")
        A("s_cbranch_scc1 L_sv_w1")
        A("s_waitcnt vmcnt(0)")
        self.label("L_sv_w1")
        X0, X1 = 24, 32
        self.unpack8(ST, X0)
        self.unpack8(ST + 4, X1)
        self.layernorm([([X0 + e for e in range(8)], ST), ([X1 + e for e in range(8)], ST + 4)], 52, 40)
        A("s_mul_i32 s48, s35, 1792")
        A("v_add_u32 v6, s48, v4")
        A("s_mov_b64 exec, s[52:53]")
        A(f"ds_write_b128 v6, v[{ST}:{ST + 3}] offset:{L_XN}")
        A(f"ds_write_b128 v6, v[{ST + 4}:{ST + 7}] offset:{L_XN + 896}")
        A("v_mov_b32 v7, 1")
        A("s_waitcnt lgkmcnt(0)")
        A("s_mov_b64 exec, 1")
        A("ds_add_u32 v5, v7")
        A("s_mov_b64 exec, -1")
        A("s_cmp_eq_u32 s35, 0")
        A("s_cbranch_scc1 L_sv_q")
        A("s_cmp_lg_u32 s35, 1")
        A("s_cbranch_scc1 L_sv_weights")
        C("S1: arrival flag (slots cleared; every service wave read the epoch before B0)")
        if self.dyn:
            A("s_cmp_lg_u32 s6, 0")
            A("s_cbranch_scc1 L_sv_notk")
            A("s_lshl_b32 s48, s7, 7")
            A(f"s_add_u32 s48, s48, {W_TK}")
            A("v_mov_b32 v6, s48")
            A("v_mov_b32 v7, 0")
            A("s_mov_b64 exec, 1")
            A("global_store_dword v6, v7, s[32:33] sc1")
            A("s_mov_b64 exec, -1")
            self.label("L_sv_notk")
        A("s_lshl_b32 s48, s4, 5")
        A("s_add_u32 s48, s48, s34")
        A("s_add_u32 s48, s48, 4")
        A("s_lshl_b32 s48, s48, 3")
        A(f"s_add_u32 s48, s48, {W_AR}")
        A("v_mov_b32 v6, s48")
        A("v_mov_b32 v12, s92")
        A("v_mov_b32 v13, s93")
        A("s_waitcnt vmcnt(0)")
        A("s_mov_b64 exec, 1")
        A("global_store_dwordx2 v6, v[12:13], s[32:33] sc1")
        A("s_mov_b64 exec, -1")
        A("s_branch L_sv_weights")
        self.label("L_sv_q")
        C("---- S0: q for 16 columns x 8 batches ----")
        QB = WO + 64
        A("v_mov_b32 v62, s92")
        A("v_mov_b32 v63, s93")
        A("s_mov_b32 s55, 0x05040302")
        C("A frag address: (rho&7)*896 + (rho>>3)*448 + g*16 (+kk*64)")
        A("v_and_b32 v6, 7, v2")
        A("v_mul_u32_u24 v6, 896, v6")
        A("v_lshl_add_u32 v6, v3, 4, v6")
        A("v_lshrrev_b32 v7, 3, v2")
        A("v_mul_u32_u24 v7, 448, v7")
        A("v_add_u32 v6, v6, v7")
        for kk in range(7):
            A(f"s_waitcnt vmcnt({48 - 8 * kk})")
            for u in range(2):
                dst = QB + kk * 8 + u * 4
                sel = "s56" if u == 0 else "s57"
                for r in range(4):
                    A(f"v_perm_b32 v{dst + r}, v{WO + kk * 8 + 2 * r + 1}, v{WO + kk * 8 + 2 * r}, {sel}")
        self.lds_spin(5, 0, 4, 12, 50)
        for kk in range(7):
            A(f"ds_read_b128 v[{ST + 4 * kk}:{ST + 4 * kk + 3}], v6 offset:{L_XN + 64 * kk}")
        C("QG store addressing: (4g+r)*32768 + n16*128 + jj*16")
        A(f"s_mov_b32 s48, {W_QG}")
        QS = 32768 + self.spread
        self.srd(44, 32, 8 * QS, 48)
        A(f"s_mov_b32 s49, {4 * QS}")
        A("v_mul_lo_u32 v6, s49, v3")
        A("v_lshl_add_u32 v6, v2, 4, v6")
        A("s_lshl_b32 s48, s54, 7")
        DQ = 48
        for kk in range(7):
            A(f"s_waitcnt lgkmcnt({6 - kk})")
            for u in range(2):
                d = DQ + 4 * u
                fr = QB + kk * 8 + u * 4
                c = "0" if kk == 0 else f"v[{d}:{d + 3}]"
                A(f"v_mfma_f32_16x16x32_bf16 v[{d}:{d + 3}], v[{ST + 4 * kk}:{ST + 4 * kk + 3}], v[{fr}:{fr + 3}], {c}")
        A("s_nop 7")
        A("s_nop 1")
        for e in range(8):
            A(f"v_mov_b32_dpp v{ST + e}, v{DQ + e} row_ror:8 row_mask:0xf bank_mask:0xf")
        A("s_nop 1")
        for e in range(8):
            A(f"v_permlane32_swap_b32 v{ST + e}, v{ST + 8 + e}")
        A("s_nop 1")
        for e in range(8):
            A(f"v_add_f32 v{DQ + e}, v{DQ + e}, v{ST + 8 + e}")
        for r in range(4):
            o = ST + 16 + 4 * r
            A(f"v_cvt_pk_bf16_f32 v{ST + r}, v{DQ + r}, v{DQ + 4 + r}")
            A(f"v_perm_b32 v{o}, v62, v{ST + r}, s56")
            A(f"v_mov_b32 v{o + 1}, v63")
            A(f"v_perm_b32 v{o + 2}, v62, v{ST + r}, s55")
            A(f"v_mov_b32 v{o + 3}, v63")
        A("s_mov_b64 exec, 0x00ff00ff")
        for r in range(4):
            o = ST + 16 + 4 * r
            A(f"s_add_u32 s49, s48, {r * QS}")
            A(f"buffer_store_dwordx4 v[{o}:{o + 3}], v6, s[44:47], s49 offen sc1")
        A("s_mov_b64 exec, -1")
        self.stamp(1)
        C("gather q granules: QG[b][hkv*512 + 8l ..]")
        A("v_lshlrev_b32 v6, 6, v0")
        A("s_lshl_b32 s48, s4, 15")
        A("s_lshl_b32 s49, s5, 12")
        A("s_add_u32 s48, s48, s49")
        A("s_add_u32 s48, s48, s98")
        A("v_lshlrev_b32 v61, 16, v62")
        if self.margin:
            self.lds_spin(5, 16, 1, 12, 50)
        A(f"s_mov_b32 s51, {self.poll_cap}")
        self.label("L_sv_qpoll")
        for k in range(4):
            A(f"buffer_load_dwordx4 v[{ST + 4 * k}:{ST + 4 * k + 3}], v6, s[44:47], s48 offen offset:{16 * k} sc1")
        A("s_waitcnt vmcnt(0)")
        for k in range(8):
            A(f"v_xor_b32 v{48 + k}, v61, v{ST + 2 * k}")
        A("v_or3_b32 v12, v48, v49, v50")
        A("v_or3_b32 v12, v12, v51, v52")
        A("v_or3_b32 v12, v12, v53, v54")
        A("v_or_b32 v12, v12, v55")
        A("v_lshrrev_b32 v12, 16, v12")
        for k in range(8):
            A(f"v_xor_b32 v{48 + k}, v63, v{ST + 2 * k + 1}")
        A("v_or3_b32 v12, v12, v48, v49")
        A("v_or3_b32 v12, v12, v50, v51")
        A("v_or3_b32 v12, v12, v52, v53")
        A("v_or3_b32 v12, v12, v54, v55")
        A("v_cmp_ne_u32 vcc, 0, v12")
        A("s_cbranch_vccz L_sv_qok")
        if self.qsleep:
            A(f"s_sleep {self.qsleep}")
        A("s_sub_u32 s51, s51, 1")
        A("s_cmp_lg_u32 s51, 0")
        A("s_cbranch_scc1 L_sv_qpoll")
        self.label("L_sv_qok")
        self.stamp(2)
        for k in range(4):
            A(f"v_perm_b32 v{48 + k}, v{ST + 4 * k + 2}, v{ST + 4 * k}, s56")
        self.label("L_sv_qskip")
        A(f"ds_write_b128 v4, v[48:51] offset:{L_Q}")
        A("v_mov_b32 v7, 1")
        A("s_waitcnt lgkmcnt(0)")
        A("ds_write_b32 v5, v7 offset:4")
        self.stamp(3)
        self.label("L_sv_weights")
        C("---- weights: wo frags (4 ksteps), w1 frags (4 ksteps) ----")
        if self.wdelay:
            self.lds_spin(5, 4, 1, 12, 50)
        if self.now & 1:
            A("s_branch L_sv_wskip")
        self.srd(40, 16, 4096 * 896)
        A(f"v_mul_u32_u24 v6, {8 * 896}, v3")
        A("v_lshl_add_u32 v6, v2, 4, v6")
        A("s_lshl_b32 s48, s5, 9")
        A("s_lshl_b32 s49, s35, 7")
        A("s_add_u32 s48, s48, s49")
        A("s_mul_i32 s48, s48, 896")
        A("s_lshl_b32 s49, s6, 8")
        A("s_add_u32 s48, s48, s49")
        A("s_cmp_eq_u32 s6, 3")
        A("s_cselect_b32 s50, 0x00ff00ff, -1")
        A("s_mov_b32 s51, s50")
        for kk in range(4):
            A("s_mov_b64 exec, s[50:51]")
            for i in range(8):
                if i % 4 == 0:
                    A(f"s_add_u32 s49, s48, {(kk * 32 + i) * 896}")
                r = ST + 4 * i
                if i >= self.wd:
                    A(f"s_waitcnt vmcnt({self.wd - 1})")
                A(f"buffer_load_dwordx4 v[{r}:{r + 3}], v6, s[40:43], s49 offen offset:{(i & 3) * 896} {self.wnt}")
            A("s_mov_b64 exec, -1")
            A("s_waitcnt vmcnt(0)")
            for c in range(4):
                for u in range(2):
                    dst = WO + kk * 32 + (2 * c + u) * 4
                    sel = "s56" if u == 0 else "s57"
                    for r in range(4):
                        A(f"v_perm_b32 v{dst + r}, v{ST + 4 * (2 * r + 1) + c}, v{ST + 4 * (2 * r) + c}, {sel}")
        if self.late & 1:
            A("s_branch L_sv_wskip")
        self.srd(40, 20, 448 * 3584)
        A(f"v_mul_u32_u24 v6, {8 * 3584}, v3")
        A("v_lshl_add_u32 v6, v2, 3, v6")
        A(f"s_mul_i32 s48, s35, {32 * 3584}")
        A("s_cmp_lt_i32 s34, 0")
        A("s_cbranch_scc1 L_sv_wskip")
        A("s_lshl_b32 s49, s34, 7")
        A("s_add_u32 s48, s48, s49")
        for kp in range(2):
            for kk in (2 * kp, 2 * kp + 1):
                for i in range(8):
                    if i % 2 == 0:
                        A(f"s_add_u32 s49, s48, {(kk * 128 + i) * 3584}")
                    r = ST + (kk & 1) * 16 + 2 * i
                    if (kk & 1) * 8 + i >= 2 * self.wd:
                        A(f"s_waitcnt vmcnt({2 * self.wd - 1})")
                    A(f"buffer_load_dwordx2 v[{r}:{r + 1}], v6, s[40:43], s49 offen offset:{(i & 1) * 3584} {self.wnt}")
            A("s_waitcnt vmcnt(0)")
            for kk in (2 * kp, 2 * kp + 1):
                base = ST + (kk & 1) * 16
                for c in range(2):
                    for u in range(2):
                        dst = W1 + kk * 16 + (2 * c + u) * 4
                        sel = "s56" if u == 0 else "s57"
                        for r in range(4):
                            A(f"v_perm_b32 v{dst + r}, v{base + 2 * (2 * r + 1) + c}, v{base + 2 * (2 * r) + c}, {sel}")
        self.label("L_sv_wskip")
        C("workgroup 0 / S2: once all 256 arrival flags are in, advance the epoch")
        A("s_cmp_lg_u32 s2, 0")
        A("s_cbranch_scc1 L_sv_noepw")
        A("s_cmp_lg_u32 s35, 2")
        A("s_cbranch_scc1 L_sv_noepw")
        A(f"v_add_u32 v6, {W_AR}, v4")
        A(f"s_mov_b32 s51, {self.poll_cap}")
        self.label("L_sv_epoll")
        A("global_load_dwordx4 v[16:19], v6, s[32:33] sc1")
        A("global_load_dwordx4 v[20:23], v6, s[32:33] offset:1024 sc1")
        A("s_waitcnt vmcnt(0)")
        for k in range(4):
            A(f"v_xor_b32 v{16 + 2 * k}, s92, v{16 + 2 * k}")
            A(f"v_xor_b32 v{17 + 2 * k}, s93, v{17 + 2 * k}")
        A("v_or3_b32 v16, v16, v17, v18")
        A("v_or3_b32 v16, v16, v19, v20")
        A("v_or3_b32 v16, v16, v21, v22")
        A("v_or_b32 v16, v16, v23")
        A("v_cmp_ne_u32 vcc, 0, v16")
        A("s_cbranch_vccz L_sv_eok")
        A("s_sleep 16")
        A("s_sub_u32 s51, s51, 1")
        A("s_cmp_lg_u32 s51, 0")
        A("s_cbranch_scc1 L_sv_epoll")
        self.label("L_sv_eok")
        A(f"v_mov_b32 v6, {W_EP}")
        A("v_mov_b32 v7, s93")
        A("s_mov_b64 exec, 1")
        A("global_store_dword v6, v7, s[32:33] offset:4 sc1")
        A("s_mov_b64 exec, -1")
        self.label("L_sv_noepw")
        A("s_cmp_lg_u32 s35, 0")
        A("s_cbranch_scc1 L_sv_tail")
        C("---- S0: softmax stats, exchange, P ----")
        self.stamp(4)
        self.lds_spin(5, 8, 4, 12, 50)
        self.stamp(5)
        A("v_lshlrev_b32 v6, 6, v0")
        for k in range(4):
            A(f"ds_read_b128 v[{48 + 4 * k}:{48 + 4 * k + 3}], v6 offset:{L_SC + 16 * k}")
        A("s_lshl_b32 s48, s7, 7")
        A(f"s_add_u32 s48, s48, {W_ST}")
        A("s_add_u32 s48, s48, s98")
        self.srd(44, 32, 64, 48)
        A("s_mov_b32 s50, 0x3db8aa3b")
        A("s_waitcnt lgkmcnt(0)")
        H0, H1 = 16, 32
        for k in range(16):
            A(f"v_lshlrev_b32 v{H0 + k}, 16, v{48 + k}")
            A(f"v_and_b32 v{H1 + k}, 0xffff0000, v{48 + k}")
        for h, base in ((0, H0), (1, H1)):
            m = 8 + h
            A(f"v_max3_f32 v{m}, v{base}, v{base + 1}, v{base + 2}")
            for k in range(3, 15, 2):
                A(f"v_max3_f32 v{m}, v{m}, v{base + k}, v{base + k + 1}")
            A(f"v_max_f32 v{m}, v{m}, v{base + 15}")
        self.allreduce("max", [8, 9], [12, 13])
        for h, base in ((0, H0), (1, H1)):
            m = 8 + h
            sreg = 10 + h
            for k in range(16):
                A(f"v_sub_f32 v{48 + k}, v{base + k}, v{m}")
            for k in range(16):
                A(f"v_mul_f32 v{48 + k}, s50, v{48 + k}")
            for k in range(16):
                A(f"v_exp_f32 v{48 + k}, v{48 + k}")
            A("s_nop 0")
            A(f"v_add_f32 v{sreg}, v48, v49")
            for k in range(2, 16):
                A(f"v_add_f32 v{sreg}, v{sreg}, v{48 + k}")
        self.allreduce("add", [10, 11], [12, 13])
        C("publish (m0 | xcc, m1, l0, l1) = v8..v11 (m0 is a bf16 value: its low 16 bits are free)")
        A("s_getreg_b32 s91, hwreg(HW_REG_XCC_ID)")
        A("s_and_b32 s91, s91, 0xff")
        A("v_or_b32 v8, s91, v8")
        for k in range(4):
            A(f"v_min_u32 v{8 + k}, -2, v{8 + k}")
        A("s_lshl_b32 s48, s6, 4")
        A("v_mov_b32 v7, 0")
        A("s_mov_b64 exec, 1")
        A("buffer_store_dwordx4 v[8:11], v7, s[44:47], s48 offen sc1")
        A("s_mov_b64 exec, -1")
        lds = [f"buffer_load_dwordx4 v[{48 + 4 * cc}:{48 + 4 * cc + 3}], v7, s[44:47], 0 offen offset:{16 * cc} sc1" for cc in range(4)]
        C("the 32 workgroups of this batch must have cleared their slots before any slot is polled")
        A("s_lshl_b32 s48, s4, 8")
        A(f"s_add_u32 s48, s48, {W_AR}")
        A("v_and_b32 v12, 31, v0")
        A("v_lshl_add_u32 v12, v12, 3, s48")
        A(f"s_mov_b32 s51, {self.poll_cap}")
        self.label("L_sv_apoll")
        A("global_load_dwordx2 v[14:15], v12, s[32:33] sc1")
        A("s_waitcnt vmcnt(0)")
        A("v_xor_b32 v14, s92, v14")
        A("v_xor_b32 v15, s93, v15")
        A("v_or_b32 v14, v14, v15")
        A("v_cmp_ne_u32 vcc, 0, v14")
        A("s_cbranch_vccz L_sv_aok")
        A("s_sleep 8")
        A("s_sub_u32 s51, s51, 1")
        A("s_cmp_lg_u32 s51, 0")
        A("s_cbranch_scc1 L_sv_apoll")
        self.label("L_sv_aok")
        if self.margin:
            self.lds_spin(5, 20, 1, 12, 51)
        self.poll_sentinel(lds, [48 + i for i in range(16)], 12, 51, retry_sleep=self.ssleep)
        self.stamp(6)
        C("all four members on one XCD? (same answer in every member) -> LDS word for the o hand-off store flavour")
        A("v_xor_b32 v12, v48, v52")
        A("v_xor_b32 v13, v48, v56")
        A("v_xor_b32 v14, v48, v60")
        A("v_or3_b32 v12, v12, v13, v14")
        A("v_and_b32 v12, 0xffff, v12")
        A("ds_write_b32 v5, v12 offset:32")
        for cc in range(4):
            A(f"v_and_b32 v{48 + 4 * cc}, 0xffff0000, v{48 + 4 * cc}")
        for h in range(2):
            A(f"v_max3_f32 v{8 + h}, v{48 + h}, v{52 + h}, v{56 + h}")
            A(f"v_max_f32 v{8 + h}, v{8 + h}, v{60 + h}")
        for h in range(2):
            for cc in range(4):
                A(f"v_sub_f32 v{48 + 4 * cc + h}, v{48 + 4 * cc + h}, v{8 + h}")
                A(f"v_mul_f32 v{48 + 4 * cc + h}, s50, v{48 + 4 * cc + h}")
                A(f"v_exp_f32 v{48 + 4 * cc + h}, v{48 + 4 * cc + h}")
            A("s_nop 0")
            A(f"v_mul_f32 v{10 + h}, v{48 + h}, v{50 + h}")
            for cc in range(1, 4):
                A(f"v_fmac_f32 v{10 + h}, v{48 + 4 * cc + h}, v{50 + 4 * cc + h}")
            A(f"v_rcp_f32 v{10 + h}, v{10 + h}")
        for h, base in ((0, H0), (1, H1)):
            for k in range(16):
                A(f"v_sub_f32 v{base + k}, v{base + k}, v{8 + h}")
            for k in range(16):
                A(f"v_mul_f32 v{base + k}, s50, v{base + k}")
            for k in range(16):
                A(f"v_exp_f32 v{base + k}, v{base + k}")
            A("s_nop 0")
            for k in range(16):
                A(f"v_mul_f32 v{base + k}, v{base + k}, v{10 + h}")
            for par in range(2):
                for d in range(4):
                    A(f"v_cvt_pk_bf16_f32 v{48 + h * 8 + par * 4 + d}, v{base + 4 * d + par}, v{base + 4 * d + 2 + par}")
        for k in range(4):
            A(f"ds_write_b128 v6, v[{48 + 4 * k}:{48 + 4 * k + 3}] offset:{L_P + 16 * k}")
        A("v_mov_b32 v7, 1")
        A("s_waitcnt lgkmcnt(0)")
        A("ds_write_b32 v5, v7 offset:12")
        self.stamp(7)
        if self.dyn:
            C("publish the pool part of P, then gather the cluster's pool P into LDS")
            NPL = 16 - self.RS
            self.pp_addr(6, 48)
            for k in range(16):
                A(f"v_min_u32 v{48 + k}, -2, v{48 + k}")
            A("s_mov_b64 exec, s[50:51]")
            for k in range(4):
                A(f"global_store_dwordx4 v6, v[{48 + 4 * k}:{48 + 4 * k + 3}], s[32:33] offset:{16 * k} sc1")
            A("s_mov_b64 exec, -1")
            A("s_lshl_b32 s48, s7, 13")
            A(f"s_add_u32 s48, s48, {W_PP}")
            self.srd(44, 32, 8192, 48)
            A("s_mov_b32 s48, 4096")
            self.lds_spin(5, 28, 1, 12, 50)
            lds = [f"buffer_load_dwordx4 v[{16 + 4 * k}:{16 + 4 * k + 3}], v4, s[44:47], {'0' if k < 4 else 's48'} offen offset:{1024 * (k & 3)} sc1" for k in range(NPL)]
            self.poll_sentinel(lds, [16 + i for i in range(4 * NPL)], 12, 51, retry_sleep=self.ssleep)
            for k in range(NPL):
                A(f"ds_write_b128 v4, v[{16 + 4 * k}:{16 + 4 * k + 3}] offset:{L_PP + 1024 * k}")
            A("v_mov_b32 v7, 1")
            A("s_waitcnt lgkmcnt(0)")
            A("ds_write_b32 v5, v7 offset:24")
        C("preload x row b (for h) and b2")
        self.srd(36, 8, 8 * 896)
        A("s_mul_i32 s48, s4, 896")
        A("buffer_load_dwordx4 v[56:59], v4, s[36:39], s48 offen")
        self.srd(36, 26, 896)
        A("v_and_b32 v7, 3, v0")
        A("v_lshlrev_b32 v7, 3, v7")
        A("s_max_i32 s48, s34, 0")
        A("s_lshl_b32 s48, s48, 5")
        A("buffer_load_dwordx2 v[60:61], v7, s[36:39], s48 offen")
        A("s_waitcnt vmcnt(0)")
        self.label("L_sv_tail")
        C("---- tail ----")
        A("v_lshlrev_b32 v6, 4, v3")
        A("s_lshl_b32 s48, s35, 8")
        A("v_add_u32 v6, s48, v6")
        if self.late & 1:
            self.srd(40, 20, 448 * 3584)
            A("s_cmp_lt_i32 s34, 0")
            A("s_cselect_b32 s42, 0, s42")
            A(f"v_mul_u32_u24 v63, {8 * 3584}, v3")
            A("v_lshl_add_u32 v63, v2, 3, v63")
            A(f"s_mul_i32 s88, s35, {32 * 3584}")
            A("s_max_i32 s49, s34, 0")
            A("s_lshl_b32 s49, s49, 7")
            A("s_add_u32 s88, s88, s49")
        A("s_barrier")
        A("s_barrier")
        for kk in range(4):
            A(f"ds_read_b128 v[{ST + 4 * kk}:{ST + 4 * kk + 3}], v6 offset:{L_O + 64 * kk}")
        A("s_lshl_b32 s48, s35, 9")
        A("v_lshl_add_u32 v7, v2, 5, s48")
        DT = 24
        accs = [32, 36, 40, 44, 48, 52, 8, 12]
        for kk in range(4):
            A(f"s_waitcnt lgkmcnt({3 - kk})")
            for t in range(8):
                d = accs[t]
                fr = WO + kk * 32 + t * 4
                c = "0" if kk == 0 else f"v[{d}:{d + 3}]"
                A(f"v_mfma_f32_16x16x32_bf16 v[{d}:{d + 3}], v[{ST + 4 * kk}:{ST + 4 * kk + 3}], v[{fr}:{fr + 3}], {c}")
        A("s_nop 1")
        for t in range(8):
            A(f"v_mov_b32 v{ST + t}, v{accs[t]}")
        A(f"ds_write_b128 v7, v[{ST}:{ST + 3}] offset:{L_T1}")
        A(f"ds_write_b128 v7, v[{ST + 4}:{ST + 7}] offset:{L_T1 + 16}")
        A("s_waitcnt lgkmcnt(0)")
        A("s_barrier")
        W1F = W1

        def w1_loads():
            for kk in range(4):
                for i in range(8):
                    if i % 2 == 0:
                        A(f"s_add_u32 s89, s88, {(kk * 128 + i) * 3584}")
                    r = W1 + kk * 16 + 2 * i
                    A(f"buffer_load_dwordx2 v[{r}:{r + 1}], v63, s[40:43], s89 offen offset:{(i & 1) * 3584} {self.wnt}")

        def w1_perms():
            for kk in range(4):
                A(f"s_waitcnt vmcnt({24 - 8 * kk})")
                base = W1 + kk * 16
                for c in range(2):
                    for u in range(2):
                        dst = WO + 64 + kk * 16 + (2 * c + u) * 4
                        sel = "s56" if u == 0 else "s57"
                        for r in range(4):
                            A(f"v_perm_b32 v{dst + r}, v{base + 2 * (2 * r + 1) + c}, v{base + 2 * (2 * r) + c}, {sel}")
        if self.late & 1:
            W1F = WO + 64
            A("s_cmp_eq_u32 s35, 0")
            A("s_cbranch_scc1 L_sv_s0p4")
            w1_loads()
            w1_perms()
            A("s_branch L_sv_skip2")
            self.label("L_sv_s0p4")
        A("s_cmp_lg_u32 s35, 0")
        A("s_cbranch_scc1 L_sv_skip2")
        self.stamp(8)
        C("S0: P4: lanes<28: sum 4 waves, publish AP[b][hkv][112c + 4l]")
        for w in range(4):
            A(f"ds_read_b128 v[{ST + 4 * w}:{ST + 4 * w + 3}], v4 offset:{L_T1 + 512 * w}")
        A("s_mul_i32 s48, s4, 14336")
        A(f"s_add_u32 s48, s48, {W_AP}")
        A("s_add_u32 s48, s48, s98")
        self.srd(44, 32, 14336, 48)
        A("s_mul_i32 s48, s5, 1792")
        A("s_lshl_b32 s49, s6, 9")
        A("s_add_u32 s48, s48, s49")
        A("s_cmp_eq_u32 s6, 3")
        A("s_cselect_b32 s50, 0xffff, -1")
        A("s_mov_b32 s51, 0")
        A("v_lshlrev_b32 v7, 5, v0")
        A("s_waitcnt lgkmcnt(0)")
        for e in (0, 2):
            A(f"v_pk_add_f32 v[{ST + e}:{ST + e + 1}], v[{ST + e}:{ST + e + 1}], v[{ST + 4 + e}:{ST + 5 + e}]")
            A(f"v_pk_add_f32 v[{ST + 8 + e}:{ST + 9 + e}], v[{ST + 8 + e}:{ST + 9 + e}], v[{ST + 12 + e}:{ST + 13 + e}]")
        for e in (0, 2):
            A(f"v_pk_add_f32 v[{ST + e}:{ST + e + 1}], v[{ST + e}:{ST + e + 1}], v[{ST + 8 + e}:{ST + 9 + e}]")
        A("s_mov_b64 exec, s[50:51]")
        A(f"buffer_store_dwordx4 v[{ST}:{ST + 3}], v4, s[44:47], s48 offen {self.apst}")
        A("s_mov_b64 exec, -1")
        A("s_cmp_lt_i32 s34, 0")
        A("s_cbranch_scc1 L_sv_skip2")
        if self.late & 1:
            w1_loads()
            w1_perms()
        C("P5: lanes<56: gather AP[b][h'][8l..8l+8] (wo frags are dead now)")
        A("s_mov_b64 exec, s[52:53]")
        G = WO
        for hh in range(1, 4):
            A(f"s_mov_b32 s{99 + hh - 3 * (hh > 2) * 0 if False else 36 + hh}, {hh * 3584}")
        lds = []
        for hh in range(8):
            so = "0" if hh < 2 else f"s{36 + hh // 2}"
            for u in range(2):
                r = G + hh * 8 + u * 4
                lds.append(f"buffer_load_dwordx4 v[{r}:{r + 3}], v7, s[44:47], {so} offen offset:{(hh & 1) * 1792 + 16 * u} sc1")
        if not self.fastp5:
            self.poll_sentinel(lds, [G + i for i in range(64)], 12, 51, retry_sleep=self.tsleep)
            A("s_mov_b64 exec, -1")
            self.stamp(9)
            for e in range(8):
                for hh in range(0, 8, 2):
                    A(f"v_add_f32 v{G + hh * 8 + e}, v{G + hh * 8 + e}, v{G + hh * 8 + 8 + e}")
            for e in range(8):
                A(f"v_add_f32 v{G + e}, v{G + e}, v{G + 16 + e}")
                A(f"v_add_f32 v{G + 32 + e}, v{G + 32 + e}, v{G + 48 + e}")
            for e in range(8):
                A(f"v_add_f32 v{G + e}, v{G + e}, v{G + 32 + e}")
            for e in range(4):
                A(f"v_cvt_pk_bf16_f32 v{ST + e}, v{G + 2 * e}, v{G + 2 * e + 1}")
            self.unpack8(ST, G)
            self.unpack8(56, G + 8)
            for e in range(8):
                A(f"v_add_f32 v{G + e}, v{G + e}, v{G + 8 + e}")
            for e in range(4):
                A(f"v_cvt_pk_bf16_f32 v{ST + e}, v{G + 2 * e}, v{G + 2 * e + 1}")
            self.unpack8(ST, G)
            self.layernorm([([G + e for e in range(8)], ST)], 52, G + 16)
        else:
            X = 32
            def pk(d, x, y):
                A(f"v_pk_add_f32 v[{d}:{d + 1}], v[{x}:{x + 1}], v[{y}:{y + 1}]")
            A(f"s_mov_b32 s51, {self.poll_cap}")
            self.unpack8(56, X)
            self.label("L_sv_appoll")
            for x in lds:
                A(x)
            C("the sentinel is a NaN pattern: sum first, a NaN in the sums means 'not all there yet'")
            for hh in range(0, 8, 2):
                A(f"s_waitcnt vmcnt({12 - 2 * hh})")
                for e in range(0, 8, 2):
                    pk(G + hh * 8 + e, G + hh * 8 + e, G + hh * 8 + 8 + e)
                if hh == 2:
                    for e in range(0, 8, 2):
                        pk(G + e, G + e, G + 16 + e)
            for e in range(0, 8, 2):
                pk(G + 32 + e, G + 32 + e, G + 48 + e)
            for e in range(0, 8, 2):
                pk(G + e, G + e, G + 32 + e)
            pk(G + 8, G, G + 2)
            pk(G + 10, G + 4, G + 6)
            pk(G + 8, G + 8, G + 10)
            A(f"v_cmp_u_f32 vcc, v{G + 8}, v{G + 9}")
            A("s_cbranch_vccz L_sv_apok")
            A("s_sub_u32 s51, s51, 1")
            A("s_cmp_lg_u32 s51, 0")
            A("s_cbranch_scc1 L_sv_appoll")
            self.label("L_sv_apok")
            A("s_mov_b64 exec, -1")
            self.stamp(9)
            for e in range(4):
                A(f"v_cvt_pk_bf16_f32 v{ST + e}, v{G + 2 * e}, v{G + 2 * e + 1}")
            self.unpack8(ST, G)
            for e in range(0, 8, 2):
                pk(G + e, G + e, X + e)
            for e in range(4):
                A(f"v_cvt_pk_bf16_f32 v{ST + e}, v{G + 2 * e}, v{G + 2 * e + 1}")
            self.unpack8(ST, G)
            C("LayerNorm, one reduction round: sums of d = h - c and d^2 with c = h[0] (a data point, so no harmful cancellation)")
            A(f"v_readfirstlane_b32 s50, v{G}")
            D_ = G + 8
            S1, S2, T1_, T2_ = G + 16, G + 17, G + 18, G + 19
            A("s_nop 1")
            for e in range(8):
                A(f"v_subrev_f32 v{D_ + e}, s50, v{G + e}")
            pk(G + 20, D_, D_ + 2)
            pk(G + 22, D_ + 4, D_ + 6)
            A(f"v_mul_f32 v{S2}, v{D_}, v{D_}")
            A(f"v_mul_f32 v{T2_}, v{D_ + 1}, v{D_ + 1}")
            pk(G + 20, G + 20, G + 22)
            for e in range(2, 8, 2):
                A(f"v_fmac_f32 v{S2}, v{D_ + e}, v{D_ + e}")
                A(f"v_fmac_f32 v{T2_}, v{D_ + e + 1}, v{D_ + e + 1}")
            A(f"v_add_f32 v{S1}, v{G + 20}, v{G + 21}")
            A(f"v_add_f32 v{S2}, v{S2}, v{T2_}")
            A(f"v_cndmask_b32 v{S1}, 0, v{S1}, s[52:53]")
            A(f"v_cndmask_b32 v{S2}, 0, v{S2}, s[52:53]")
            self.allreduce("add", [S1, S2], [T1_, T2_])
            A(f"v_mul_f32 v{S1}, 0x3b124925, v{S1}")
            A(f"v_mul_f32 v{S2}, 0x3b124925, v{S2}")
            A(f"v_fma_f32 v{S2}, -v{S1}, v{S1}, v{S2}")
            A(f"v_add_f32 v{S1}, s50, v{S1}")
            A(f"v_max_f32 v{S2}, 0, v{S2}")
            A(f"v_cvt_pk_bf16_f32 v{T1_}, v{S1}, v{S2}")
            A(f"v_lshlrev_b32 v{S1}, 16, v{T1_}")
            A(f"v_and_b32 v{S2}, 0xffff0000, v{T1_}")
            A(f"v_add_f32 v{S2}, 0x3727c5ac, v{S2}")
            A(f"v_cvt_pk_bf16_f32 v{S2}, v{S2}, v{S2}")
            A(f"v_lshlrev_b32 v{S2}, 16, v{S2}")
            A(f"v_sqrt_f32 v{S2}, v{S2}")
            for e in range(8):
                A(f"v_sub_f32 v{D_ + e}, v{G + e}, v{S1}")
            A(f"v_cvt_pk_bf16_f32 v{S2}, v{S2}, v{S2}")
            A(f"v_lshlrev_b32 v{S2}, 16, v{S2}")
            A(f"v_rcp_f32 v{S2}, v{S2}")
            for e in range(4):
                A(f"v_cvt_pk_bf16_f32 v{ST + e}, v{D_ + 2 * e}, v{D_ + 2 * e + 1}")
            self.unpack8(ST, D_)
            for e in range(8):
                A(f"v_mul_f32 v{D_ + e}, v{D_ + e}, v{S2}")
            for e in range(4):
                A(f"v_cvt_pk_bf16_f32 v{ST + e}, v{D_ + 2 * e}, v{D_ + 2 * e + 1}")
        A("s_mov_b64 exec, s[52:53]")
        A(f"ds_write_b128 v4, v[{ST}:{ST + 3}] offset:{L_HN}")
        A(f"ds_write_b128 v7, v[{G}:{G + 3}] offset:{L_H}")
        A(f"ds_write_b128 v7, v[{G + 4}:{G + 7}] offset:{L_H + 16}")
        A("s_mov_b64 exec, -1")
        A("s_waitcnt lgkmcnt(0)")
        self.label("L_sv_skip2")
        A("s_barrier")
        C("T2a: ksteps s, s+4, s+8, s+12")
        A("v_lshlrev_b32 v6, 4, v3")
        A("s_lshl_b32 s48, s35, 6")
        A("v_add_u32 v6, s48, v6")
        for kk in range(4):
            A(f"ds_read_b128 v[{ST + 4 * kk}:{ST + 4 * kk + 3}], v6 offset:{L_HN + 256 * kk}")
        A("s_lshl_b32 s48, s35, 8")
        A("v_lshl_add_u32 v7, v2, 4, s48")
        for kk in range(4):
            A(f"s_waitcnt lgkmcnt({3 - kk})")
            for t in range(4):
                d = 32 + 4 * t
                fr = W1F + kk * 16 + t * 4
                c = "0" if kk == 0 else f"v[{d}:{d + 3}]"
                A(f"v_mfma_f32_16x16x32_bf16 v[{d}:{d + 3}], v[{ST + 4 * kk}:{ST + 4 * kk + 3}], v[{fr}:{fr + 3}], {c}")
        A("s_nop 5")
        for t in range(4):
            A(f"v_mov_b32 v{ST + t}, v{32 + 4 * t}")
        A(f"ds_write_b128 v7, v[{ST}:{ST + 3}] offset:{L_R1}")
        A("s_waitcnt lgkmcnt(0)")
        A("s_barrier")
        A("s_cmp_lg_u32 s35, 0")
        A("s_cbranch_scc1 L_end")
        self.stamp(10)
        A("s_cmp_lt_i32 s34, 0")
        A("s_cbranch_scc1 L_sv_fin")
        C("P8: final reduce: FP[b][src][16f + 4q]; lane l: src = l>>2 (+16), q = l&3")
        A("s_mul_i32 s48, s4, 57344")
        A(f"s_add_u32 s48, s48, {W_FP}")
        A("s_add_u32 s48, s48, s98")
        self.srd(44, 32, 28 * 1792, 48)
        A("v_lshrrev_b32 v6, 2, v0")
        A("v_mul_u32_u24 v6, 1792, v6")
        A("v_and_b32 v7, 3, v0")
        A("v_lshl_add_u32 v6, v7, 4, v6")
        A("s_lshl_b32 s48, s34, 6")
        A(f"s_add_u32 s49, s48, {16 * 1792}")
        A("v_lshl_add_u32 v8, v7, 4, s48")
        A(f"ds_read_b128 v[40:43], v8 offset:{L_H}")
        self.srd(36, 28, 7168)
        lds = [f"buffer_load_dwordx4 v[{ST}:{ST + 3}], v6, s[44:47], s48 offen sc1",
               f"buffer_load_dwordx4 v[{ST + 4}:{ST + 7}], v6, s[44:47], s49 offen sc1"]
        A(f"s_mov_b32 s51, {self.poll_cap}")
        self.label("L_sv_fppoll")
        for x in lds:
            A(x)
        A("s_waitcnt vmcnt(0)")
        for e in (0, 2):
            A(f"v_pk_add_f32 v[{ST + e}:{ST + e + 1}], v[{ST + e}:{ST + e + 1}], v[{ST + 4 + e}:{ST + 5 + e}]")
        A(f"v_pk_add_f32 v[{ST + 4}:{ST + 5}], v[{ST}:{ST + 1}], v[{ST + 2}:{ST + 3}]")
        A(f"v_cmp_u_f32 vcc, v{ST + 4}, v{ST + 5}")
        A("s_cbranch_vccz L_sv_fpok")
        A("s_sub_u32 s51, s51, 1")
        A("s_cmp_lg_u32 s51, 0")
        A("s_cbranch_scc1 L_sv_fppoll")
        self.label("L_sv_fpok")
        self.stamp(11)
        for ctrl in ("row_ror:4", "row_ror:8"):
            A("s_nop 1")
            for e in range(4):
                A(f"v_add_f32_dpp v{ST + e}, v{ST + e}, v{ST + e} {ctrl} row_mask:0xf bank_mask:0xf")
        for sw in ("v_permlane16_swap_b32", "v_permlane32_swap_b32"):
            for e in range(4):
                A(f"v_mov_b32 v{ST + 4 + e}, v{ST + e}")
            A("s_nop 1")
            for e in range(4):
                A(f"{sw} v{ST + e}, v{ST + 4 + e}")
            A("s_nop 1")
            for e in range(4):
                A(f"v_add_f32 v{ST + e}, v{ST + e}, v{ST + 4 + e}")
        A(f"v_cvt_pk_bf16_f32 v{ST + 4}, v{ST}, v{ST + 1}")
        A(f"v_cvt_pk_bf16_f32 v{ST + 5}, v{ST + 2}, v{ST + 3}")
        for e in range(2):
            A(f"v_lshlrev_b32 v{ST + 2 * e}, 16, v{ST + 4 + e}")
            A(f"v_and_b32 v{ST + 2 * e + 1}, 0xffff0000, v{ST + 4 + e}")
            A(f"v_lshlrev_b32 v{32 + 2 * e}, 16, v{60 + e}")
            A(f"v_and_b32 v{32 + 2 * e + 1}, 0xffff0000, v{60 + e}")
        for e in range(4):
            A(f"v_add_f32 v{ST + e}, v{ST + e}, v{32 + e}")
        A(f"v_cvt_pk_bf16_f32 v{ST + 4}, v{ST}, v{ST + 1}")
        A(f"v_cvt_pk_bf16_f32 v{ST + 5}, v{ST + 2}, v{ST + 3}")
        for e in range(2):
            A(f"v_lshlrev_b32 v{ST + 2 * e}, 16, v{ST + 4 + e}")
            A(f"v_and_b32 v{ST + 2 * e + 1}, 0xffff0000, v{ST + 4 + e}")
        A("s_waitcnt lgkmcnt(0)")
        for e in range(4):
            A(f"v_add_f32 v{ST + e}, v{ST + e}, v{40 + e}")
        A(f"v_cvt_pk_bf16_f32 v{ST + 4}, v{ST}, v{ST + 1}")
        A(f"v_cvt_pk_bf16_f32 v{ST + 5}, v{ST + 2}, v{ST + 3}")
        A("v_lshlrev_b32 v7, 3, v7")
        A("s_mul_i32 s48, s4, 896")
        A("s_lshl_b32 s49, s34, 5")
        A("s_add_u32 s48, s48, s49")
        A("s_mov_b64 exec, 0xf")
        A(f"buffer_store_dwordx2 v[{ST + 4}:{ST + 5}], v7, s[36:39], s48 offen")
        A("s_mov_b64 exec, -1")
        self.label("L_sv_fin")
        self.stamp(12)
        self.dump_stamps(13, 8)


if __name__ == "__main__":
    import argparse
    ap = argparse.ArgumentParser()
    ap.add_argument("-o", default=f"cdna_kernels/{NAME}.s")
    ap.add_argument("--D", type=int, default=5)
    ap.add_argument("--R", type=int, default=42)
    ap.add_argument("--stamps", action="store_true")
    ap.add_argument("--wnt", default="")
    ap.add_argument("--knt", default="nt")
    ap.add_argument("--nowdelay", action="store_true")
    ap.add_argument("--qnt", default="nt")
    ap.add_argument("--wd", type=int, default=8)
    ap.add_argument("--now", type=int, default=0)
    ap.add_argument("--DV", type=int, default=0)
    ap.add_argument("--wsoff", type=lambda x: int(x, 0), default=0)
    ap.add_argument("--qsleep", type=int, default=0)
    ap.add_argument("--ssleep", type=int, default=0)
    ap.add_argument("--DE", type=int, default=0)
    ap.add_argument("--tsleep", type=int, default=0)
    ap.add_argument("--margin", type=int, default=12)
    ap.add_argument("--w2pos", type=int, default=8)
    ap.add_argument("--yrot", type=int, default=0)
    ap.add_argument("--ilv", type=int, default=0)
    ap.add_argument("--RS", type=int, default=16)
    ap.add_argument("--kmargin", type=int, default=18)
    ap.add_argument("--cap", type=int, default=200000)
    ap.add_argument("--Dh", type=int, default=0)
    ap.add_argument("--cmap", type=int, default=2)
    ap.add_argument("--vnt", default=None)
    ap.add_argument("--eager", type=int, default=4)
    ap.add_argument("--opst", default="")
    ap.add_argument("--bal", type=int, default=1)
    ap.add_argument("--apst", default="sc1")
    ap.add_argument("--spread", type=lambda x: int(x, 0), default=0)
    ap.add_argument("--late", type=int, default=0)
    ap.add_argument("--DS", type=int, default=0)
    ap.add_argument("--fastp5", type=int, default=1)
    ap.add_argument("--NS", type=int, default=0)
    ap.add_argument("--NE", type=int, default=0)
    a = ap.parse_args()
    g = Gen(D=a.D, R=a.R, stamps=a.stamps, wnt=a.wnt, knt=a.knt, wdelay=not a.nowdelay, qnt=a.qnt, wd=a.wd, now=a.now, DV=a.DV, wsoff=a.wsoff, qsleep=a.qsleep, ssleep=a.ssleep, DE=a.DE, NE=a.NE, tsleep=a.tsleep, margin=a.margin, w2pos=a.w2pos, yrot=a.yrot, ilv=a.ilv, RS=a.RS, kmargin=a.kmargin, poll_cap=a.cap, Dh=a.Dh, cmap=a.cmap, vnt=a.vnt, eager=a.eager, opst=a.opst, bal=a.bal, apst=a.apst, spread=a.spread, late=a.late, DS=a.DS, NS=a.NS, fastp5=a.fastp5)
    open(a.o, "w").write(g.build())
```

```python
import sys

NAME = "sequential_preLN__gqa_block_cached__dense_activation_squared_relu__decode"

HEADER = """; Kernarg layout for this problem (104 bytes, ptrs only, base s[0:1]):
"""

L_XN = 0x0000
L_Q = 0x1C00
L_SC = 0x2000
L_SCD = 0x3000
L_P = 0x4000
L_ZERO = 0x5000
L_ACC = 0x6000
L_O = 0x8000
L_T1 = 0x8400
L_HN = 0x8C00
L_H = 0x9000
L_R1 = 0x9800
L_H1 = 0x9C00
L_FLAG = 0x9E00
L_PP = 0xA000
LDS_BYTES = 0xC000

W_QG = 0x000000
W_QF = 0x072000
W_EP = 0x070000
W_TS = 0x073000
W_AR = 0x071000
W_ST = 0x080000
W_OP = 0x090000
W_AP = 0x110000
W_FP = 0x130000
W_PP = 0x1A0000
W_TK = 0x230000
W_END = 0x380000
W_STAMP = 0x1000000


class Gen:
    def __init__(self, D=5, R=40, stamps=False, wnt="", knt="nt", poll_cap=200000, wdelay=True, wsleep=0, qnt="nt", wd=8, now=0, DV=None, wsoff=0, qsleep=0, ssleep=0, DE=0, NE=0, tsleep=0, margin=12, w2pos=8, yrot=0, ilv=0, RS=16, kmargin=18, Dh=0, cmap=0, vnt=None, eager=4, opst="", bal=1, apst="sc1", spread=0, late=0, DS=0, NS=0, fastp5=1, rowpoll=0, prio=0, adapt=None, athr=(100, 200)):
        self.L = []
        self.D = D
        self.R = R
        self.stamps = stamps
        self.wnt = wnt
        self.knt = knt
        self.poll_cap = poll_cap
        self.nlabel = 0
        self.wdelay = wdelay
        self.wsleep = wsleep
        self.qnt = qnt
        self.wd = wd
        self.now = now
        self.wsoff = wsoff
        self.qsleep = qsleep
        self.ssleep = ssleep
        self.DE = DE
        self.tsleep = tsleep
        self.margin = margin
        self.yrot = yrot
        self.ilv = ilv
        self.RS = RS
        self.kmargin = kmargin
        self.Dh = Dh
        self.cmap = cmap
        self.eager = eager
        self.opst = opst
        self.bal = bal
        self.apst = apst
        self.spread = spread
        self.late = late
        self.DS = DS
        self.fastp5 = fastp5
        self.rowpoll = rowpoll
        self.prio = prio
        self.adapt = adapt
        self.athr = athr
        self.NS = NS
        if late & 2:
            self.w2pos = 99
        self.vnt = knt if vnt is None else vnt
        self.dyn = RS < 16
        if self.dyn:
            self.ilv = 1
        self.w2pos = w2pos
        self.NE = NE
        self.DV = DV if DV else D

    def A(self, s):
        self.L.append("    " + s)

    def C(self, s):
        self.L.append("    ; " + s)

    def label(self, name):
        self.L.append(name + ":")

    def newlabel(self, base):
        self.nlabel += 1
        return f"L_{base}_{self.nlabel}"

    def stamp(self, idx):
        if self.stamps:
            self.A(f"s_memrealtime s[{60 + 2 * idx}:{61 + 2 * idx}]")

    def dump_stamps(self, n, vbase):
        if not self.stamps:
            return
        A = self.A
        A("s_waitcnt lgkmcnt(0)")
        A("s_lshl_b32 s58, s99, 3")
        A("s_add_u32 s58, s58, s3")
        A("s_lshl_b32 s58, s58, 7")
        A(f"s_add_u32 s58, s58, {W_STAMP}")
        A("s_mov_b64 exec, 1")
        A(f"v_mov_b32 v{vbase}, s58")
        for i in range(n):
            A(f"v_mov_b32 v{vbase + 2}, s{60 + 2 * i}")
            A(f"v_mov_b32 v{vbase + 3}, s{61 + 2 * i}")
            A(f"global_store_dwordx2 v{vbase}, v[{vbase + 2}:{vbase + 3}], s[32:33] offset:{8 * i}")
            A("s_nop 1")
        A(f"v_mov_b32 v{vbase + 2}, s90")
        A(f"v_mov_b32 v{vbase + 3}, s91")
        A(f"global_store_dwordx2 v{vbase}, v[{vbase + 2}:{vbase + 3}], s[32:33] offset:120")
        A("s_mov_b64 exec, -1")

    def wsadj(self):
        if self.wsoff:
            self.A(f"s_add_u32 s32, s32, {self.wsoff}")
            self.A("s_addc_u32 s33, s33, 0")

    def pp_addr(self, v, st):
        A = self.A
        RS = self.RS
        A(f"v_lshrrev_b32 v{v}, 2, v0")
        A(f"v_subrev_u32 v{v}, {RS}, v{v}")
        A(f"v_lshlrev_b32 v{v}, 10, v{v}")
        A(f"v_and_b32 v{v + 1}, 3, v0")
        A(f"v_lshl_add_u32 v{v}, v{v + 1}, 6, v{v}")
        A(f"s_lshl_b32 s{st}, s7, 13")
        A(f"s_lshl_b32 s{st + 1}, s6, 8")
        A(f"s_add_u32 s{st}, s{st}, s{st + 1}")
        A(f"s_add_u32 s{st}, s{st}, {W_PP}")
        A(f"v_add_u32 v{v}, s{st}, v{v}")
        A(f"v_cmp_le_u32 s[50:51], {4 * RS}, v0")

    def epoch_load(self):
        self.A(f"s_load_dwordx2 s[92:93], s[32:33], {W_EP}")

    def srd(self, d, ptr, size, off_sgpr=None):
        A = self.A
        if off_sgpr is None:
            A(f"s_mov_b32 s{d}, s{ptr}")
            A(f"s_mov_b32 s{d + 1}, s{ptr + 1}")
        else:
            A(f"s_add_u32 s{d}, s{ptr}, s{off_sgpr}")
            A(f"s_addc_u32 s{d + 1}, s{ptr + 1}, 0")
        A(f"s_mov_b32 s{d + 2}, {size}")
        A(f"s_mov_b32 s{d + 3}, 0x20000")

    def allreduce(self, op, regs, tmps):
        A = self.A
        for ctrl in ("quad_perm:[1,0,3,2]", "quad_perm:[2,3,0,1]", "row_half_mirror", "row_mirror"):
            A("s_nop 1")
            for r in regs:
                A(f"v_{op}_f32_dpp v{r}, v{r}, v{r} {ctrl} row_mask:0xf bank_mask:0xf")
        for sw in ("v_permlane16_swap_b32", "v_permlane32_swap_b32"):
            for r, t in zip(regs, tmps):
                A(f"v_mov_b32 v{t}, v{r}")
            A("s_nop 1")
            for r, t in zip(regs, tmps):
                A(f"{sw} v{r}, v{t}")
            A("s_nop 1")
            for r, t in zip(regs, tmps):
                A(f"v_{op}_f32 v{r}, v{r}, v{t}")

    def lds_spin(self, vaddr, off, target, vtmp, stmp):
        A = self.A
        l = self.newlabel("spin")
        d = self.newlabel("spun")
        A(f"s_mov_b32 s59, {max(self.poll_cap * 20, 100000)}")
        self.label(l)
        A(f"ds_read_b32 v{vtmp}, v{vaddr} offset:{off}")
        A("s_waitcnt lgkmcnt(0)")
        A(f"v_readfirstlane_b32 s{stmp}, v{vtmp}")
        A("s_nop 0")
        A(f"s_cmp_eq_u32 s{stmp}, {target}")
        A(f"s_cbranch_scc1 {d}")
        A("s_sleep 1")
        A("s_sub_u32 s59, s59, 1")
        A("s_cmp_lg_u32 s59, 0")
        A(f"s_cbranch_scc1 {l}")
        self.label(d)

    def poll_sentinel(self, loads, regs, vtmp, scnt, sleep=0, retry_sleep=0, first_issued=False):
        A = self.A
        l = self.newlabel("poll")
        d = self.newlabel("polled")
        A(f"s_mov_b32 s{scnt}, {self.poll_cap}")
        if first_issued:
            l2 = self.newlabel("pollchk")
            A(f"s_branch {l2}")
        self.label(l)
        if sleep:
            A(f"s_sleep {sleep}")
        for s in loads:
            A(s)
        if first_issued:
            self.label(l2)
        A("s_waitcnt vmcnt(0)")
        A(f"v_max3_u32 v{vtmp}, v{regs[0]}, v{regs[1]}, v{regs[2]}")
        rest = regs[3:]
        while len(rest) >= 2:
            A(f"v_max3_u32 v{vtmp}, v{vtmp}, v{rest[0]}, v{rest[1]}")
            rest = rest[2:]
        if rest:
            A(f"v_max_u32 v{vtmp}, v{vtmp}, v{rest[0]}")
        A(f"v_cmp_eq_u32 vcc, -1, v{vtmp}")
        A(f"s_cbranch_vccz {d}")
        if retry_sleep:
            A(f"s_sleep {retry_sleep}")
        A(f"s_sub_u32 s{scnt}, s{scnt}, 1")
        A(f"s_cmp_lg_u32 s{scnt}, 0")
        A(f"s_cbranch_scc1 {l}")
        self.label(d)

    def layernorm(self, rows, smask, t):
        A = self.A
        n = len(rows)
        S = [t + i for i in range(n)]
        T = [t + n + i for i in range(n)]
        M = [t + 2 * n + i for i in range(n)]
        DD = t + 3 * n
        for k, (x, o) in enumerate(rows):
            A(f"v_add_f32 v{S[k]}, v{x[0]}, v{x[1]}")
            for e in range(2, 8):
                A(f"v_add_f32 v{S[k]}, v{S[k]}, v{x[e]}")
            A(f"v_cndmask_b32 v{S[k]}, 0, v{S[k]}, s[{smask}:{smask + 1}]")
        self.allreduce("add", S, T)
        for k, (x, o) in enumerate(rows):
            A(f"v_mul_f32 v{M[k]}, 0x3b124925, v{S[k]}")
        for k, (x, o) in enumerate(rows):
            for e in range(8):
                A(f"v_sub_f32 v{DD + e}, v{x[e]}, v{M[k]}")
            A(f"v_mul_f32 v{S[k]}, v{DD}, v{DD}")
            for e in range(1, 8):
                A(f"v_fmac_f32 v{S[k]}, v{DD + e}, v{DD + e}")
            A(f"v_cndmask_b32 v{S[k]}, 0, v{S[k]}, s[{smask}:{smask + 1}]")
        self.allreduce("add", S, T)
        for k, (x, o) in enumerate(rows):
            A(f"v_mul_f32 v{S[k]}, 0x3b124925, v{S[k]}")
            A(f"v_cvt_pk_bf16_f32 v{T[k]}, v{M[k]}, v{S[k]}")
            A(f"v_lshlrev_b32 v{M[k]}, 16, v{T[k]}")
            A(f"v_and_b32 v{S[k]}, 0xffff0000, v{T[k]}")
            A(f"v_add_f32 v{S[k]}, 0x3727c5ac, v{S[k]}")
            A(f"v_cvt_pk_bf16_f32 v{S[k]}, v{S[k]}, v{S[k]}")
            A(f"v_lshlrev_b32 v{S[k]}, 16, v{S[k]}")
            A(f"v_sqrt_f32 v{S[k]}, v{S[k]}")
            A("s_nop 0")
            A(f"v_cvt_pk_bf16_f32 v{S[k]}, v{S[k]}, v{S[k]}")
            A(f"v_lshlrev_b32 v{S[k]}, 16, v{S[k]}")
            A(f"v_rcp_f32 v{S[k]}, v{S[k]}")
            for e in range(8):
                A(f"v_sub_f32 v{DD + e}, v{x[e]}, v{M[k]}")
            for e in range(4):
                A(f"v_cvt_pk_bf16_f32 v{o + e}, v{DD + 2 * e}, v{DD + 2 * e + 1}")
            for e in range(4):
                A(f"v_lshlrev_b32 v{DD + 2 * e}, 16, v{o + e}")
                A(f"v_and_b32 v{DD + 2 * e + 1}, 0xffff0000, v{o + e}")
            for e in range(8):
                A(f"v_mul_f32 v{DD + e}, v{DD + e}, v{S[k]}")
            for e in range(4):
                A(f"v_cvt_pk_bf16_f32 v{o + e}, v{DD + 2 * e}, v{DD + 2 * e + 1}")

    def unpack8(self, src, dst):
        for e in range(4):
            self.A(f"v_lshlrev_b32 v{dst + 2 * e}, 16, v{src + e}")
            self.A(f"v_and_b32 v{dst + 2 * e + 1}, 0xffff0000, v{src + e}")

    def build(self):
        A, C = self.A, self.C
        D, R = self.D, self.R
        self.L.append(HEADER.rstrip())
        self.L.append(f"; @launch grid=(256,1,1) block=(512,1,1) lds={LDS_BYTES if self.dyn else 0xA000}")
        self.L.append('.amdgcn_target "amdgcn-amd-amdhsa--gfx950"')
        self.L.append(".text")
        self.L.append(f".globl {NAME}_kernel")
        self.L.append(".p2align 8")
        self.L.append(f".type {NAME}_kernel,@function")
        self.label(f"{NAME}_kernel")
        A("s_cmp_ge_u32 s2, 256")
        A("s_cbranch_scc1 L_end")
        self.stamp(0)
        A("s_mov_b32 s99, s2")
        if self.yrot:
            A("s_xor_b32 s2, s2, 16")
        if self.stamps:
            A("s_getreg_b32 s90, hwreg(HW_REG_HW_ID)")
            A("s_getreg_b32 s91, hwreg(HW_REG_XCC_ID)")
        A("s_load_dwordx16 s[8:23], s[0:1], 0")
        A("s_load_dwordx8 s[24:31], s[0:1], 64")
        A("s_load_dwordx2 s[32:33], s[0:1], 96")
        A("v_lshrrev_b32 v1, 6, v0")
        A("v_and_b32 v0, 63, v0")
        A("v_readfirstlane_b32 s3, v1")
        C("decode wg -> b (s4), hkv (s5), c (s6), pair (s7), f = hkv*4+c (s34)")
        A("s_lshr_b32 s4, s2, 3")
        A("s_lshr_b32 s5, s4, 3")
        A("s_and_b32 s4, s4, 7")
        A("s_lshl_b32 s5, s5, 1")
        if self.cmap == 3:
            A("s_mov_b32 s5, s4")
            A("s_and_b32 s4, s2, 7")
            A("s_lshr_b32 s6, s2, 6")
        elif self.cmap == 2:
            A("s_and_b32 s5, s2, 7")
            A("s_lshr_b32 s6, s2, 6")
        elif self.cmap:
            A("s_and_b32 s6, s2, 1")
            A("s_add_u32 s5, s5, s6")
            A("s_bfe_u32 s6, s2, 0x20001")
        else:
            A("s_bfe_u32 s6, s2, 0x10002")
            A("s_add_u32 s5, s5, s6")
            A("s_and_b32 s6, s2, 3")
        A("s_lshl_b32 s7, s4, 3")
        A("s_add_u32 s7, s7, s5")
        A("s_lshl_b32 s34, s6, 3")
        if self.bal:
            A("s_xor_b32 s35, s5, 4")
            A("s_add_u32 s34, s34, s35")
        else:
            A("s_add_u32 s34, s34, s5")
        A("s_sub_u32 s34, s34, 4")
        A(f"s_mul_i32 s98, s4, {self.spread}")
        A("s_mov_b32 s56, 0x05040100")
        A("s_mov_b32 s57, 0x07060302")
        A("v_and_b32 v2, 15, v0")
        A("v_lshrrev_b32 v3, 4, v0")
        A("s_cmp_ge_u32 s3, 4")
        A("s_cbranch_scc1 L_service")
        self.stream()
        self.service()
        self.label("L_end")
        A("s_endpgm")
        self.L.append('.section .rodata,"a"')
        self.L.append(".p2align 6")
        self.L.append(f".amdhsa_kernel {NAME}_kernel")
        self.L.append("  .amdhsa_next_free_vgpr 256")
        self.L.append("  .amdhsa_next_free_sgpr 102")
        self.L.append("  .amdhsa_accum_offset 256")
        self.L.append("  .amdhsa_group_segment_fixed_size 0")
        self.L.append("  .amdhsa_kernarg_size 104")
        self.L.append("  .amdhsa_user_sgpr_count 2")
        self.L.append("  .amdhsa_user_sgpr_kernarg_segment_ptr 1")
        self.L.append("  .amdhsa_system_sgpr_workgroup_id_x 1")
        self.L.append("  .amdhsa_float_denorm_mode_32 3")
        self.L.append(".end_amdhsa_kernel")
        return "\n".join(self.L) + "\n"

    def stream(self):
        A, C = self.A, self.C
        D, R = self.D, self.R
        C("================= stream waves (0..3) =================")
        if self.prio:
            A(f"s_setprio {self.prio}")
        vK, vV, vSC, vP, vFL, vW2, vT = 4, 5, 6, 7, 8, 9, 10
        QF = 16
        DK = 48
        ACC = 16
        TP = 48
        PF = 80
        RING = 88
        assert RING + 4 * R <= 256
        A("v_and_b32 v10, 7, v0")
        A("v_lshrrev_b32 v11, 3, v0")
        A("v_lshlrev_b32 v4, 9, v11")
        A("v_lshl_add_u32 v4, v10, 4, v4")
        A("s_lshl_b32 s35, s3, 12")
        A("v_add_u32 v4, s35, v4")
        A("v_lshlrev_b32 v5, 4, v0")
        A("s_lshl_b32 s35, s3, 13")
        A("v_add_u32 v5, s35, v5")
        A("s_lshl_b32 s35, s7, 21")
        A(f"s_lshl_b32 s36, s6, {15 if self.ilv else 19}")
        A("s_add_u32 s35, s35, s36")
        A("s_waitcnt lgkmcnt(0)")
        self.wsadj()
        ksz = 0x200000 - 3 * 32768 if self.ilv else 0x80000
        self.srd(36, 10, ksz, 35)
        self.srd(40, 12, ksz, 35)
        self.srd(44, 24, 1792 * 896)
        loads = []
        for nb in range(32):
            for j in range(4):
                loads.append(("K", nb, j))
        RS = self.RS
        NP = (16 - RS) * 16
        vTK, vPM, vPB, vTA, vVL = 6, 12, 13, 14, 15
        for nu in range(RS):
            for i in range(8):
                loads.append(("V", nu, i))
            if nu in (self.w2pos, self.w2pos + 1):
                for i in range(8):
                    loads.append(("W", nu - self.w2pos, i))
        free = list(range(R))
        slot_of = {}
        order = []
        st = {"soff": None}

        def sreg(slot):
            return RING + 4 * slot

        def set_soff(val):
            if st["soff"] != val:
                A(f"s_mov_b32 s48, {val}")
                st["soff"] = val

        cur = {"D": D}

        cur["landed"] = -1

        def vmwait(n):
            idx = len(order) - n - 1
            if idx > cur["landed"]:
                A(f"s_waitcnt vmcnt({n})")
                cur["landed"] = idx

        def pace():
            d = cur["D"]
            if self.DS and len(order) < self.NS:
                d = self.DS
            if self.Dh and (len(order) & 1):
                d -= 1
            if len(order) >= d:
                vmwait(d - 1)

        def ticket(sd):
            A(f"s_mov_b32 s{sd}, 1")
            A(f"s_atomic_add s{sd}, s[94:95], 0 glc")

        def issue(ld):
            pace()
            slot = free.pop(0)
            slot_of[ld] = slot
            r = sreg(slot)
            kind, a, b = ld
            if kind == "K":
                set_soff(((a >> 1) * 131072 + (a & 1) * 16384) if self.ilv else a * 16384)
                A(f"buffer_load_dwordx4 v[{r}:{r + 3}], v{vK}, s[36:39], s48 offen offset:{b * 128} {self.knt}")
            elif kind == "V":
                set_soff(a * (131072 if self.ilv else 32768) + (b >> 2) * 4096)
                A(f"buffer_load_dwordx4 v[{r}:{r + 3}], v{vV}, s[40:43], s48 offen offset:{(b & 3) * 1024} {self.vnt}")
            elif kind == "W":
                A(f"s_add_u32 s48, s49, {(a * 32 + (b & 4)) * 896}")
                st["soff"] = None
                A("s_mov_b64 exec, s[52:53]")
                A(f"buffer_load_dwordx4 v[{r}:{r + 3}], v{vW2}, s[44:47], s48 offen offset:{(b & 3) * 896} {self.wnt}")
                A("s_mov_b64 exec, -1")
            order.append(ld)

        def waitfor(ld):
            vmwait(len(order) - 1 - order.index(ld))

        nxt = [0]

        def issue_next(k=1):
            for _ in range(k):
                if nxt[0] < len(loads) and free:
                    issue(loads[nxt[0]])
                    nxt[0] += 1

        issue_next(self.DS if self.DS else D)
        C("score write address: L_SC + (wave*8 + (l>>3))*4")
        A("s_lshl_b32 s35, s3, 5")
        A("v_lshrrev_b32 v10, 3, v0")
        A(f"v_lshl_add_u32 v{vSC}, v10, 2, s35")
        C("P frag address: combo = rho>>2 = 2*half+h ; active iff (g&1)==half")
        A("v_lshrrev_b32 v10, 2, v2")
        A("v_and_b32 v11, 1, v10")
        A("v_lshrrev_b32 v12, 1, v10")
        A("v_and_b32 v13, 1, v3")
        A("v_lshrrev_b32 v14, 1, v3")
        A("v_lshlrev_b32 v11, 5, v11")
        A("v_lshl_add_u32 v11, v14, 4, v11")
        A("s_lshl_b32 s35, s3, 6")
        A(f"s_add_u32 s35, s35, {L_P}")
        A(f"v_add_u32 v11, s35, v11")
        A(f"v_mov_b32 v10, {L_ZERO}")
        A("v_cmp_eq_u32 vcc, v12, v13")
        A("s_nop 1")
        A(f"v_cndmask_b32 v{vP}, v10, v11, vcc")
        A(f"v_mov_b32 v{vFL}, {L_FLAG}")
        C("w2 lane offset: g*8*896 + wave*256 + j*16 ; s49 = f*56*896")
        A(f"v_mul_u32_u24 v{vW2}, {8 * 896}, v3")
        A(f"v_lshl_add_u32 v{vW2}, v2, 4, v{vW2}")
        A("s_lshl_b32 s35, s3, 8")
        A(f"v_add_u32 v{vW2}, s35, v{vW2}")
        A(f"s_max_i32 s49, s34, 0")
        A(f"s_mul_i32 s49, s49, {64 * 896}")
        C("exec mask for the w2 loads: wave 3 covers only 64 columns; no FFN slice -> skip via 0-size SRD")
        A("s_mov_b64 s[52:53], -1")
        A("s_cmp_eq_u32 s3, 3")
        A("s_cselect_b32 s52, 0x00ff00ff, s52")
        A("s_cselect_b32 s53, 0x00ff00ff, s53")
        A("s_cmp_lt_i32 s34, 0")
        A("s_cselect_b32 s46, 0, s46")
        A("v_and_b32 v10, 7, v0")
        A("v_lshlrev_b32 v15, 4, v10")
        A("s_barrier")
        M = self.margin

        def progress_flag(off):
            A("v_mov_b32 v10, 1")
            A(f"ds_write_b32 v{vFL}, v10 offset:{off}")

        issue_next(R - self.kmargin - nxt[0])
        progress_flag(16)
        issue_next(R)
        self.stamp(1)
        self.lds_spin(vFL, 4, 1, 10, 50)
        self.stamp(2)
        for j in range(4):
            for h in range(2):
                r = QF + 8 * j + 4 * h
                A(f"ds_read_b128 v[{r}:{r + 3}], v15 offset:{L_Q + 512 * h + 128 * j}")
        A("s_waitcnt lgkmcnt(0)")

        def k_post(nb):
            d = DK + 2 * (nb & 1)
            for ctrl in ("quad_perm:[1,0,3,2]", "quad_perm:[2,3,0,1]", "row_half_mirror"):
                for h in range(2):
                    A(f"v_add_f32_dpp v{d + h}, v{d + h}, v{d + h} {ctrl} row_mask:0xf bank_mask:0xf")
                A("s_nop 0")
            A(f"v_cvt_pk_bf16_f32 v10, v{d}, v{d + 1}")
            A(f"ds_write_b32 v{vSC}, v10 offset:{L_SC + nb * 128}")

        since = [0]
        eager = [self.eager]

        def feed(e, ratio):
            want = e + 1 + cur["D"]
            if nxt[0] < want:
                issue_next(want - nxt[0])
                since[0] = 0
            else:
                since[0] += 1
                if since[0] >= ratio or eager[0] > 0:
                    n0 = nxt[0]
                    issue_next(2 if eager[0] > 0 else 1)
                    eager[0] -= nxt[0] - n0
                    since[0] = 0

        for nb in range(32):
            d = DK + 2 * (nb & 1)
            for j in range(4):
                ld = ("K", nb, j)
                feed(loads.index(ld), 3)
                waitfor(ld)
                r = sreg(slot_of[ld])
                for e in range(4):
                    for h in range(2):
                        c = "0" if (j == 0 and e == 0) else f"v{d + h}"
                        A(f"v_dot2_f32_bf16 v{d + h}, v{r + e}, v{QF + 8 * j + 4 * h + e}, {c}")
                free.append(slot_of[ld])
                if j == 0 and nb > 0:
                    k_post(nb - 1)
        A("s_nop 3")
        k_post(31)
        A("v_mov_b32 v10, 1")
        A("s_waitcnt lgkmcnt(0)")
        A("s_mov_b64 exec, 1")
        A(f"ds_add_u32 v{vFL}, v10 offset:8")
        A("s_mov_b64 exec, -1")
        self.stamp(3)
        cur["D"] = D = self.DV
        issue_next(len(free) - M)
        progress_flag(20)
        issue_next(R)
        for r in range(32):
            A(f"v_mov_b32 v{ACC + r}, 0")
        self.stamp(4)
        self.lds_spin(vFL, 12, 1, 10, 50)
        self.stamp(5)
        if self.adapt:
            A(f"ds_read_b64 v[10:11], v{vFL} offset:32")
            A("s_waitcnt lgkmcnt(0)")
            A("v_readfirstlane_b32 s97, v10")
            A("v_readfirstlane_b32 s96, v11")
        else:
            A(f"ds_read_b32 v10, v{vFL} offset:32")
            A("s_waitcnt lgkmcnt(0)")
            A("v_readfirstlane_b32 s97, v10")

        def v_and_tail():
            A(f"ds_read_b128 v[{PF}:{PF + 3}], v{vP} offset:0")
            eager[0] = self.eager
            w2_frag = {}
            if self.dyn:
                C("dynamic-phase registers")
                A(f"v_cmp_gt_u32 vcc, {L_ZERO}, v{vP}")
                A("s_lshl_b32 s35, s3, 6")
                A(f"s_add_u32 s35, s35, {L_P}")
                A(f"v_cndmask_b32 v{vPM}, 0, -1, vcc")
                A(f"v_and_b32 v{vPB}, s35, v{vPM}")
                A(f"v_sub_u32 v{vPB}, v{vP}, v{vPB}")
                A("s_lshl_b32 s35, s7, 7")
                A(f"s_add_u32 s35, s35, {W_TK}")
                A("s_add_u32 s94, s32, s35")
                A("s_addc_u32 s95, s33, 0")
                A(f"v_lshlrev_b32 v{vVL}, 4, v0")
                A("s_lshl_b32 s35, s7, 21")
                self.srd(36, 12, 0x200000, 35)

            def pair(kind, a, r, dsts):
                l0, l1 = (kind, a, 2 * r), (kind, a, 2 * r + 1)
                feed(loads.index(l1), 2)
                waitfor(l1)
                s0, s1 = sreg(slot_of[l0]), sreg(slot_of[l1])
                for t in range(8):
                    sel = "s56" if (t & 1) == 0 else "s57"
                    A(f"v_perm_b32 v{dsts[t] + r}, v{s1 + (t >> 1)}, v{s0 + (t >> 1)}, {sel}")
                free.append(slot_of[l0])
                free.append(slot_of[l1])

            NST = RS - 1 if self.dyn else 16
            for nu in range(NST):
                if self.DE and nu >= 16 - self.NE:
                    cur["D"] = self.DE
                if self.dyn and nu == RS - 4:
                    progress_flag(28)
                if self.dyn and nu == RS - 2:
                    ticket(96)
                pf = PF + 4 * (nu & 1)
                for r in range(4):
                    pair("V", nu, r, [TP + 4 * t for t in range(8)])
                A("s_waitcnt lgkmcnt(0)")
                if nu + 1 < NST:
                    pn = PF + 4 * ((nu + 1) & 1)
                    A(f"ds_read_b128 v[{pn}:{pn + 3}], v{vP} offset:{(nu + 1) * 256}")
                for t in range(8):
                    a = ACC + 4 * t
                    A(f"v_mfma_f32_16x16x32_bf16 v[{a}:{a + 3}], v[{pf}:{pf + 3}], v[{TP + 4 * t}:{TP + 4 * t + 3}], v[{a}:{a + 3}]")
                if nu in (self.w2pos, self.w2pos + 1):
                    a = nu - self.w2pos
                    assert len(free) >= 8
                    outs = [sreg(free.pop()) for _ in range(8)]
                    for t in range(8):
                        w2_frag[(a, t)] = outs[t]
                    for r in range(4):
                        pair("W", a, r, outs)
            if self.dyn:
                C("---- dynamic phase: units drawn from the cluster's pool ----")
                issue_next(16)
                assert nxt[0] == len(loads)
                sl = [sreg(slot_of[("V", RS - 1, i)]) for i in range(8)]
                self.stamp(9)
                self.lds_spin(vFL, 24, 1, 10, 50)
                self.stamp(10)
                A("s_mov_b32 s82, 0")
                A("s_mov_b32 s83, 0")
                A("s_lshl_b32 s54, s3, 6")
                A(f"s_add_u32 s54, s54, {L_P + (RS - 1) * 256}")
                self.label("L_dyn")
                A("s_mov_b32 s50, s96")
                A("s_add_u32 s82, s82, 1")
                A(f"v_and_b32 v10, s54, v{vPM}")
                A(f"v_add_u32 v10, v10, v{vPB}")
                A(f"ds_read_b128 v[{PF}:{PF + 3}], v10")
                ticket(96)
                A("s_lshl_b32 s54, s50, 6")
                A(f"s_add_u32 s54, s54, {L_PP}")
                A("s_lshl_b32 s48, s50, 13")
                A(f"s_add_u32 s48, s48, {RS * 131072}")
                A(f"s_cmp_lt_u32 s50, {NP}")
                A("s_cselect_b32 s48, s48, 0x7fff0000")
                A("s_cselect_b32 s55, 1, 0")
                A("s_add_u32 s51, s48, 4096")
                for r in range(4):
                    A("s_waitcnt vmcnt(6)")
                    s0, s1 = sl[2 * r], sl[2 * r + 1]
                    for t in range(8):
                        sel = "s56" if (t & 1) == 0 else "s57"
                        A(f"v_perm_b32 v{TP + 4 * t + r}, v{s1 + (t >> 1)}, v{s0 + (t >> 1)}, {sel}")
                    for i in (2 * r, 2 * r + 1):
                        so = "s48" if i < 4 else "s51"
                        A(f"buffer_load_dwordx4 v[{sl[i]}:{sl[i] + 3}], v{vVL}, s[36:39], {so} offen offset:{(i & 3) * 1024} {self.vnt}")
                A("s_waitcnt lgkmcnt(0)")
                for t in range(8):
                    a = ACC + 4 * t
                    A(f"v_mfma_f32_16x16x32_bf16 v[{a}:{a + 3}], v[{PF}:{PF + 3}], v[{TP + 4 * t}:{TP + 4 * t + 3}], v[{a}:{a + 3}]")
                A("s_cmp_eq_u32 s55, 1")
                A("s_cbranch_scc1 L_dyn")
            self.stamp(6)
            C("---- tail: write acc to LDS: lane (j,g): combo g, cols j*8..+8 -> [h][256] layout")
            A("v_and_b32 v10, 1, v3")
            A("v_lshrrev_b32 v11, 1, v3")
            A("v_lshlrev_b32 v10, 10, v10")
            A("v_lshl_add_u32 v10, v11, 9, v10")
            A("v_lshl_add_u32 v10, v2, 5, v10")
            A("s_lshl_b32 s35, s3, 11")
            A("v_add_u32 v10, s35, v10")
            A("s_nop 2")
            for t in range(8):
                A(f"v_mov_b32 v{TP + t}, v{ACC + 4 * t}")
            A(f"ds_write_b128 v10, v[{TP}:{TP + 3}] offset:{L_ACC}")
            A(f"ds_write_b128 v10, v[{TP + 4}:{TP + 7}] offset:{L_ACC + 16}")
            A("s_waitcnt lgkmcnt(0)")
            A("s_barrier")
            C("P1/P2: waves 0,1: lane t=wave*64+l handles cols 4t..4t+3")
            A("s_cmp_ge_u32 s3, 2")
            A("s_cbranch_scc1 L_st_skip1")
            A("s_lshl_b32 s35, s3, 10")
            A("v_lshl_add_u32 v10, v0, 4, s35")
            for w in range(4):
                A(f"ds_read_b128 v[{ACC + 4 * w}:{ACC + 4 * w + 3}], v10 offset:{L_ACC + 2048 * w}")
            A("s_lshl_b32 s35, s7, 13")
            A(f"s_add_u32 s35, s35, {W_OP}")
            A("s_add_u32 s35, s35, s98")
            self.srd(36, 32, 0x2000, 35)
            A("s_lshl_b32 s48, s6, 11")
            A("s_waitcnt lgkmcnt(0)")
            for e in (0, 2):
                A(f"v_pk_add_f32 v[{ACC + e}:{ACC + e + 1}], v[{ACC + e}:{ACC + e + 1}], v[{ACC + 4 + e}:{ACC + 5 + e}]")
                A(f"v_pk_add_f32 v[{ACC + 8 + e}:{ACC + 9 + e}], v[{ACC + 8 + e}:{ACC + 9 + e}], v[{ACC + 12 + e}:{ACC + 13 + e}]")
            for e in (0, 2):
                A(f"v_pk_add_f32 v[{ACC + e}:{ACC + e + 1}], v[{ACC + e}:{ACC + e + 1}], v[{ACC + 8 + e}:{ACC + 9 + e}]")
            A("s_cmp_lg_u32 s97, 0")
            A("s_cbranch_scc1 L_st_far")
            A(f"buffer_store_dwordx4 v[{ACC}:{ACC + 3}], v10, s[36:39], s48 offen {self.opst}")
            A("s_branch L_st_stored")
            self.label("L_st_far")
            A(f"buffer_store_dwordx4 v[{ACC}:{ACC + 3}], v10, s[36:39], s48 offen sc1")
            self.label("L_st_stored")
            A("v_add_u32 v11, 0x1000, v10")
            lds = []
            for cc in range(4):
                r = ACC + 16 + 4 * cc
                va = "v10" if cc < 2 else "v11"
                lds.append(f"buffer_load_dwordx4 v[{r}:{r + 3}], {va}, s[36:39], 0 offen offset:{(cc & 1) * 2048} sc1")
            b = ACC + 16

            def pk(d, x, y):
                A(f"v_pk_add_f32 v[{d}:{d + 1}], v[{x}:{x + 1}], v[{y}:{y + 1}]")
            A(f"s_mov_b32 s50, {self.poll_cap}")
            self.label("L_st_oppoll")
            for x in lds:
                A(x)
            A("s_waitcnt vmcnt(2)")
            pk(b, b, b + 4)
            pk(b + 2, b + 2, b + 6)
            A("s_waitcnt vmcnt(0)")
            pk(b + 8, b + 8, b + 12)
            pk(b + 10, b + 10, b + 14)
            pk(b, b, b + 8)
            pk(b + 2, b + 2, b + 10)
            pk(b + 4, b, b + 2)
            A(f"v_cmp_u_f32 vcc, v{b + 4}, v{b + 5}")
            A("s_cbranch_vccz L_st_opok")
            A("s_sub_u32 s50, s50, 1")
            A("s_cmp_lg_u32 s50, 0")
            A("s_cbranch_scc1 L_st_oppoll")
            self.label("L_st_opok")
            self.stamp(7)
            A(f"v_cvt_pk_bf16_f32 v12, v{b}, v{b + 1}")
            A(f"v_cvt_pk_bf16_f32 v13, v{b + 2}, v{b + 3}")
            A("v_lshrrev_b32 v10, 1, v10")
            A(f"ds_write_b64 v10, v[12:13] offset:{L_O}")
            A("s_waitcnt lgkmcnt(0)")
            self.label("L_st_skip1")
            A("s_barrier")
            C("b1 preload: lane k<56 b1[56f+k]")
            self.srd(36, 22, 1792 * 2)
            A("s_max_i32 s48, s34, 0")
            A("s_lshl_b32 s48, s48, 7")
            A("v_lshlrev_b32 v10, 1, v0")
            A("buffer_load_ushort v14, v10, s[36:39], s48 offen")
            if self.late & 2:
                raw = [sreg(k) for k in range(16)]
                A("s_mov_b64 exec, s[52:53]")
                for a in range(2):
                    for i in range(8):
                        r = raw[a * 8 + i]
                        if i % 4 == 0:
                            A(f"s_add_u32 s48, s49, {(a * 32 + i) * 896}")
                        A(f"buffer_load_dwordx4 v[{r}:{r + 3}], v{vW2}, s[44:47], s48 offen offset:{(i & 3) * 896} {self.wnt}")
                A("s_mov_b64 exec, -1")
            A("s_barrier")
            if self.late & 2:
                for a in range(2):
                    A(f"s_waitcnt vmcnt({8 - 8 * a})")
                    for t in range(8):
                        dst = sreg(16 + a * 8 + t)
                        w2_frag[(a, t)] = dst
                        sel = "s56" if (t & 1) == 0 else "s57"
                        for r in range(4):
                            A(f"v_perm_b32 v{dst + r}, v{raw[a * 8 + 2 * r + 1] + (t >> 1)}, v{raw[a * 8 + 2 * r] + (t >> 1)}, {sel}")
            A("s_barrier")
            A("s_barrier")
            A("s_cmp_lt_i32 s34, 0")
            A("s_cbranch_scc1 L_st_end")
            C("h1: lane k: sum R1[w][k], +b1, relu^2 -> private LDS row, then A frags")
            A("v_lshlrev_b32 v10, 2, v0")
            for w in range(4):
                A(f"ds_read_b32 v{ACC + w}, v10 offset:{L_R1 + 256 * w}")
            A("s_lshl_b32 s35, s3, 7")
            A(f"s_add_u32 s35, s35, {L_H1}")
            A("v_lshl_add_u32 v11, v0, 1, s35")
            A("v_lshl_add_u32 v12, v3, 4, s35")
            A("s_waitcnt vmcnt(0) lgkmcnt(0)")
            A(f"v_add_f32 v{ACC}, v{ACC}, v{ACC + 1}")
            A(f"v_add_f32 v{ACC + 2}, v{ACC + 2}, v{ACC + 3}")
            A(f"v_add_f32 v{ACC}, v{ACC}, v{ACC + 2}")
            A("v_lshlrev_b32 v14, 16, v14")
            A(f"v_cvt_pk_bf16_f32 v{ACC}, v{ACC}, v{ACC}")
            A(f"v_lshlrev_b32 v{ACC}, 16, v{ACC}")
            A(f"v_add_f32 v{ACC}, v{ACC}, v14")
            A(f"v_cvt_pk_bf16_f32 v{ACC}, v{ACC}, v{ACC}")
            A(f"v_lshlrev_b32 v{ACC}, 16, v{ACC}")
            A(f"v_max_f32 v{ACC}, 0, v{ACC}")
            A(f"v_mul_f32 v{ACC}, v{ACC}, v{ACC}")
            A(f"v_cvt_pk_bf16_f32 v{ACC}, v{ACC}, v{ACC}")
            A(f"ds_write_b16 v11, v{ACC}")
            A("s_waitcnt lgkmcnt(0)")
            A(f"ds_read_b128 v[{PF}:{PF + 3}], v12")
            A(f"ds_read_b128 v[{PF + 4}:{PF + 7}], v12 offset:64")
            C("FP[b][f] row: 448 f32")
            A("s_lshl_b32 s35, s4, 5")
            A("s_add_u32 s35, s35, s34")
            A("s_mul_i32 s35, s35, 1792")
            A(f"s_add_u32 s35, s35, {W_FP}")
            A("s_add_u32 s35, s35, s98")
            self.srd(36, 32, 1792, 35)
            A("s_lshl_b32 s35, s3, 9")
            A("v_lshl_add_u32 v10, v2, 5, s35")
            A("s_waitcnt lgkmcnt(0)")
            for a in range(2):
                for t in range(8):
                    d = ACC + 4 * t
                    fr = w2_frag[(a, t)]
                    c = "0" if a == 0 else f"v[{d}:{d + 3}]"
                    A(f"v_mfma_f32_16x16x32_bf16 v[{d}:{d + 3}], v[{PF + 4 * a}:{PF + 4 * a + 3}], v[{fr}:{fr + 3}], {c}")
            A("s_nop 1")
            for t in range(8):
                A(f"v_min_u32 v{TP + t}, -2, v{ACC + 4 * t}")
                if t < 7:
                    pass
            A("s_mov_b64 exec, 0xffff")
            A(f"buffer_store_dwordx4 v[{TP}:{TP + 3}], v10, s[36:39], 0 offen {self.apst}")
            A(f"buffer_store_dwordx4 v[{TP + 4}:{TP + 7}], v10, s[36:39], 0 offen offset:16 {self.apst}")
            A("s_mov_b64 exec, -1")
            self.label("L_st_end")
            self.stamp(8)
            self.dump_stamps(12, 10)
            A("s_endpgm")

        if not self.adapt:
            v_and_tail()
        else:
            import copy
            import re
            variants = self.adapt
            for k in range(1, len(variants)):
                A(f"s_cmp_eq_u32 s96, {k}")
                A(f"s_cbranch_scc1 L_var{k}")
            snap = (list(free), dict(slot_of), list(order), dict(st), dict(cur), nxt[0], since[0])
            for k, dv in enumerate(variants):
                free[:] = snap[0]
                slot_of.clear(); slot_of.update(snap[1])
                order[:] = snap[2]
                st.clear(); st.update(snap[3])
                cur.clear(); cur.update(snap[4])
                nxt[0] = snap[5]; since[0] = snap[6]
                cur["D"] = dv
                self.dE_now = max(self.DE, dv) if self.DE else 0
                n0 = len(self.L)
                if k:
                    self.label(f"L_var{k}")
                v_and_tail()
                for i in range(n0, len(self.L)):
                    self.L[i] = re.sub(r"L_st_", f"L_st{k}_", self.L[i])

    def service(self):
        A, C = self.A, self.C
        self.label("L_service")
        C("================= service waves (4..7), s3 -> 0..3 in s35 =================")
        WO = 64
        W1 = 192
        ST = 16
        A("s_sub_u32 s35, s3, 4")
        A("v_cmp_gt_u32 s[52:53], 56, v0")
        A("v_lshlrev_b32 v4, 4, v0")
        A(f"v_mov_b32 v5, {L_FLAG}")
        A("v_mov_b32 v8, 0")
        A("v_mov_b32 v9, 0")
        A("v_mov_b32 v10, 0")
        A("v_mov_b32 v11, 0")
        A("s_waitcnt lgkmcnt(0)")
        self.wsadj()
        C("x rows 2s, 2s+1")
        self.srd(36, 8, 8 * 896)
        A("s_mul_i32 s48, s35, 1792")
        self.epoch_load()
        A(f"buffer_load_dwordx4 v[{ST}:{ST + 3}], v4, s[36:39], s48 offen")
        A(f"buffer_load_dwordx4 v[{ST + 4}:{ST + 7}], v4, s[36:39], s48 offen offset:896")
        A("s_cmp_lg_u32 s35, 0")
        A("s_cbranch_scc1 L_sv_nowq")
        C("S0: wq loads into WO area (free for now): 56 x dword; n16 = (wg&7)*32 + (wg>>3) in s54")
        self.srd(40, 14, 448 * 8192)
        A("s_and_b32 s54, s2, 7")
        if self.bal:
            A("s_mov_b32 s49, 20")
        else:
            A("s_lshl_b32 s49, s54, 2")
        A("s_lshr_b32 s48, s2, 3")
        A("s_add_u32 s49, s49, s48")
        A("s_and_b32 s49, s49, 31")
        A("s_lshl_b32 s54, s54, 5")
        A("s_add_u32 s54, s54, s49")
        A("v_lshrrev_b32 v6, 3, v2")
        A("v_mul_u32_u24 v6, 224, v6")
        A("v_lshl_add_u32 v6, v3, 3, v6")
        A("v_lshlrev_b32 v6, 13, v6")
        A("v_and_b32 v7, 7, v2")
        A("v_lshl_add_u32 v6, v7, 2, v6")
        A("s_lshl_b32 s48, s54, 5")
        for kk in range(7):
            for i in range(8):
                r = WO + kk * 8 + i
                A(f"s_add_u32 s49, s48, {(kk * 32 + i) * 8192}")
                A(f"buffer_load_dword v{r}, v6, s[40:43], s49 offen {self.qnt}")
        C("flags = 0, HN tail = 0")
        A("ds_write_b128 v5, v[8:11]")
        A("ds_write_b128 v5, v[8:11] offset:16")
        A(f"ds_write_b128 v4, v[8:11] offset:{L_HN}")
        self.label("L_sv_nowq")
        A("s_cmp_lg_u32 s35, 1")
        A("s_cbranch_scc1 L_sv_noclr")
        if self.now & 2:
            A("s_branch L_sv_noclr")
        C("S1: clear own hand-off slots with the sentinel")
        A("v_mov_b32 v12, -1")
        A("v_mov_b32 v13, -1")
        A("v_mov_b32 v14, -1")
        A("v_mov_b32 v15, -1")
        A("s_lshl_b32 s48, s7, 13")
        A("s_lshl_b32 s49, s6, 11")
        A("s_add_u32 s48, s48, s49")
        A(f"s_add_u32 s48, s48, {W_OP}")
        A("s_add_u32 s48, s48, s98")
        self.srd(44, 32, 2048, 48)
        A("buffer_store_dwordx4 v[12:15], v4, s[44:47], 0 offen sc1")
        A("buffer_store_dwordx4 v[12:15], v4, s[44:47], 0 offen offset:1024 sc1")
        A("s_lshl_b32 s48, s7, 7")
        A("s_lshl_b32 s49, s6, 4")
        A("s_add_u32 s48, s48, s49")
        A(f"s_add_u32 s48, s48, {W_ST}")
        A("s_add_u32 s48, s48, s98")
        self.srd(44, 32, 16, 48)
        A("buffer_store_dwordx4 v[12:15], v4, s[44:47], 0 offen sc1")
        A("s_mul_i32 s48, s7, 1792")
        A("s_lshl_b32 s49, s6, 9")
        A("s_add_u32 s48, s48, s49")
        A(f"s_add_u32 s48, s48, {W_AP}")
        A("s_add_u32 s48, s48, s98")
        self.srd(44, 32, 512, 48)
        A("s_cmp_eq_u32 s6, 3")
        A("s_cselect_b32 s46, 256, s46")
        A("buffer_store_dwordx4 v[12:15], v4, s[44:47], 0 offen sc1")
        A("s_max_i32 s49, s34, 0")
        A("s_lshl_b32 s48, s4, 5")
        A("s_add_u32 s48, s48, s49")
        A("s_mul_i32 s48, s48, 1792")
        A(f"s_add_u32 s48, s48, {W_FP}")
        A("s_add_u32 s48, s48, s98")
        self.srd(44, 32, 1792, 48)
        A("s_cmp_lt_i32 s34, 0")
        A("s_cselect_b32 s46, 0, s46")
        A("buffer_store_dwordx4 v[12:15], v4, s[44:47], 0 offen sc1")
        A("buffer_store_dwordx4 v[12:15], v4, s[44:47], 0 offen offset:1024 sc1")
        if self.dyn:
            self.pp_addr(6, 48)
            A(f"s_mov_b64 exec, s[50:51]")
            for k in range(4):
                A(f"global_store_dwordx4 v6, v[12:15], s[32:33] offset:{16 * k} sc1")
            A("s_mov_b64 exec, -1")
        self.label("L_sv_noclr")
        C("zero region: each service wave clears 1 KiB")
        A("s_lshl_b32 s48, s35, 10")
        A("v_add_u32 v6, s48, v4")
        A(f"ds_write_b128 v6, v[8:11] offset:{L_ZERO}")
        A("s_waitcnt lgkmcnt(0)")
        A("s_barrier")
        A("s_add_u32 s93, s93, 1")
        C("LN1 of 2 rows")
        A("s_cmp_lg_u32 s35, 0")
        A("s_cbranch_scc1 L_sv_w0")
        A("s_waitcnt vmcnt(56)")
        A("s_branch L_sv_w1")
        self.label("L_sv_w0")
        A(f"s_waitcnt vmcnt({10 if self.dyn else 6})")
        A("s_cmp_eq_u32 s35, 1")
        A("s_cbranch_scc1 L_sv_w1")
        A("s_waitcnt vmcnt(0)")
        self.label("L_sv_w1")
        X0, X1 = 24, 32
        self.unpack8(ST, X0)
        self.unpack8(ST + 4, X1)
        self.layernorm([([X0 + e for e in range(8)], ST), ([X1 + e for e in range(8)], ST + 4)], 52, 40)
        A("s_mul_i32 s48, s35, 1792")
        A("v_add_u32 v6, s48, v4")
        A("s_mov_b64 exec, s[52:53]")
        A(f"ds_write_b128 v6, v[{ST}:{ST + 3}] offset:{L_XN}")
        A(f"ds_write_b128 v6, v[{ST + 4}:{ST + 7}] offset:{L_XN + 896}")
        A("v_mov_b32 v7, 1")
        A("s_waitcnt lgkmcnt(0)")
        A("s_mov_b64 exec, 1")
        A("ds_add_u32 v5, v7")
        A("s_mov_b64 exec, -1")
        A("s_cmp_eq_u32 s35, 0")
        A("s_cbranch_scc1 L_sv_q")
        A("s_cmp_lg_u32 s35, 1")
        A("s_cbranch_scc1 L_sv_weights")
        C("S1: arrival flag (slots cleared; every service wave read the epoch before B0)")
        if self.dyn:
            A("s_cmp_lg_u32 s6, 0")
            A("s_cbranch_scc1 L_sv_notk")
            A("s_lshl_b32 s48, s7, 7")
            A(f"s_add_u32 s48, s48, {W_TK}")
            A("v_mov_b32 v6, s48")
            A("v_mov_b32 v7, 0")
            A("s_mov_b64 exec, 1")
            A("global_store_dword v6, v7, s[32:33] sc1")
            A("s_mov_b64 exec, -1")
            self.label("L_sv_notk")
        A("s_lshl_b32 s48, s4, 5")
        A("s_add_u32 s48, s48, s34")
        A("s_add_u32 s48, s48, 4")
        A("s_lshl_b32 s48, s48, 3")
        A(f"s_add_u32 s48, s48, {W_AR}")
        A("v_mov_b32 v6, s48")
        A("v_mov_b32 v12, s92")
        A("v_mov_b32 v13, s93")
        A("s_waitcnt vmcnt(0)")
        A("s_mov_b64 exec, 1")
        A("global_store_dwordx2 v6, v[12:13], s[32:33] sc1")
        A("s_mov_b64 exec, -1")
        A("s_branch L_sv_weights")
        self.label("L_sv_q")
        C("---- S0: q for 16 columns x 8 batches ----")
        QB = WO + 64
        A("v_mov_b32 v62, s92")
        A("v_mov_b32 v63, s93")
        A("s_mov_b32 s55, 0x05040302")
        C("A frag address: (rho&7)*896 + (rho>>3)*448 + g*16 (+kk*64)")
        A("v_and_b32 v6, 7, v2")
        A("v_mul_u32_u24 v6, 896, v6")
        A("v_lshl_add_u32 v6, v3, 4, v6")
        A("v_lshrrev_b32 v7, 3, v2")
        A("v_mul_u32_u24 v7, 448, v7")
        A("v_add_u32 v6, v6, v7")
        for kk in range(7):
            A(f"s_waitcnt vmcnt({48 - 8 * kk})")
            for u in range(2):
                dst = QB + kk * 8 + u * 4
                sel = "s56" if u == 0 else "s57"
                for r in range(4):
                    A(f"v_perm_b32 v{dst + r}, v{WO + kk * 8 + 2 * r + 1}, v{WO + kk * 8 + 2 * r}, {sel}")
        self.lds_spin(5, 0, 4, 12, 50)
        for kk in range(7):
            A(f"ds_read_b128 v[{ST + 4 * kk}:{ST + 4 * kk + 3}], v6 offset:{L_XN + 64 * kk}")
        C("QG store addressing: (4g+r)*32768 + n16*128 + jj*16")
        A(f"s_mov_b32 s48, {W_QG}")
        QS = 32768 + self.spread
        self.srd(44, 32, 8 * QS, 48)
        A(f"s_mov_b32 s49, {4 * QS}")
        A("v_mul_lo_u32 v6, s49, v3")
        A("v_lshl_add_u32 v6, v2, 4, v6")
        A("s_lshl_b32 s48, s54, 7")
        DQ = 48
        for kk in range(7):
            A(f"s_waitcnt lgkmcnt({6 - kk})")
            for u in range(2):
                d = DQ + 4 * u
                fr = QB + kk * 8 + u * 4
                c = "0" if kk == 0 else f"v[{d}:{d + 3}]"
                A(f"v_mfma_f32_16x16x32_bf16 v[{d}:{d + 3}], v[{ST + 4 * kk}:{ST + 4 * kk + 3}], v[{fr}:{fr + 3}], {c}")
        A("s_nop 7")
        A("s_nop 1")
        for e in range(8):
            A(f"v_mov_b32_dpp v{ST + e}, v{DQ + e} row_ror:8 row_mask:0xf bank_mask:0xf")
        A("s_nop 1")
        for e in range(8):
            A(f"v_permlane32_swap_b32 v{ST + e}, v{ST + 8 + e}")
        A("s_nop 1")
        for e in range(8):
            A(f"v_add_f32 v{DQ + e}, v{DQ + e}, v{ST + 8 + e}")
        for r in range(4):
            o = ST + 16 + 4 * r
            A(f"v_cvt_pk_bf16_f32 v{ST + r}, v{DQ + r}, v{DQ + 4 + r}")
            A(f"v_perm_b32 v{o}, v62, v{ST + r}, s56")
            A(f"v_mov_b32 v{o + 1}, v63")
            A(f"v_perm_b32 v{o + 2}, v62, v{ST + r}, s55")
            A(f"v_mov_b32 v{o + 3}, v63")
        A("s_mov_b64 exec, 0x00ff00ff")
        for r in range(4):
            o = ST + 16 + 4 * r
            A(f"s_add_u32 s49, s48, {r * QS}")
            A(f"buffer_store_dwordx4 v[{o}:{o + 3}], v6, s[44:47], s49 offen sc1")
        A("s_mov_b64 exec, -1")
        self.stamp(1)
        C("gather q granules: QG[b][hkv*512 + 8l ..]")
        A("v_lshlrev_b32 v6, 6, v0")
        A("s_lshl_b32 s48, s4, 15")
        A("s_lshl_b32 s49, s5, 12")
        A("s_add_u32 s48, s48, s49")
        A("s_add_u32 s48, s48, s98")
        A("v_lshlrev_b32 v61, 16, v62")
        if self.margin:
            self.lds_spin(5, 16, 1, 12, 50)
        A(f"s_mov_b32 s51, {self.poll_cap}")
        self.label("L_sv_qpoll")
        for k in range(4):
            A(f"buffer_load_dwordx4 v[{ST + 4 * k}:{ST + 4 * k + 3}], v6, s[44:47], s48 offen offset:{16 * k} sc1")
        A("s_waitcnt vmcnt(0)")
        for k in range(8):
            A(f"v_xor_b32 v{48 + k}, v61, v{ST + 2 * k}")
        A("v_or3_b32 v12, v48, v49, v50")
        A("v_or3_b32 v12, v12, v51, v52")
        A("v_or3_b32 v12, v12, v53, v54")
        A("v_or_b32 v12, v12, v55")
        A("v_lshrrev_b32 v12, 16, v12")
        for k in range(8):
            A(f"v_xor_b32 v{48 + k}, v63, v{ST + 2 * k + 1}")
        A("v_or3_b32 v12, v12, v48, v49")
        A("v_or3_b32 v12, v12, v50, v51")
        A("v_or3_b32 v12, v12, v52, v53")
        A("v_or3_b32 v12, v12, v54, v55")
        A("v_cmp_ne_u32 vcc, 0, v12")
        A("s_cbranch_vccz L_sv_qok")
        if self.qsleep:
            A(f"s_sleep {self.qsleep}")
        A("s_sub_u32 s51, s51, 1")
        A("s_cmp_lg_u32 s51, 0")
        A("s_cbranch_scc1 L_sv_qpoll")
        self.label("L_sv_qok")
        self.stamp(2)
        for k in range(4):
            A(f"v_perm_b32 v{48 + k}, v{ST + 4 * k + 2}, v{ST + 4 * k}, s56")
        self.label("L_sv_qskip")
        A(f"ds_write_b128 v4, v[48:51] offset:{L_Q}")
        A("v_mov_b32 v7, 1")
        A("s_waitcnt lgkmcnt(0)")
        A("ds_write_b32 v5, v7 offset:4")
        self.stamp(3)
        self.label("L_sv_weights")
        C("---- weights: wo frags (4 ksteps), w1 frags (4 ksteps) ----")
        if self.wdelay:
            self.lds_spin(5, 4, 1, 12, 50)
        if self.now & 1:
            A("s_branch L_sv_wskip")
        self.srd(40, 16, 4096 * 896)
        A(f"v_mul_u32_u24 v6, {8 * 896}, v3")
        A("v_lshl_add_u32 v6, v2, 4, v6")
        A("s_lshl_b32 s48, s5, 9")
        A("s_lshl_b32 s49, s35, 7")
        A("s_add_u32 s48, s48, s49")
        A("s_mul_i32 s48, s48, 896")
        A("s_lshl_b32 s49, s6, 8")
        A("s_add_u32 s48, s48, s49")
        A("s_cmp_eq_u32 s6, 3")
        A("s_cselect_b32 s50, 0x00ff00ff, -1")
        A("s_mov_b32 s51, s50")
        for kk in range(4):
            A("s_mov_b64 exec, s[50:51]")
            for i in range(8):
                if i % 4 == 0:
                    A(f"s_add_u32 s49, s48, {(kk * 32 + i) * 896}")
                r = ST + 4 * i
                if i >= self.wd:
                    A(f"s_waitcnt vmcnt({self.wd - 1})")
                A(f"buffer_load_dwordx4 v[{r}:{r + 3}], v6, s[40:43], s49 offen offset:{(i & 3) * 896} {self.wnt}")
            A("s_mov_b64 exec, -1")
            A("s_waitcnt vmcnt(0)")
            for c in range(4):
                for u in range(2):
                    dst = WO + kk * 32 + (2 * c + u) * 4
                    sel = "s56" if u == 0 else "s57"
                    for r in range(4):
                        A(f"v_perm_b32 v{dst + r}, v{ST + 4 * (2 * r + 1) + c}, v{ST + 4 * (2 * r) + c}, {sel}")
        if self.late & 1:
            A("s_branch L_sv_wskip")
        self.srd(40, 20, 448 * 3584)
        A(f"v_mul_u32_u24 v6, {8 * 3584}, v3")
        A("v_lshl_add_u32 v6, v2, 3, v6")
        A(f"s_mul_i32 s48, s35, {32 * 3584}")
        A("s_cmp_lt_i32 s34, 0")
        A("s_cbranch_scc1 L_sv_wskip")
        A("s_lshl_b32 s49, s34, 7")
        A("s_add_u32 s48, s48, s49")
        for kp in range(2):
            for kk in (2 * kp, 2 * kp + 1):
                for i in range(8):
                    if i % 2 == 0:
                        A(f"s_add_u32 s49, s48, {(kk * 128 + i) * 3584}")
                    r = ST + (kk & 1) * 16 + 2 * i
                    if (kk & 1) * 8 + i >= 2 * self.wd:
                        A(f"s_waitcnt vmcnt({2 * self.wd - 1})")
                    A(f"buffer_load_dwordx2 v[{r}:{r + 1}], v6, s[40:43], s49 offen offset:{(i & 1) * 3584} {self.wnt}")
            A("s_waitcnt vmcnt(0)")
            for kk in (2 * kp, 2 * kp + 1):
                base = ST + (kk & 1) * 16
                for c in range(2):
                    for u in range(2):
                        dst = W1 + kk * 16 + (2 * c + u) * 4
                        sel = "s56" if u == 0 else "s57"
                        for r in range(4):
                            A(f"v_perm_b32 v{dst + r}, v{base + 2 * (2 * r + 1) + c}, v{base + 2 * (2 * r) + c}, {sel}")
        self.label("L_sv_wskip")
        C("workgroup 0 / S2: once all 256 arrival flags are in, advance the epoch")
        A("s_cmp_lg_u32 s2, 0")
        A("s_cbranch_scc1 L_sv_noepw")
        A("s_cmp_lg_u32 s35, 2")
        A("s_cbranch_scc1 L_sv_noepw")
        A(f"v_add_u32 v6, {W_AR}, v4")
        A(f"s_mov_b32 s51, {self.poll_cap}")
        self.label("L_sv_epoll")
        A("global_load_dwordx4 v[16:19], v6, s[32:33] sc1")
        A("global_load_dwordx4 v[20:23], v6, s[32:33] offset:1024 sc1")
        A("s_waitcnt vmcnt(0)")
        for k in range(4):
            A(f"v_xor_b32 v{16 + 2 * k}, s92, v{16 + 2 * k}")
            A(f"v_xor_b32 v{17 + 2 * k}, s93, v{17 + 2 * k}")
        A("v_or3_b32 v16, v16, v17, v18")
        A("v_or3_b32 v16, v16, v19, v20")
        A("v_or3_b32 v16, v16, v21, v22")
        A("v_or_b32 v16, v16, v23")
        A("v_cmp_ne_u32 vcc, 0, v16")
        A("s_cbranch_vccz L_sv_eok")
        A("s_sleep 16")
        A("s_sub_u32 s51, s51, 1")
        A("s_cmp_lg_u32 s51, 0")
        A("s_cbranch_scc1 L_sv_epoll")
        self.label("L_sv_eok")
        A(f"v_mov_b32 v6, {W_EP}")
        A("v_mov_b32 v7, s93")
        A("s_mov_b64 exec, 1")
        A("global_store_dword v6, v7, s[32:33] offset:4 sc1")
        A("s_mov_b64 exec, -1")
        self.label("L_sv_noepw")
        A("s_cmp_lg_u32 s35, 0")
        A("s_cbranch_scc1 L_sv_tail")
        C("---- S0: softmax stats, exchange, P ----")
        self.stamp(4)
        self.lds_spin(5, 8, 4, 12, 50)
        self.stamp(5)
        if self.adapt:
            C("publish this workgroup's K-done time (only steers the V-phase queue depth)")
            A("s_memrealtime s[94:95]")
            A("s_lshl_b32 s48, s2, 2")
            A(f"s_add_u32 s48, s48, {W_TS}")
            A("v_mov_b32 v6, s48")
            A("s_waitcnt lgkmcnt(0)")
            A("v_mov_b32 v7, s94")
            A("s_mov_b64 exec, 1")
            A("global_store_dword v6, v7, s[32:33] sc1")
            A("s_mov_b64 exec, -1")
        A("v_lshlrev_b32 v6, 6, v0")
        for k in range(4):
            A(f"ds_read_b128 v[{48 + 4 * k}:{48 + 4 * k + 3}], v6 offset:{L_SC + 16 * k}")
        A("s_lshl_b32 s48, s7, 7")
        A(f"s_add_u32 s48, s48, {W_ST}")
        A("s_add_u32 s48, s48, s98")
        self.srd(44, 32, 64, 48)
        A("s_mov_b32 s50, 0x3db8aa3b")
        A("s_waitcnt lgkmcnt(0)")
        H0, H1 = 16, 32
        for k in range(16):
            A(f"v_lshlrev_b32 v{H0 + k}, 16, v{48 + k}")
            A(f"v_and_b32 v{H1 + k}, 0xffff0000, v{48 + k}")
        for h, base in ((0, H0), (1, H1)):
            m = 8 + h
            A(f"v_max3_f32 v{m}, v{base}, v{base + 1}, v{base + 2}")
            for k in range(3, 15, 2):
                A(f"v_max3_f32 v{m}, v{m}, v{base + k}, v{base + k + 1}")
            A(f"v_max_f32 v{m}, v{m}, v{base + 15}")
        self.allreduce("max", [8, 9], [12, 13])
        for h, base in ((0, H0), (1, H1)):
            m = 8 + h
            sreg = 10 + h
            for k in range(16):
                A(f"v_sub_f32 v{48 + k}, v{base + k}, v{m}")
            for k in range(16):
                A(f"v_mul_f32 v{48 + k}, s50, v{48 + k}")
            for k in range(16):
                A(f"v_exp_f32 v{48 + k}, v{48 + k}")
            A("s_nop 0")
            A(f"v_add_f32 v{sreg}, v48, v49")
            for k in range(2, 16):
                A(f"v_add_f32 v{sreg}, v{sreg}, v{48 + k}")
        self.allreduce("add", [10, 11], [12, 13])
        C("publish (m0 | xcc, m1, l0, l1) = v8..v11 (m0 is a bf16 value: its low 16 bits are free)")
        A("s_getreg_b32 s91, hwreg(HW_REG_XCC_ID)")
        A("s_and_b32 s91, s91, 0xff")
        A("v_or_b32 v8, s91, v8")
        for k in range(4):
            A(f"v_min_u32 v{8 + k}, -2, v{8 + k}")
        A("s_lshl_b32 s48, s6, 4")
        A("v_mov_b32 v7, 0")
        A("s_mov_b64 exec, 1")
        A("buffer_store_dwordx4 v[8:11], v7, s[44:47], s48 offen sc1")
        A("s_mov_b64 exec, -1")
        lds = [f"buffer_load_dwordx4 v[{48 + 4 * cc}:{48 + 4 * cc + 3}], v7, s[44:47], 0 offen offset:{16 * cc} sc1" for cc in range(4)]
        C("the 32 workgroups of this batch must have cleared their slots before any slot is polled")
        A("s_lshl_b32 s48, s4, 8")
        A(f"s_add_u32 s48, s48, {W_AR}")
        A("v_and_b32 v12, 31, v0")
        A("v_lshl_add_u32 v12, v12, 3, s48")
        A(f"s_mov_b32 s51, {self.poll_cap}")
        self.label("L_sv_apoll")
        A("global_load_dwordx2 v[14:15], v12, s[32:33] sc1")
        A("s_waitcnt vmcnt(0)")
        A("v_xor_b32 v14, s92, v14")
        A("v_xor_b32 v15, s93, v15")
        A("v_or_b32 v14, v14, v15")
        A("v_cmp_ne_u32 vcc, 0, v14")
        A("s_cbranch_vccz L_sv_aok")
        A("s_sleep 8")
        A("s_sub_u32 s51, s51, 1")
        A("s_cmp_lg_u32 s51, 0")
        A("s_cbranch_scc1 L_sv_apoll")
        self.label("L_sv_aok")
        if self.margin:
            self.lds_spin(5, 20, 1, 12, 51)
        if self.adapt:
            A(f"v_add_u32 v13, {W_TS}, v4")
            A("global_load_dwordx4 v[8:11], v13, s[32:33] sc1")
        self.poll_sentinel(lds, [48 + i for i in range(16)], 12, 51, retry_sleep=self.ssleep)
        self.stamp(6)
        if self.adapt:
            C("how many workgroups finished K more than 2us / 1us before this one, or less than 1us after it")
            t1, t2 = self.athr
            for (sd, off) in ((88, -t2), (89, -t1), (90, t1)):
                A(f"s_add_u32 s48, s94, {off & 0xffffffff}")
                A(f"s_mov_b32 s{sd}, 0")
                for k in range(4):
                    A(f"v_sub_u32 v12, s48, v{8 + k}")
                    A("v_cmp_gt_u32 vcc, 0x1000, v12")
                    A("s_bcnt1_i32_b64 s49, vcc")
                    A(f"s_add_u32 s{sd}, s{sd}, s49")
            A("s_mov_b32 s48, 0")
            A("s_cmp_lt_u32 s90, 128")
            A("s_cselect_b32 s48, 1, s48")
            A("s_cmp_ge_u32 s89, 128")
            A("s_cselect_b32 s48, 2, s48")
            A("s_cmp_ge_u32 s88, 128")
            A("s_cselect_b32 s48, 3, s48")
            A("v_mov_b32 v12, s48")
            A("ds_write_b32 v5, v12 offset:36")
        C("all four members on one XCD? (same answer in every member) -> LDS word for the o hand-off store flavour")
        A("v_xor_b32 v12, v48, v52")
        A("v_xor_b32 v13, v48, v56")
        A("v_xor_b32 v14, v48, v60")
        A("v_or3_b32 v12, v12, v13, v14")
        A("v_and_b32 v12, 0xffff, v12")
        A("ds_write_b32 v5, v12 offset:32")
        for cc in range(4):
            A(f"v_and_b32 v{48 + 4 * cc}, 0xffff0000, v{48 + 4 * cc}")
        for h in range(2):
            A(f"v_max3_f32 v{8 + h}, v{48 + h}, v{52 + h}, v{56 + h}")
            A(f"v_max_f32 v{8 + h}, v{8 + h}, v{60 + h}")
        for h in range(2):
            for cc in range(4):
                A(f"v_sub_f32 v{48 + 4 * cc + h}, v{48 + 4 * cc + h}, v{8 + h}")
                A(f"v_mul_f32 v{48 + 4 * cc + h}, s50, v{48 + 4 * cc + h}")
                A(f"v_exp_f32 v{48 + 4 * cc + h}, v{48 + 4 * cc + h}")
            A("s_nop 0")
            A(f"v_mul_f32 v{10 + h}, v{48 + h}, v{50 + h}")
            for cc in range(1, 4):
                A(f"v_fmac_f32 v{10 + h}, v{48 + 4 * cc + h}, v{50 + 4 * cc + h}")
            A(f"v_rcp_f32 v{10 + h}, v{10 + h}")
        for h, base in ((0, H0), (1, H1)):
            for k in range(16):
                A(f"v_sub_f32 v{base + k}, v{base + k}, v{8 + h}")
            for k in range(16):
                A(f"v_mul_f32 v{base + k}, s50, v{base + k}")
            for k in range(16):
                A(f"v_exp_f32 v{base + k}, v{base + k}")
            A("s_nop 0")
            for k in range(16):
                A(f"v_mul_f32 v{base + k}, v{base + k}, v{10 + h}")
            for par in range(2):
                for d in range(4):
                    A(f"v_cvt_pk_bf16_f32 v{48 + h * 8 + par * 4 + d}, v{base + 4 * d + par}, v{base + 4 * d + 2 + par}")
        for k in range(4):
            A(f"ds_write_b128 v6, v[{48 + 4 * k}:{48 + 4 * k + 3}] offset:{L_P + 16 * k}")
        A("v_mov_b32 v7, 1")
        A("s_waitcnt lgkmcnt(0)")
        A("ds_write_b32 v5, v7 offset:12")
        self.stamp(7)
        if self.dyn:
            C("publish the pool part of P, then gather the cluster's pool P into LDS")
            NPL = 16 - self.RS
            self.pp_addr(6, 48)
            for k in range(16):
                A(f"v_min_u32 v{48 + k}, -2, v{48 + k}")
            A("s_mov_b64 exec, s[50:51]")
            for k in range(4):
                A(f"global_store_dwordx4 v6, v[{48 + 4 * k}:{48 + 4 * k + 3}], s[32:33] offset:{16 * k} sc1")
            A("s_mov_b64 exec, -1")
            A("s_lshl_b32 s48, s7, 13")
            A(f"s_add_u32 s48, s48, {W_PP}")
            self.srd(44, 32, 8192, 48)
            A("s_mov_b32 s48, 4096")
            self.lds_spin(5, 28, 1, 12, 50)
            lds = [f"buffer_load_dwordx4 v[{16 + 4 * k}:{16 + 4 * k + 3}], v4, s[44:47], {'0' if k < 4 else 's48'} offen offset:{1024 * (k & 3)} sc1" for k in range(NPL)]
            self.poll_sentinel(lds, [16 + i for i in range(4 * NPL)], 12, 51, retry_sleep=self.ssleep)
            for k in range(NPL):
                A(f"ds_write_b128 v4, v[{16 + 4 * k}:{16 + 4 * k + 3}] offset:{L_PP + 1024 * k}")
            A("v_mov_b32 v7, 1")
            A("s_waitcnt lgkmcnt(0)")
            A("ds_write_b32 v5, v7 offset:24")
        C("preload x row b (for h) and b2")
        self.srd(36, 8, 8 * 896)
        A("s_mul_i32 s48, s4, 896")
        A("buffer_load_dwordx4 v[56:59], v4, s[36:39], s48 offen")
        self.srd(36, 26, 896)
        A("v_and_b32 v7, 3, v0")
        A("v_lshlrev_b32 v7, 3, v7")
        A("s_max_i32 s48, s34, 0")
        A("s_lshl_b32 s48, s48, 5")
        A("buffer_load_dwordx2 v[60:61], v7, s[36:39], s48 offen")
        A("s_waitcnt vmcnt(0)")
        self.label("L_sv_tail")
        C("---- tail ----")
        A("v_lshlrev_b32 v6, 4, v3")
        A("s_lshl_b32 s48, s35, 8")
        A("v_add_u32 v6, s48, v6")
        if self.late & 1:
            self.srd(40, 20, 448 * 3584)
            A("s_cmp_lt_i32 s34, 0")
            A("s_cselect_b32 s42, 0, s42")
            A(f"v_mul_u32_u24 v63, {8 * 3584}, v3")
            A("v_lshl_add_u32 v63, v2, 3, v63")
            A(f"s_mul_i32 s88, s35, {32 * 3584}")
            A("s_max_i32 s49, s34, 0")
            A("s_lshl_b32 s49, s49, 7")
            A("s_add_u32 s88, s88, s49")
        A("s_barrier")
        A("s_barrier")
        for kk in range(4):
            A(f"ds_read_b128 v[{ST + 4 * kk}:{ST + 4 * kk + 3}], v6 offset:{L_O + 64 * kk}")
        A("s_lshl_b32 s48, s35, 9")
        A("v_lshl_add_u32 v7, v2, 5, s48")
        DT = 24
        accs = [32, 36, 40, 44, 48, 52, 8, 12]
        for kk in range(4):
            A(f"s_waitcnt lgkmcnt({3 - kk})")
            for t in range(8):
                d = accs[t]
                fr = WO + kk * 32 + t * 4
                c = "0" if kk == 0 else f"v[{d}:{d + 3}]"
                A(f"v_mfma_f32_16x16x32_bf16 v[{d}:{d + 3}], v[{ST + 4 * kk}:{ST + 4 * kk + 3}], v[{fr}:{fr + 3}], {c}")
        A("s_nop 1")
        for t in range(8):
            A(f"v_mov_b32 v{ST + t}, v{accs[t]}")
        A(f"ds_write_b128 v7, v[{ST}:{ST + 3}] offset:{L_T1}")
        A(f"ds_write_b128 v7, v[{ST + 4}:{ST + 7}] offset:{L_T1 + 16}")
        A("s_waitcnt lgkmcnt(0)")
        A("s_barrier")
        W1F = W1

        def w1_loads():
            for kk in range(4):
                for i in range(8):
                    if i % 2 == 0:
                        A(f"s_add_u32 s89, s88, {(kk * 128 + i) * 3584}")
                    r = W1 + kk * 16 + 2 * i
                    A(f"buffer_load_dwordx2 v[{r}:{r + 1}], v63, s[40:43], s89 offen offset:{(i & 1) * 3584} {self.wnt}")

        def w1_perms():
            for kk in range(4):
                A(f"s_waitcnt vmcnt({24 - 8 * kk})")
                base = W1 + kk * 16
                for c in range(2):
                    for u in range(2):
                        dst = WO + 64 + kk * 16 + (2 * c + u) * 4
                        sel = "s56" if u == 0 else "s57"
                        for r in range(4):
                            A(f"v_perm_b32 v{dst + r}, v{base + 2 * (2 * r + 1) + c}, v{base + 2 * (2 * r) + c}, {sel}")
        if self.late & 1:
            W1F = WO + 64
            A("s_cmp_eq_u32 s35, 0")
            A("s_cbranch_scc1 L_sv_s0p4")
            w1_loads()
            w1_perms()
            A("s_branch L_sv_skip2")
            self.label("L_sv_s0p4")
        A("s_cmp_lg_u32 s35, 0")
        A("s_cbranch_scc1 L_sv_skip2")
        self.stamp(8)
        C("S0: P4: lanes<28: sum 4 waves, publish AP[b][hkv][112c + 4l]")
        for w in range(4):
            A(f"ds_read_b128 v[{ST + 4 * w}:{ST + 4 * w + 3}], v4 offset:{L_T1 + 512 * w}")
        A("s_mul_i32 s48, s4, 14336")
        A(f"s_add_u32 s48, s48, {W_AP}")
        A("s_add_u32 s48, s48, s98")
        self.srd(44, 32, 14336, 48)
        A("s_mul_i32 s48, s5, 1792")
        A("s_lshl_b32 s49, s6, 9")
        A("s_add_u32 s48, s48, s49")
        A("s_cmp_eq_u32 s6, 3")
        A("s_cselect_b32 s50, 0xffff, -1")
        A("s_mov_b32 s51, 0")
        A("v_lshlrev_b32 v7, 5, v0")
        A("s_waitcnt lgkmcnt(0)")
        for e in (0, 2):
            A(f"v_pk_add_f32 v[{ST + e}:{ST + e + 1}], v[{ST + e}:{ST + e + 1}], v[{ST + 4 + e}:{ST + 5 + e}]")
            A(f"v_pk_add_f32 v[{ST + 8 + e}:{ST + 9 + e}], v[{ST + 8 + e}:{ST + 9 + e}], v[{ST + 12 + e}:{ST + 13 + e}]")
        for e in (0, 2):
            A(f"v_pk_add_f32 v[{ST + e}:{ST + e + 1}], v[{ST + e}:{ST + e + 1}], v[{ST + 8 + e}:{ST + 9 + e}]")
        A("s_mov_b64 exec, s[50:51]")
        A(f"buffer_store_dwordx4 v[{ST}:{ST + 3}], v4, s[44:47], s48 offen {self.apst}")
        A("s_mov_b64 exec, -1")
        A("s_cmp_lt_i32 s34, 0")
        A("s_cbranch_scc1 L_sv_skip2")
        if self.late & 1:
            w1_loads()
            w1_perms()
        C("P5: lanes<56: gather AP[b][h'][8l..8l+8] (wo frags are dead now)")
        A("s_mov_b64 exec, s[52:53]")
        G = WO
        for hh in range(1, 4):
            A(f"s_mov_b32 s{99 + hh - 3 * (hh > 2) * 0 if False else 36 + hh}, {hh * 3584}")
        lds = []
        for hh in range(8):
            so = "0" if hh < 2 else f"s{36 + hh // 2}"
            for u in range(2):
                r = G + hh * 8 + u * 4
                lds.append(f"buffer_load_dwordx4 v[{r}:{r + 3}], v7, s[44:47], {so} offen offset:{(hh & 1) * 1792 + 16 * u} sc1")
        if not self.fastp5:
            self.poll_sentinel(lds, [G + i for i in range(64)], 12, 51, retry_sleep=self.tsleep)
            A("s_mov_b64 exec, -1")
            self.stamp(9)
            for e in range(8):
                for hh in range(0, 8, 2):
                    A(f"v_add_f32 v{G + hh * 8 + e}, v{G + hh * 8 + e}, v{G + hh * 8 + 8 + e}")
            for e in range(8):
                A(f"v_add_f32 v{G + e}, v{G + e}, v{G + 16 + e}")
                A(f"v_add_f32 v{G + 32 + e}, v{G + 32 + e}, v{G + 48 + e}")
            for e in range(8):
                A(f"v_add_f32 v{G + e}, v{G + e}, v{G + 32 + e}")
            for e in range(4):
                A(f"v_cvt_pk_bf16_f32 v{ST + e}, v{G + 2 * e}, v{G + 2 * e + 1}")
            self.unpack8(ST, G)
            self.unpack8(56, G + 8)
            for e in range(8):
                A(f"v_add_f32 v{G + e}, v{G + e}, v{G + 8 + e}")
            for e in range(4):
                A(f"v_cvt_pk_bf16_f32 v{ST + e}, v{G + 2 * e}, v{G + 2 * e + 1}")
            self.unpack8(ST, G)
            self.layernorm([([G + e for e in range(8)], ST)], 52, G + 16)
        else:
            X = 32
            def pk(d, x, y):
                A(f"v_pk_add_f32 v[{d}:{d + 1}], v[{x}:{x + 1}], v[{y}:{y + 1}]")
            A(f"s_mov_b32 s51, {self.poll_cap}")
            self.unpack8(56, X)
            if self.rowpoll:
                NG = self.rowpoll
                RP = 8 // NG
                A("s_mov_b32 s50, 0")
                self.label("L_sv_appoll")
                for p in range(NG):
                    A(f"s_bitcmp1_b32 s50, {p}")
                    A(f"s_cbranch_scc1 L_ap_i{p}")
                    for x in lds[2 * RP * p:2 * RP * (p + 1)]:
                        A(x)
                    self.label(f"L_ap_i{p}")
                A("s_waitcnt vmcnt(0)")
                for p in range(NG):
                    A(f"s_bitcmp1_b32 s50, {p}")
                    A(f"s_cbranch_scc1 L_ap_c{p}")
                    base = G + p * RP * 8
                    if RP == 2:
                        for e in range(0, 8, 2):
                            pk(base + e, base + e, base + 8 + e)
                    pk(40, base, base + 2)
                    pk(42, base + 4, base + 6)
                    pk(40, 40, 42)
                    A("v_cmp_u_f32 vcc, v40, v41")
                    A(f"s_cbranch_vccnz L_ap_c{p}")
                    A(f"s_bitset1_b32 s50, {p}")
                    self.label(f"L_ap_c{p}")
                A(f"s_cmp_eq_u32 s50, {(1 << NG) - 1}")
                A("s_cbranch_scc1 L_ap_all")
                A("s_sub_u32 s51, s51, 1")
                A("s_cmp_lg_u32 s51, 0")
                A("s_cbranch_scc1 L_sv_appoll")
                self.label("L_ap_all")
                if RP == 1:
                    for hh in range(0, 8, 2):
                        for e in range(0, 8, 2):
                            pk(G + hh * 8 + e, G + hh * 8 + e, G + hh * 8 + 8 + e)
                for e in range(0, 8, 2):
                    pk(G + e, G + e, G + 16 + e)
                    pk(G + 32 + e, G + 32 + e, G + 48 + e)
                for e in range(0, 8, 2):
                    pk(G + e, G + e, G + 32 + e)
            else:
                self.label("L_sv_appoll")
                for x in lds:
                    A(x)
                C("the sentinel is a NaN pattern: sum first, a NaN in the sums means 'not all there yet'")
                for hh in range(0, 8, 2):
                    A(f"s_waitcnt vmcnt({12 - 2 * hh})")
                    for e in range(0, 8, 2):
                        pk(G + hh * 8 + e, G + hh * 8 + e, G + hh * 8 + 8 + e)
                    if hh == 2:
                        for e in range(0, 8, 2):
                            pk(G + e, G + e, G + 16 + e)
                for e in range(0, 8, 2):
                    pk(G + 32 + e, G + 32 + e, G + 48 + e)
                for e in range(0, 8, 2):
                    pk(G + e, G + e, G + 32 + e)
                pk(G + 8, G, G + 2)
                pk(G + 10, G + 4, G + 6)
                pk(G + 8, G + 8, G + 10)
                A(f"v_cmp_u_f32 vcc, v{G + 8}, v{G + 9}")
                A("s_cbranch_vccz L_sv_apok")
                A("s_sub_u32 s51, s51, 1")
                A("s_cmp_lg_u32 s51, 0")
                A("s_cbranch_scc1 L_sv_appoll")
            self.label("L_sv_apok")
            A("s_mov_b64 exec, -1")
            self.stamp(9)
            for e in range(4):
                A(f"v_cvt_pk_bf16_f32 v{ST + e}, v{G + 2 * e}, v{G + 2 * e + 1}")
            self.unpack8(ST, G)
            for e in range(0, 8, 2):
                pk(G + e, G + e, X + e)
            for e in range(4):
                A(f"v_cvt_pk_bf16_f32 v{ST + e}, v{G + 2 * e}, v{G + 2 * e + 1}")
            self.unpack8(ST, G)
            C("LayerNorm, one reduction round: sums of d = h - c and d^2 with c = h[0] (a data point, so no harmful cancellation)")
            A(f"v_readfirstlane_b32 s50, v{G}")
            D_ = G + 8
            S1, S2, T1_, T2_ = G + 16, G + 17, G + 18, G + 19
            A("s_nop 1")
            for e in range(8):
                A(f"v_subrev_f32 v{D_ + e}, s50, v{G + e}")
            pk(G + 20, D_, D_ + 2)
            pk(G + 22, D_ + 4, D_ + 6)
            A(f"v_mul_f32 v{S2}, v{D_}, v{D_}")
            A(f"v_mul_f32 v{T2_}, v{D_ + 1}, v{D_ + 1}")
            pk(G + 20, G + 20, G + 22)
            for e in range(2, 8, 2):
                A(f"v_fmac_f32 v{S2}, v{D_ + e}, v{D_ + e}")
                A(f"v_fmac_f32 v{T2_}, v{D_ + e + 1}, v{D_ + e + 1}")
            A(f"v_add_f32 v{S1}, v{G + 20}, v{G + 21}")
            A(f"v_add_f32 v{S2}, v{S2}, v{T2_}")
            A(f"v_cndmask_b32 v{S1}, 0, v{S1}, s[52:53]")
            A(f"v_cndmask_b32 v{S2}, 0, v{S2}, s[52:53]")
            self.allreduce("add", [S1, S2], [T1_, T2_])
            A(f"v_mul_f32 v{S1}, 0x3b124925, v{S1}")
            A(f"v_mul_f32 v{S2}, 0x3b124925, v{S2}")
            A(f"v_fma_f32 v{S2}, -v{S1}, v{S1}, v{S2}")
            A(f"v_add_f32 v{S1}, s50, v{S1}")
            A(f"v_max_f32 v{S2}, 0, v{S2}")
            A(f"v_cvt_pk_bf16_f32 v{T1_}, v{S1}, v{S2}")
            A(f"v_lshlrev_b32 v{S1}, 16, v{T1_}")
            A(f"v_and_b32 v{S2}, 0xffff0000, v{T1_}")
            A(f"v_add_f32 v{S2}, 0x3727c5ac, v{S2}")
            A(f"v_cvt_pk_bf16_f32 v{S2}, v{S2}, v{S2}")
            A(f"v_lshlrev_b32 v{S2}, 16, v{S2}")
            A(f"v_sqrt_f32 v{S2}, v{S2}")
            for e in range(8):
                A(f"v_sub_f32 v{D_ + e}, v{G + e}, v{S1}")
            A(f"v_cvt_pk_bf16_f32 v{S2}, v{S2}, v{S2}")
            A(f"v_lshlrev_b32 v{S2}, 16, v{S2}")
            A(f"v_rcp_f32 v{S2}, v{S2}")
            for e in range(4):
                A(f"v_cvt_pk_bf16_f32 v{ST + e}, v{D_ + 2 * e}, v{D_ + 2 * e + 1}")
            self.unpack8(ST, D_)
            for e in range(8):
                A(f"v_mul_f32 v{D_ + e}, v{D_ + e}, v{S2}")
            for e in range(4):
                A(f"v_cvt_pk_bf16_f32 v{ST + e}, v{D_ + 2 * e}, v{D_ + 2 * e + 1}")
        A("s_mov_b64 exec, s[52:53]")
        A(f"ds_write_b128 v4, v[{ST}:{ST + 3}] offset:{L_HN}")
        A(f"ds_write_b128 v7, v[{G}:{G + 3}] offset:{L_H}")
        A(f"ds_write_b128 v7, v[{G + 4}:{G + 7}] offset:{L_H + 16}")
        A("s_mov_b64 exec, -1")
        A("s_waitcnt lgkmcnt(0)")
        self.label("L_sv_skip2")
        A("s_barrier")
        C("T2a: ksteps s, s+4, s+8, s+12")
        A("v_lshlrev_b32 v6, 4, v3")
        A("s_lshl_b32 s48, s35, 6")
        A("v_add_u32 v6, s48, v6")
        for kk in range(4):
            A(f"ds_read_b128 v[{ST + 4 * kk}:{ST + 4 * kk + 3}], v6 offset:{L_HN + 256 * kk}")
        A("s_lshl_b32 s48, s35, 8")
        A("v_lshl_add_u32 v7, v2, 4, s48")
        for kk in range(4):
            A(f"s_waitcnt lgkmcnt({3 - kk})")
            for t in range(4):
                d = 32 + 4 * t
                fr = W1F + kk * 16 + t * 4
                c = "0" if kk == 0 else f"v[{d}:{d + 3}]"
                A(f"v_mfma_f32_16x16x32_bf16 v[{d}:{d + 3}], v[{ST + 4 * kk}:{ST + 4 * kk + 3}], v[{fr}:{fr + 3}], {c}")
        A("s_nop 5")
        for t in range(4):
            A(f"v_mov_b32 v{ST + t}, v{32 + 4 * t}")
        A(f"ds_write_b128 v7, v[{ST}:{ST + 3}] offset:{L_R1}")
        A("s_waitcnt lgkmcnt(0)")
        A("s_barrier")
        A("s_cmp_lg_u32 s35, 0")
        A("s_cbranch_scc1 L_end")
        self.stamp(10)
        A("s_cmp_lt_i32 s34, 0")
        A("s_cbranch_scc1 L_sv_fin")
        C("P8: final reduce: FP[b][src][16f + 4q]; lane l: src = l>>2 (+16), q = l&3")
        A("s_mul_i32 s48, s4, 57344")
        A(f"s_add_u32 s48, s48, {W_FP}")
        A("s_add_u32 s48, s48, s98")
        self.srd(44, 32, 28 * 1792, 48)
        A("v_lshrrev_b32 v6, 2, v0")
        A("v_mul_u32_u24 v6, 1792, v6")
        A("v_and_b32 v7, 3, v0")
        A("v_lshl_add_u32 v6, v7, 4, v6")
        A("s_lshl_b32 s48, s34, 6")
        A(f"s_add_u32 s49, s48, {16 * 1792}")
        A("v_lshl_add_u32 v8, v7, 4, s48")
        A(f"ds_read_b128 v[40:43], v8 offset:{L_H}")
        self.srd(36, 28, 7168)
        lds = [f"buffer_load_dwordx4 v[{ST}:{ST + 3}], v6, s[44:47], s48 offen sc1",
               f"buffer_load_dwordx4 v[{ST + 4}:{ST + 7}], v6, s[44:47], s49 offen sc1"]
        A(f"s_mov_b32 s51, {self.poll_cap}")
        self.label("L_sv_fppoll")
        for x in lds:
            A(x)
        A("s_waitcnt vmcnt(0)")
        for e in (0, 2):
            A(f"v_pk_add_f32 v[{ST + e}:{ST + e + 1}], v[{ST + e}:{ST + e + 1}], v[{ST + 4 + e}:{ST + 5 + e}]")
        A(f"v_pk_add_f32 v[{ST + 4}:{ST + 5}], v[{ST}:{ST + 1}], v[{ST + 2}:{ST + 3}]")
        A(f"v_cmp_u_f32 vcc, v{ST + 4}, v{ST + 5}")
        A("s_cbranch_vccz L_sv_fpok")
        A("s_sub_u32 s51, s51, 1")
        A("s_cmp_lg_u32 s51, 0")
        A("s_cbranch_scc1 L_sv_fppoll")
        self.label("L_sv_fpok")
        self.stamp(11)
        for ctrl in ("row_ror:4", "row_ror:8"):
            A("s_nop 1")
            for e in range(4):
                A(f"v_add_f32_dpp v{ST + e}, v{ST + e}, v{ST + e} {ctrl} row_mask:0xf bank_mask:0xf")
        for sw in ("v_permlane16_swap_b32", "v_permlane32_swap_b32"):
            for e in range(4):
                A(f"v_mov_b32 v{ST + 4 + e}, v{ST + e}")
            A("s_nop 1")
            for e in range(4):
                A(f"{sw} v{ST + e}, v{ST + 4 + e}")
            A("s_nop 1")
            for e in range(4):
                A(f"v_add_f32 v{ST + e}, v{ST + e}, v{ST + 4 + e}")
        A(f"v_cvt_pk_bf16_f32 v{ST + 4}, v{ST}, v{ST + 1}")
        A(f"v_cvt_pk_bf16_f32 v{ST + 5}, v{ST + 2}, v{ST + 3}")
        for e in range(2):
            A(f"v_lshlrev_b32 v{ST + 2 * e}, 16, v{ST + 4 + e}")
            A(f"v_and_b32 v{ST + 2 * e + 1}, 0xffff0000, v{ST + 4 + e}")
            A(f"v_lshlrev_b32 v{32 + 2 * e}, 16, v{60 + e}")
            A(f"v_and_b32 v{32 + 2 * e + 1}, 0xffff0000, v{60 + e}")
        for e in range(4):
            A(f"v_add_f32 v{ST + e}, v{ST + e}, v{32 + e}")
        A(f"v_cvt_pk_bf16_f32 v{ST + 4}, v{ST}, v{ST + 1}")
        A(f"v_cvt_pk_bf16_f32 v{ST + 5}, v{ST + 2}, v{ST + 3}")
        for e in range(2):
            A(f"v_lshlrev_b32 v{ST + 2 * e}, 16, v{ST + 4 + e}")
            A(f"v_and_b32 v{ST + 2 * e + 1}, 0xffff0000, v{ST + 4 + e}")
        A("s_waitcnt lgkmcnt(0)")
        for e in range(4):
            A(f"v_add_f32 v{ST + e}, v{ST + e}, v{40 + e}")
        A(f"v_cvt_pk_bf16_f32 v{ST + 4}, v{ST}, v{ST + 1}")
        A(f"v_cvt_pk_bf16_f32 v{ST + 5}, v{ST + 2}, v{ST + 3}")
        A("v_lshlrev_b32 v7, 3, v7")
        A("s_mul_i32 s48, s4, 896")
        A("s_lshl_b32 s49, s34, 5")
        A("s_add_u32 s48, s48, s49")
        A("s_mov_b64 exec, 0xf")
        A(f"buffer_store_dwordx2 v[{ST + 4}:{ST + 5}], v7, s[36:39], s48 offen")
        A("s_mov_b64 exec, -1")
        self.label("L_sv_fin")
        self.stamp(12)
        self.dump_stamps(13, 8)


if __name__ == "__main__":
    import argparse
    ap = argparse.ArgumentParser()
    ap.add_argument("-o", default=f"cdna_kernels/{NAME}.s")
    ap.add_argument("--D", type=int, default=5)
    ap.add_argument("--R", type=int, default=42)
    ap.add_argument("--stamps", action="store_true")
    ap.add_argument("--wnt", default="")
    ap.add_argument("--knt", default="nt")
    ap.add_argument("--nowdelay", action="store_true")
    ap.add_argument("--qnt", default="nt")
    ap.add_argument("--wd", type=int, default=8)
    ap.add_argument("--now", type=int, default=0)
    ap.add_argument("--DV", type=int, default=0)
    ap.add_argument("--wsoff", type=lambda x: int(x, 0), default=0)
    ap.add_argument("--qsleep", type=int, default=0)
    ap.add_argument("--ssleep", type=int, default=0)
    ap.add_argument("--DE", type=int, default=0)
    ap.add_argument("--tsleep", type=int, default=0)
    ap.add_argument("--margin", type=int, default=12)
    ap.add_argument("--w2pos", type=int, default=8)
    ap.add_argument("--yrot", type=int, default=0)
    ap.add_argument("--ilv", type=int, default=0)
    ap.add_argument("--RS", type=int, default=16)
    ap.add_argument("--kmargin", type=int, default=18)
    ap.add_argument("--cap", type=int, default=200000)
    ap.add_argument("--Dh", type=int, default=0)
    ap.add_argument("--cmap", type=int, default=2)
    ap.add_argument("--vnt", default=None)
    ap.add_argument("--eager", type=int, default=4)
    ap.add_argument("--opst", default="")
    ap.add_argument("--bal", type=int, default=1)
    ap.add_argument("--apst", default="sc1")
    ap.add_argument("--spread", type=lambda x: int(x, 0), default=0)
    ap.add_argument("--late", type=int, default=0)
    ap.add_argument("--DS", type=int, default=0)
    ap.add_argument("--fastp5", type=int, default=1)
    ap.add_argument("--rowpoll", type=int, default=0)
    ap.add_argument("--prio", type=int, default=0)
    ap.add_argument("--adapt", default="")
    ap.add_argument("--athr", default="100,200")
    ap.add_argument("--NS", type=int, default=0)
    ap.add_argument("--NE", type=int, default=0)
    a = ap.parse_args()
    g = Gen(D=a.D, R=a.R, stamps=a.stamps, wnt=a.wnt, knt=a.knt, wdelay=not a.nowdelay, qnt=a.qnt, wd=a.wd, now=a.now, DV=a.DV, wsoff=a.wsoff, qsleep=a.qsleep, ssleep=a.ssleep, DE=a.DE, NE=a.NE, tsleep=a.tsleep, margin=a.margin, w2pos=a.w2pos, yrot=a.yrot, ilv=a.ilv, RS=a.RS, kmargin=a.kmargin, poll_cap=a.cap, Dh=a.Dh, cmap=a.cmap, vnt=a.vnt, eager=a.eager, opst=a.opst, bal=a.bal, apst=a.apst, spread=a.spread, late=a.late, DS=a.DS, NS=a.NS, fastp5=a.fastp5, rowpoll=a.rowpoll, prio=a.prio, adapt=[int(x) for x in a.adapt.split(",")] if a.adapt else None, athr=tuple(int(x) for x in a.athr.split(",")))
    open(a.o, "w").write(g.build())
```

```python
import sys

NAME = "sequential_preLN__gqa_block_cached__dense_activation_squared_relu__decode"

HEADER = """; Kernarg layout for this problem (104 bytes, ptrs only, base s[0:1]):
"""

DOC = """; ---------------------------------------------------------------------------------------------
; ---------------------------------------------------------------------------------------------
"""

L_XN = 0x0000
L_Q = 0x1C00
L_SC = 0x2000
L_SCD = 0x3000
L_P = 0x4000
L_ZERO = 0x5000
L_ACC = 0x6000
L_O = 0x8000
L_T1 = 0x8400
L_HN = 0x8C00
L_H = 0x9000
L_R1 = 0x9800
L_H1 = 0x9C00
L_FLAG = 0x9E00
L_PP = 0xA000
LDS_BYTES = 0xC000

W_QG = 0x000000
W_QF = 0x072000
W_EP = 0x070000
W_TS = 0x073000
W_AR = 0x071000
W_ST = 0x080000
W_OP = 0x090000
W_AP = 0x110000
W_FP = 0x130000
W_PP = 0x1A0000
W_TK = 0x230000
W_END = 0x380000
W_STAMP = 0x1000000


class Gen:
    def __init__(self, D=5, R=40, stamps=False, wnt="", knt="nt", poll_cap=200000, wdelay=True, wsleep=0, qnt="nt", wd=8, now=0, DV=None, wsoff=0, qsleep=0, ssleep=0, DE=0, NE=0, tsleep=0, margin=12, w2pos=8, yrot=0, ilv=0, RS=16, kmargin=18, Dh=0, cmap=0, vnt=None, eager=4, opst="", bal=1, apst="sc1", spread=0, late=0, DS=0, NS=0, fastp5=1, rowpoll=0, prio=0, adapt=None, athr=(100, 200)):
        self.L = []
        self.D = D
        self.R = R
        self.stamps = stamps
        self.wnt = wnt
        self.knt = knt
        self.poll_cap = poll_cap
        self.nlabel = 0
        self.wdelay = wdelay
        self.wsleep = wsleep
        self.qnt = qnt
        self.wd = wd
        self.now = now
        self.wsoff = wsoff
        self.qsleep = qsleep
        self.ssleep = ssleep
        self.DE = DE
        self.tsleep = tsleep
        self.margin = margin
        self.yrot = yrot
        self.ilv = ilv
        self.RS = RS
        self.kmargin = kmargin
        self.Dh = Dh
        self.cmap = cmap
        self.eager = eager
        self.opst = opst
        self.bal = bal
        self.apst = apst
        self.spread = spread
        self.late = late
        self.DS = DS
        self.fastp5 = fastp5
        self.rowpoll = rowpoll
        self.prio = prio
        self.adapt = adapt
        self.athr = athr
        self.NS = NS
        if late & 2:
            self.w2pos = 99
        self.vnt = knt if vnt is None else vnt
        self.dyn = RS < 16
        if self.dyn:
            self.ilv = 1
        self.w2pos = w2pos
        self.NE = NE
        self.DV = DV if DV else D

    def A(self, s):
        self.L.append("    " + s)

    def C(self, s):
        self.L.append("    ; " + s)

    def label(self, name):
        self.L.append(name + ":")

    def newlabel(self, base):
        self.nlabel += 1
        return f"L_{base}_{self.nlabel}"

    def stamp(self, idx):
        if self.stamps:
            self.A(f"s_memrealtime s[{60 + 2 * idx}:{61 + 2 * idx}]")

    def dump_stamps(self, n, vbase):
        if not self.stamps:
            return
        A = self.A
        A("s_waitcnt lgkmcnt(0)")
        A("s_lshl_b32 s58, s99, 3")
        A("s_add_u32 s58, s58, s3")
        A("s_lshl_b32 s58, s58, 7")
        A(f"s_add_u32 s58, s58, {W_STAMP}")
        A("s_mov_b64 exec, 1")
        A(f"v_mov_b32 v{vbase}, s58")
        for i in range(n):
            A(f"v_mov_b32 v{vbase + 2}, s{60 + 2 * i}")
            A(f"v_mov_b32 v{vbase + 3}, s{61 + 2 * i}")
            A(f"global_store_dwordx2 v{vbase}, v[{vbase + 2}:{vbase + 3}], s[32:33] offset:{8 * i}")
            A("s_nop 1")
        A(f"v_mov_b32 v{vbase + 2}, s90")
        A(f"v_mov_b32 v{vbase + 3}, s91")
        A(f"global_store_dwordx2 v{vbase}, v[{vbase + 2}:{vbase + 3}], s[32:33] offset:120")
        A("s_mov_b64 exec, -1")

    def wsadj(self):
        if self.wsoff:
            self.A(f"s_add_u32 s32, s32, {self.wsoff}")
            self.A("s_addc_u32 s33, s33, 0")

    def pp_addr(self, v, st):
        A = self.A
        RS = self.RS
        A(f"v_lshrrev_b32 v{v}, 2, v0")
        A(f"v_subrev_u32 v{v}, {RS}, v{v}")
        A(f"v_lshlrev_b32 v{v}, 10, v{v}")
        A(f"v_and_b32 v{v + 1}, 3, v0")
        A(f"v_lshl_add_u32 v{v}, v{v + 1}, 6, v{v}")
        A(f"s_lshl_b32 s{st}, s7, 13")
        A(f"s_lshl_b32 s{st + 1}, s6, 8")
        A(f"s_add_u32 s{st}, s{st}, s{st + 1}")
        A(f"s_add_u32 s{st}, s{st}, {W_PP}")
        A(f"v_add_u32 v{v}, s{st}, v{v}")
        A(f"v_cmp_le_u32 s[50:51], {4 * RS}, v0")

    def epoch_load(self):
        self.A(f"s_load_dwordx2 s[92:93], s[32:33], {W_EP}")

    def srd(self, d, ptr, size, off_sgpr=None):
        A = self.A
        if off_sgpr is None:
            A(f"s_mov_b32 s{d}, s{ptr}")
            A(f"s_mov_b32 s{d + 1}, s{ptr + 1}")
        else:
            A(f"s_add_u32 s{d}, s{ptr}, s{off_sgpr}")
            A(f"s_addc_u32 s{d + 1}, s{ptr + 1}, 0")
        A(f"s_mov_b32 s{d + 2}, {size}")
        A(f"s_mov_b32 s{d + 3}, 0x20000")

    def allreduce(self, op, regs, tmps):
        A = self.A
        for ctrl in ("quad_perm:[1,0,3,2]", "quad_perm:[2,3,0,1]", "row_half_mirror", "row_mirror"):
            A("s_nop 1")
            for r in regs:
                A(f"v_{op}_f32_dpp v{r}, v{r}, v{r} {ctrl} row_mask:0xf bank_mask:0xf")
        for sw in ("v_permlane16_swap_b32", "v_permlane32_swap_b32"):
            for r, t in zip(regs, tmps):
                A(f"v_mov_b32 v{t}, v{r}")
            A("s_nop 1")
            for r, t in zip(regs, tmps):
                A(f"{sw} v{r}, v{t}")
            A("s_nop 1")
            for r, t in zip(regs, tmps):
                A(f"v_{op}_f32 v{r}, v{r}, v{t}")

    def lds_spin(self, vaddr, off, target, vtmp, stmp):
        A = self.A
        l = self.newlabel("spin")
        d = self.newlabel("spun")
        A(f"s_mov_b32 s59, {max(self.poll_cap * 20, 100000)}")
        self.label(l)
        A(f"ds_read_b32 v{vtmp}, v{vaddr} offset:{off}")
        A("s_waitcnt lgkmcnt(0)")
        A(f"v_readfirstlane_b32 s{stmp}, v{vtmp}")
        A("s_nop 0")
        A(f"s_cmp_eq_u32 s{stmp}, {target}")
        A(f"s_cbranch_scc1 {d}")
        A("s_sleep 1")
        A("s_sub_u32 s59, s59, 1")
        A("s_cmp_lg_u32 s59, 0")
        A(f"s_cbranch_scc1 {l}")
        self.label(d)

    def poll_sentinel(self, loads, regs, vtmp, scnt, sleep=0, retry_sleep=0, first_issued=False):
        A = self.A
        l = self.newlabel("poll")
        d = self.newlabel("polled")
        A(f"s_mov_b32 s{scnt}, {self.poll_cap}")
        if first_issued:
            l2 = self.newlabel("pollchk")
            A(f"s_branch {l2}")
        self.label(l)
        if sleep:
            A(f"s_sleep {sleep}")
        for s in loads:
            A(s)
        if first_issued:
            self.label(l2)
        A("s_waitcnt vmcnt(0)")
        A(f"v_max3_u32 v{vtmp}, v{regs[0]}, v{regs[1]}, v{regs[2]}")
        rest = regs[3:]
        while len(rest) >= 2:
            A(f"v_max3_u32 v{vtmp}, v{vtmp}, v{rest[0]}, v{rest[1]}")
            rest = rest[2:]
        if rest:
            A(f"v_max_u32 v{vtmp}, v{vtmp}, v{rest[0]}")
        A(f"v_cmp_eq_u32 vcc, -1, v{vtmp}")
        A(f"s_cbranch_vccz {d}")
        if retry_sleep:
            A(f"s_sleep {retry_sleep}")
        A(f"s_sub_u32 s{scnt}, s{scnt}, 1")
        A(f"s_cmp_lg_u32 s{scnt}, 0")
        A(f"s_cbranch_scc1 {l}")
        self.label(d)

    def layernorm(self, rows, smask, t):
        A = self.A
        n = len(rows)
        S = [t + i for i in range(n)]
        T = [t + n + i for i in range(n)]
        M = [t + 2 * n + i for i in range(n)]
        DD = t + 3 * n
        for k, (x, o) in enumerate(rows):
            A(f"v_add_f32 v{S[k]}, v{x[0]}, v{x[1]}")
            for e in range(2, 8):
                A(f"v_add_f32 v{S[k]}, v{S[k]}, v{x[e]}")
            A(f"v_cndmask_b32 v{S[k]}, 0, v{S[k]}, s[{smask}:{smask + 1}]")
        self.allreduce("add", S, T)
        for k, (x, o) in enumerate(rows):
            A(f"v_mul_f32 v{M[k]}, 0x3b124925, v{S[k]}")
        for k, (x, o) in enumerate(rows):
            for e in range(8):
                A(f"v_sub_f32 v{DD + e}, v{x[e]}, v{M[k]}")
            A(f"v_mul_f32 v{S[k]}, v{DD}, v{DD}")
            for e in range(1, 8):
                A(f"v_fmac_f32 v{S[k]}, v{DD + e}, v{DD + e}")
            A(f"v_cndmask_b32 v{S[k]}, 0, v{S[k]}, s[{smask}:{smask + 1}]")
        self.allreduce("add", S, T)
        for k, (x, o) in enumerate(rows):
            A(f"v_mul_f32 v{S[k]}, 0x3b124925, v{S[k]}")
            A(f"v_cvt_pk_bf16_f32 v{T[k]}, v{M[k]}, v{S[k]}")
            A(f"v_lshlrev_b32 v{M[k]}, 16, v{T[k]}")
            A(f"v_and_b32 v{S[k]}, 0xffff0000, v{T[k]}")
            A(f"v_add_f32 v{S[k]}, 0x3727c5ac, v{S[k]}")
            A(f"v_cvt_pk_bf16_f32 v{S[k]}, v{S[k]}, v{S[k]}")
            A(f"v_lshlrev_b32 v{S[k]}, 16, v{S[k]}")
            A(f"v_sqrt_f32 v{S[k]}, v{S[k]}")
            A("s_nop 0")
            A(f"v_cvt_pk_bf16_f32 v{S[k]}, v{S[k]}, v{S[k]}")
            A(f"v_lshlrev_b32 v{S[k]}, 16, v{S[k]}")
            A(f"v_rcp_f32 v{S[k]}, v{S[k]}")
            for e in range(8):
                A(f"v_sub_f32 v{DD + e}, v{x[e]}, v{M[k]}")
            for e in range(4):
                A(f"v_cvt_pk_bf16_f32 v{o + e}, v{DD + 2 * e}, v{DD + 2 * e + 1}")
            for e in range(4):
                A(f"v_lshlrev_b32 v{DD + 2 * e}, 16, v{o + e}")
                A(f"v_and_b32 v{DD + 2 * e + 1}, 0xffff0000, v{o + e}")
            for e in range(8):
                A(f"v_mul_f32 v{DD + e}, v{DD + e}, v{S[k]}")
            for e in range(4):
                A(f"v_cvt_pk_bf16_f32 v{o + e}, v{DD + 2 * e}, v{DD + 2 * e + 1}")

    def unpack8(self, src, dst):
        for e in range(4):
            self.A(f"v_lshlrev_b32 v{dst + 2 * e}, 16, v{src + e}")
            self.A(f"v_and_b32 v{dst + 2 * e + 1}, 0xffff0000, v{src + e}")

    def build(self):
        A, C = self.A, self.C
        D, R = self.D, self.R
        self.L.append(HEADER.rstrip())
        self.L.append(f"; @launch grid=(256,1,1) block=(512,1,1) lds={LDS_BYTES if self.dyn else 0xA000}")
        self.L.append(DOC.rstrip())
        self.L.append('.amdgcn_target "amdgcn-amd-amdhsa--gfx950"')
        self.L.append(".text")
        self.L.append(f".globl {NAME}_kernel")
        self.L.append(".p2align 8")
        self.L.append(f".type {NAME}_kernel,@function")
        self.label(f"{NAME}_kernel")
        A("s_cmp_ge_u32 s2, 256")
        A("s_cbranch_scc1 L_end")
        self.stamp(0)
        A("s_mov_b32 s99, s2")
        if self.yrot:
            A("s_xor_b32 s2, s2, 16")
        if self.stamps:
            A("s_getreg_b32 s90, hwreg(HW_REG_HW_ID)")
            A("s_getreg_b32 s91, hwreg(HW_REG_XCC_ID)")
        A("s_load_dwordx16 s[8:23], s[0:1], 0")
        A("s_load_dwordx8 s[24:31], s[0:1], 64")
        A("s_load_dwordx2 s[32:33], s[0:1], 96")
        A("v_lshrrev_b32 v1, 6, v0")
        A("v_and_b32 v0, 63, v0")
        A("v_readfirstlane_b32 s3, v1")
        C("decode wg -> b (s4), hkv (s5), c (s6), pair (s7), f = hkv*4+c (s34)")
        A("s_lshr_b32 s4, s2, 3")
        A("s_lshr_b32 s5, s4, 3")
        A("s_and_b32 s4, s4, 7")
        A("s_lshl_b32 s5, s5, 1")
        if self.cmap == 3:
            A("s_mov_b32 s5, s4")
            A("s_and_b32 s4, s2, 7")
            A("s_lshr_b32 s6, s2, 6")
        elif self.cmap == 2:
            A("s_and_b32 s5, s2, 7")
            A("s_lshr_b32 s6, s2, 6")
        elif self.cmap:
            A("s_and_b32 s6, s2, 1")
            A("s_add_u32 s5, s5, s6")
            A("s_bfe_u32 s6, s2, 0x20001")
        else:
            A("s_bfe_u32 s6, s2, 0x10002")
            A("s_add_u32 s5, s5, s6")
            A("s_and_b32 s6, s2, 3")
        A("s_lshl_b32 s7, s4, 3")
        A("s_add_u32 s7, s7, s5")
        A("s_lshl_b32 s34, s6, 3")
        if self.bal:
            A("s_xor_b32 s35, s5, 4")
            A("s_add_u32 s34, s34, s35")
        else:
            A("s_add_u32 s34, s34, s5")
        A("s_sub_u32 s34, s34, 4")
        A(f"s_mul_i32 s98, s4, {self.spread}")
        A("s_mov_b32 s56, 0x05040100")
        A("s_mov_b32 s57, 0x07060302")
        A("v_and_b32 v2, 15, v0")
        A("v_lshrrev_b32 v3, 4, v0")
        A("s_cmp_ge_u32 s3, 4")
        A("s_cbranch_scc1 L_service")
        self.stream()
        self.service()
        self.label("L_end")
        A("s_endpgm")
        self.L.append('.section .rodata,"a"')
        self.L.append(".p2align 6")
        self.L.append(f".amdhsa_kernel {NAME}_kernel")
        self.L.append("  .amdhsa_next_free_vgpr 256")
        self.L.append("  .amdhsa_next_free_sgpr 102")
        self.L.append("  .amdhsa_accum_offset 256")
        self.L.append("  .amdhsa_group_segment_fixed_size 0")
        self.L.append("  .amdhsa_kernarg_size 104")
        self.L.append("  .amdhsa_user_sgpr_count 2")
        self.L.append("  .amdhsa_user_sgpr_kernarg_segment_ptr 1")
        self.L.append("  .amdhsa_system_sgpr_workgroup_id_x 1")
        self.L.append("  .amdhsa_float_denorm_mode_32 3")
        self.L.append(".end_amdhsa_kernel")
        return "\n".join(self.L) + "\n"

    def stream(self):
        A, C = self.A, self.C
        D, R = self.D, self.R
        C("================= stream waves (0..3) =================")
        if self.prio:
            A(f"s_setprio {self.prio}")
        vK, vV, vSC, vP, vFL, vW2, vT = 4, 5, 6, 7, 8, 9, 10
        QF = 16
        DK = 48
        ACC = 16
        TP = 48
        PF = 80
        RING = 88
        assert RING + 4 * R <= 256
        A("v_and_b32 v10, 7, v0")
        A("v_lshrrev_b32 v11, 3, v0")
        A("v_lshlrev_b32 v4, 9, v11")
        A("v_lshl_add_u32 v4, v10, 4, v4")
        A("s_lshl_b32 s35, s3, 12")
        A("v_add_u32 v4, s35, v4")
        A("v_lshlrev_b32 v5, 4, v0")
        A("s_lshl_b32 s35, s3, 13")
        A("v_add_u32 v5, s35, v5")
        A("s_lshl_b32 s35, s7, 21")
        A(f"s_lshl_b32 s36, s6, {15 if self.ilv else 19}")
        A("s_add_u32 s35, s35, s36")
        A("s_waitcnt lgkmcnt(0)")
        self.wsadj()
        ksz = 0x200000 - 3 * 32768 if self.ilv else 0x80000
        self.srd(36, 10, ksz, 35)
        self.srd(40, 12, ksz, 35)
        self.srd(44, 24, 1792 * 896)
        loads = []
        for nb in range(32):
            for j in range(4):
                loads.append(("K", nb, j))
        RS = self.RS
        NP = (16 - RS) * 16
        vTK, vPM, vPB, vTA, vVL = 6, 12, 13, 14, 15
        for nu in range(RS):
            for i in range(8):
                loads.append(("V", nu, i))
            if nu in (self.w2pos, self.w2pos + 1):
                for i in range(8):
                    loads.append(("W", nu - self.w2pos, i))
        free = list(range(R))
        slot_of = {}
        order = []
        st = {"soff": None}

        def sreg(slot):
            return RING + 4 * slot

        def set_soff(val):
            if st["soff"] != val:
                A(f"s_mov_b32 s48, {val}")
                st["soff"] = val

        cur = {"D": D}

        cur["landed"] = -1

        def vmwait(n):
            idx = len(order) - n - 1
            if idx > cur["landed"]:
                A(f"s_waitcnt vmcnt({n})")
                cur["landed"] = idx

        def pace():
            d = cur["D"]
            if self.DS and len(order) < self.NS:
                d = self.DS
            if self.Dh and (len(order) & 1):
                d -= 1
            if len(order) >= d:
                vmwait(d - 1)

        def ticket(sd):
            A(f"s_mov_b32 s{sd}, 1")
            A(f"s_atomic_add s{sd}, s[94:95], 0 glc")

        def issue(ld):
            pace()
            slot = free.pop(0)
            slot_of[ld] = slot
            r = sreg(slot)
            kind, a, b = ld
            if kind == "K":
                set_soff(((a >> 1) * 131072 + (a & 1) * 16384) if self.ilv else a * 16384)
                A(f"buffer_load_dwordx4 v[{r}:{r + 3}], v{vK}, s[36:39], s48 offen offset:{b * 128} {self.knt}")
            elif kind == "V":
                set_soff(a * (131072 if self.ilv else 32768) + (b >> 2) * 4096)
                A(f"buffer_load_dwordx4 v[{r}:{r + 3}], v{vV}, s[40:43], s48 offen offset:{(b & 3) * 1024} {self.vnt}")
            elif kind == "W":
                A(f"s_add_u32 s48, s49, {(a * 32 + (b & 4)) * 896}")
                st["soff"] = None
                A("s_mov_b64 exec, s[52:53]")
                A(f"buffer_load_dwordx4 v[{r}:{r + 3}], v{vW2}, s[44:47], s48 offen offset:{(b & 3) * 896} {self.wnt}")
                A("s_mov_b64 exec, -1")
            order.append(ld)

        def waitfor(ld):
            vmwait(len(order) - 1 - order.index(ld))

        nxt = [0]

        def issue_next(k=1):
            for _ in range(k):
                if nxt[0] < len(loads) and free:
                    issue(loads[nxt[0]])
                    nxt[0] += 1

        issue_next(self.DS if self.DS else D)
        C("score write address: L_SC + (wave*8 + (l>>3))*4")
        A("s_lshl_b32 s35, s3, 5")
        A("v_lshrrev_b32 v10, 3, v0")
        A(f"v_lshl_add_u32 v{vSC}, v10, 2, s35")
        C("P frag address: combo = rho>>2 = 2*half+h ; active iff (g&1)==half")
        A("v_lshrrev_b32 v10, 2, v2")
        A("v_and_b32 v11, 1, v10")
        A("v_lshrrev_b32 v12, 1, v10")
        A("v_and_b32 v13, 1, v3")
        A("v_lshrrev_b32 v14, 1, v3")
        A("v_lshlrev_b32 v11, 5, v11")
        A("v_lshl_add_u32 v11, v14, 4, v11")
        A("s_lshl_b32 s35, s3, 6")
        A(f"s_add_u32 s35, s35, {L_P}")
        A(f"v_add_u32 v11, s35, v11")
        A(f"v_mov_b32 v10, {L_ZERO}")
        A("v_cmp_eq_u32 vcc, v12, v13")
        A("s_nop 1")
        A(f"v_cndmask_b32 v{vP}, v10, v11, vcc")
        A(f"v_mov_b32 v{vFL}, {L_FLAG}")
        C("w2 lane offset: g*8*896 + wave*256 + j*16 ; s49 = f*56*896")
        A(f"v_mul_u32_u24 v{vW2}, {8 * 896}, v3")
        A(f"v_lshl_add_u32 v{vW2}, v2, 4, v{vW2}")
        A("s_lshl_b32 s35, s3, 8")
        A(f"v_add_u32 v{vW2}, s35, v{vW2}")
        A(f"s_max_i32 s49, s34, 0")
        A(f"s_mul_i32 s49, s49, {64 * 896}")
        C("exec mask for the w2 loads: wave 3 covers only 64 columns; no FFN slice -> skip via 0-size SRD")
        A("s_mov_b64 s[52:53], -1")
        A("s_cmp_eq_u32 s3, 3")
        A("s_cselect_b32 s52, 0x00ff00ff, s52")
        A("s_cselect_b32 s53, 0x00ff00ff, s53")
        A("s_cmp_lt_i32 s34, 0")
        A("s_cselect_b32 s46, 0, s46")
        A("v_and_b32 v10, 7, v0")
        A("v_lshlrev_b32 v15, 4, v10")
        A("s_barrier")
        M = self.margin

        def progress_flag(off):
            A("v_mov_b32 v10, 1")
            A(f"ds_write_b32 v{vFL}, v10 offset:{off}")

        issue_next(R - self.kmargin - nxt[0])
        progress_flag(16)
        issue_next(R)
        self.stamp(1)
        self.lds_spin(vFL, 4, 1, 10, 50)
        self.stamp(2)
        for j in range(4):
            for h in range(2):
                r = QF + 8 * j + 4 * h
                A(f"ds_read_b128 v[{r}:{r + 3}], v15 offset:{L_Q + 512 * h + 128 * j}")
        A("s_waitcnt lgkmcnt(0)")

        def k_post(nb):
            d = DK + 2 * (nb & 1)
            for ctrl in ("quad_perm:[1,0,3,2]", "quad_perm:[2,3,0,1]", "row_half_mirror"):
                for h in range(2):
                    A(f"v_add_f32_dpp v{d + h}, v{d + h}, v{d + h} {ctrl} row_mask:0xf bank_mask:0xf")
                A("s_nop 0")
            A(f"v_cvt_pk_bf16_f32 v10, v{d}, v{d + 1}")
            A(f"ds_write_b32 v{vSC}, v10 offset:{L_SC + nb * 128}")

        since = [0]
        eager = [self.eager]

        def feed(e, ratio):
            want = e + 1 + cur["D"]
            if nxt[0] < want:
                issue_next(want - nxt[0])
                since[0] = 0
            else:
                since[0] += 1
                if since[0] >= ratio or eager[0] > 0:
                    n0 = nxt[0]
                    issue_next(2 if eager[0] > 0 else 1)
                    eager[0] -= nxt[0] - n0
                    since[0] = 0

        for nb in range(32):
            d = DK + 2 * (nb & 1)
            for j in range(4):
                ld = ("K", nb, j)
                feed(loads.index(ld), 3)
                waitfor(ld)
                r = sreg(slot_of[ld])
                for e in range(4):
                    for h in range(2):
                        c = "0" if (j == 0 and e == 0) else f"v{d + h}"
                        A(f"v_dot2_f32_bf16 v{d + h}, v{r + e}, v{QF + 8 * j + 4 * h + e}, {c}")
                free.append(slot_of[ld])
                if j == 0 and nb > 0:
                    k_post(nb - 1)
        A("s_nop 3")
        k_post(31)
        A("v_mov_b32 v10, 1")
        A("s_waitcnt lgkmcnt(0)")
        A("s_mov_b64 exec, 1")
        A(f"ds_add_u32 v{vFL}, v10 offset:8")
        A("s_mov_b64 exec, -1")
        self.stamp(3)
        cur["D"] = D = self.DV
        issue_next(len(free) - M)
        progress_flag(20)
        issue_next(R)
        for r in range(32):
            A(f"v_mov_b32 v{ACC + r}, 0")
        self.stamp(4)
        self.lds_spin(vFL, 12, 1, 10, 50)
        self.stamp(5)
        if self.adapt:
            A(f"ds_read_b64 v[10:11], v{vFL} offset:32")
            A("s_waitcnt lgkmcnt(0)")
            A("v_readfirstlane_b32 s97, v10")
            A("v_readfirstlane_b32 s96, v11")
        else:
            A(f"ds_read_b32 v10, v{vFL} offset:32")
            A("s_waitcnt lgkmcnt(0)")
            A("v_readfirstlane_b32 s97, v10")

        def v_and_tail():
            A(f"ds_read_b128 v[{PF}:{PF + 3}], v{vP} offset:0")
            eager[0] = self.eager
            w2_frag = {}
            if self.dyn:
                C("dynamic-phase registers")
                A(f"v_cmp_gt_u32 vcc, {L_ZERO}, v{vP}")
                A("s_lshl_b32 s35, s3, 6")
                A(f"s_add_u32 s35, s35, {L_P}")
                A(f"v_cndmask_b32 v{vPM}, 0, -1, vcc")
                A(f"v_and_b32 v{vPB}, s35, v{vPM}")
                A(f"v_sub_u32 v{vPB}, v{vP}, v{vPB}")
                A("s_lshl_b32 s35, s7, 7")
                A(f"s_add_u32 s35, s35, {W_TK}")
                A("s_add_u32 s94, s32, s35")
                A("s_addc_u32 s95, s33, 0")
                A(f"v_lshlrev_b32 v{vVL}, 4, v0")
                A("s_lshl_b32 s35, s7, 21")
                self.srd(36, 12, 0x200000, 35)

            def pair(kind, a, r, dsts):
                l0, l1 = (kind, a, 2 * r), (kind, a, 2 * r + 1)
                feed(loads.index(l1), 2)
                waitfor(l1)
                s0, s1 = sreg(slot_of[l0]), sreg(slot_of[l1])
                for t in range(8):
                    sel = "s56" if (t & 1) == 0 else "s57"
                    A(f"v_perm_b32 v{dsts[t] + r}, v{s1 + (t >> 1)}, v{s0 + (t >> 1)}, {sel}")
                free.append(slot_of[l0])
                free.append(slot_of[l1])

            NST = RS - 1 if self.dyn else 16
            for nu in range(NST):
                if self.DE and nu >= 16 - self.NE:
                    cur["D"] = self.DE
                if self.dyn and nu == RS - 4:
                    progress_flag(28)
                if self.dyn and nu == RS - 2:
                    ticket(96)
                pf = PF + 4 * (nu & 1)
                for r in range(4):
                    pair("V", nu, r, [TP + 4 * t for t in range(8)])
                A("s_waitcnt lgkmcnt(0)")
                if nu + 1 < NST:
                    pn = PF + 4 * ((nu + 1) & 1)
                    A(f"ds_read_b128 v[{pn}:{pn + 3}], v{vP} offset:{(nu + 1) * 256}")
                for t in range(8):
                    a = ACC + 4 * t
                    A(f"v_mfma_f32_16x16x32_bf16 v[{a}:{a + 3}], v[{pf}:{pf + 3}], v[{TP + 4 * t}:{TP + 4 * t + 3}], v[{a}:{a + 3}]")
                if nu in (self.w2pos, self.w2pos + 1):
                    a = nu - self.w2pos
                    assert len(free) >= 8
                    outs = [sreg(free.pop()) for _ in range(8)]
                    for t in range(8):
                        w2_frag[(a, t)] = outs[t]
                    for r in range(4):
                        pair("W", a, r, outs)
            if self.dyn:
                C("---- dynamic phase: units drawn from the cluster's pool ----")
                issue_next(16)
                assert nxt[0] == len(loads)
                sl = [sreg(slot_of[("V", RS - 1, i)]) for i in range(8)]
                self.stamp(9)
                self.lds_spin(vFL, 24, 1, 10, 50)
                self.stamp(10)
                A("s_mov_b32 s82, 0")
                A("s_mov_b32 s83, 0")
                A("s_lshl_b32 s54, s3, 6")
                A(f"s_add_u32 s54, s54, {L_P + (RS - 1) * 256}")
                self.label("L_dyn")
                A("s_mov_b32 s50, s96")
                A("s_add_u32 s82, s82, 1")
                A(f"v_and_b32 v10, s54, v{vPM}")
                A(f"v_add_u32 v10, v10, v{vPB}")
                A(f"ds_read_b128 v[{PF}:{PF + 3}], v10")
                ticket(96)
                A("s_lshl_b32 s54, s50, 6")
                A(f"s_add_u32 s54, s54, {L_PP}")
                A("s_lshl_b32 s48, s50, 13")
                A(f"s_add_u32 s48, s48, {RS * 131072}")
                A(f"s_cmp_lt_u32 s50, {NP}")
                A("s_cselect_b32 s48, s48, 0x7fff0000")
                A("s_cselect_b32 s55, 1, 0")
                A("s_add_u32 s51, s48, 4096")
                for r in range(4):
                    A("s_waitcnt vmcnt(6)")
                    s0, s1 = sl[2 * r], sl[2 * r + 1]
                    for t in range(8):
                        sel = "s56" if (t & 1) == 0 else "s57"
                        A(f"v_perm_b32 v{TP + 4 * t + r}, v{s1 + (t >> 1)}, v{s0 + (t >> 1)}, {sel}")
                    for i in (2 * r, 2 * r + 1):
                        so = "s48" if i < 4 else "s51"
                        A(f"buffer_load_dwordx4 v[{sl[i]}:{sl[i] + 3}], v{vVL}, s[36:39], {so} offen offset:{(i & 3) * 1024} {self.vnt}")
                A("s_waitcnt lgkmcnt(0)")
                for t in range(8):
                    a = ACC + 4 * t
                    A(f"v_mfma_f32_16x16x32_bf16 v[{a}:{a + 3}], v[{PF}:{PF + 3}], v[{TP + 4 * t}:{TP + 4 * t + 3}], v[{a}:{a + 3}]")
                A("s_cmp_eq_u32 s55, 1")
                A("s_cbranch_scc1 L_dyn")
            self.stamp(6)
            C("---- tail: write acc to LDS: lane (j,g): combo g, cols j*8..+8 -> [h][256] layout")
            A("v_and_b32 v10, 1, v3")
            A("v_lshrrev_b32 v11, 1, v3")
            A("v_lshlrev_b32 v10, 10, v10")
            A("v_lshl_add_u32 v10, v11, 9, v10")
            A("v_lshl_add_u32 v10, v2, 5, v10")
            A("s_lshl_b32 s35, s3, 11")
            A("v_add_u32 v10, s35, v10")
            A("s_nop 2")
            for t in range(8):
                A(f"v_mov_b32 v{TP + t}, v{ACC + 4 * t}")
            A(f"ds_write_b128 v10, v[{TP}:{TP + 3}] offset:{L_ACC}")
            A(f"ds_write_b128 v10, v[{TP + 4}:{TP + 7}] offset:{L_ACC + 16}")
            A("s_waitcnt lgkmcnt(0)")
            A("s_barrier")
            C("P1/P2: waves 0,1: lane t=wave*64+l handles cols 4t..4t+3")
            A("s_cmp_ge_u32 s3, 2")
            A("s_cbranch_scc1 L_st_skip1")
            A("s_lshl_b32 s35, s3, 10")
            A("v_lshl_add_u32 v10, v0, 4, s35")
            for w in range(4):
                A(f"ds_read_b128 v[{ACC + 4 * w}:{ACC + 4 * w + 3}], v10 offset:{L_ACC + 2048 * w}")
            A("s_lshl_b32 s35, s7, 13")
            A(f"s_add_u32 s35, s35, {W_OP}")
            A("s_add_u32 s35, s35, s98")
            self.srd(36, 32, 0x2000, 35)
            A("s_lshl_b32 s48, s6, 11")
            A("s_waitcnt lgkmcnt(0)")
            for e in (0, 2):
                A(f"v_pk_add_f32 v[{ACC + e}:{ACC + e + 1}], v[{ACC + e}:{ACC + e + 1}], v[{ACC + 4 + e}:{ACC + 5 + e}]")
                A(f"v_pk_add_f32 v[{ACC + 8 + e}:{ACC + 9 + e}], v[{ACC + 8 + e}:{ACC + 9 + e}], v[{ACC + 12 + e}:{ACC + 13 + e}]")
            for e in (0, 2):
                A(f"v_pk_add_f32 v[{ACC + e}:{ACC + e + 1}], v[{ACC + e}:{ACC + e + 1}], v[{ACC + 8 + e}:{ACC + 9 + e}]")
            A("s_cmp_lg_u32 s97, 0")
            A("s_cbranch_scc1 L_st_far")
            A(f"buffer_store_dwordx4 v[{ACC}:{ACC + 3}], v10, s[36:39], s48 offen {self.opst}")
            A("s_branch L_st_stored")
            self.label("L_st_far")
            A(f"buffer_store_dwordx4 v[{ACC}:{ACC + 3}], v10, s[36:39], s48 offen sc1")
            self.label("L_st_stored")
            A("v_add_u32 v11, 0x1000, v10")
            lds = []
            for cc in range(4):
                r = ACC + 16 + 4 * cc
                va = "v10" if cc < 2 else "v11"
                lds.append(f"buffer_load_dwordx4 v[{r}:{r + 3}], {va}, s[36:39], 0 offen offset:{(cc & 1) * 2048} sc1")
            b = ACC + 16

            def pk(d, x, y):
                A(f"v_pk_add_f32 v[{d}:{d + 1}], v[{x}:{x + 1}], v[{y}:{y + 1}]")
            A(f"s_mov_b32 s50, {self.poll_cap}")
            self.label("L_st_oppoll")
            for x in lds:
                A(x)
            A("s_waitcnt vmcnt(2)")
            pk(b, b, b + 4)
            pk(b + 2, b + 2, b + 6)
            A("s_waitcnt vmcnt(0)")
            pk(b + 8, b + 8, b + 12)
            pk(b + 10, b + 10, b + 14)
            pk(b, b, b + 8)
            pk(b + 2, b + 2, b + 10)
            pk(b + 4, b, b + 2)
            A(f"v_cmp_u_f32 vcc, v{b + 4}, v{b + 5}")
            A("s_cbranch_vccz L_st_opok")
            A("s_sub_u32 s50, s50, 1")
            A("s_cmp_lg_u32 s50, 0")
            A("s_cbranch_scc1 L_st_oppoll")
            self.label("L_st_opok")
            self.stamp(7)
            A(f"v_cvt_pk_bf16_f32 v12, v{b}, v{b + 1}")
            A(f"v_cvt_pk_bf16_f32 v13, v{b + 2}, v{b + 3}")
            A("v_lshrrev_b32 v10, 1, v10")
            A(f"ds_write_b64 v10, v[12:13] offset:{L_O}")
            A("s_waitcnt lgkmcnt(0)")
            self.label("L_st_skip1")
            A("s_barrier")
            C("b1 preload: lane k<56 b1[56f+k]")
            self.srd(36, 22, 1792 * 2)
            A("s_max_i32 s48, s34, 0")
            A("s_lshl_b32 s48, s48, 7")
            A("v_lshlrev_b32 v10, 1, v0")
            A("buffer_load_ushort v14, v10, s[36:39], s48 offen")
            if self.late & 2:
                raw = [sreg(k) for k in range(16)]
                A("s_mov_b64 exec, s[52:53]")
                for a in range(2):
                    for i in range(8):
                        r = raw[a * 8 + i]
                        if i % 4 == 0:
                            A(f"s_add_u32 s48, s49, {(a * 32 + i) * 896}")
                        A(f"buffer_load_dwordx4 v[{r}:{r + 3}], v{vW2}, s[44:47], s48 offen offset:{(i & 3) * 896} {self.wnt}")
                A("s_mov_b64 exec, -1")
            A("s_barrier")
            if self.late & 2:
                for a in range(2):
                    A(f"s_waitcnt vmcnt({8 - 8 * a})")
                    for t in range(8):
                        dst = sreg(16 + a * 8 + t)
                        w2_frag[(a, t)] = dst
                        sel = "s56" if (t & 1) == 0 else "s57"
                        for r in range(4):
                            A(f"v_perm_b32 v{dst + r}, v{raw[a * 8 + 2 * r + 1] + (t >> 1)}, v{raw[a * 8 + 2 * r] + (t >> 1)}, {sel}")
            A("s_barrier")
            A("s_barrier")
            A("s_cmp_lt_i32 s34, 0")
            A("s_cbranch_scc1 L_st_end")
            C("h1: lane k: sum R1[w][k], +b1, relu^2 -> private LDS row, then A frags")
            A("v_lshlrev_b32 v10, 2, v0")
            for w in range(4):
                A(f"ds_read_b32 v{ACC + w}, v10 offset:{L_R1 + 256 * w}")
            A("s_lshl_b32 s35, s3, 7")
            A(f"s_add_u32 s35, s35, {L_H1}")
            A("v_lshl_add_u32 v11, v0, 1, s35")
            A("v_lshl_add_u32 v12, v3, 4, s35")
            A("s_waitcnt vmcnt(0) lgkmcnt(0)")
            A(f"v_add_f32 v{ACC}, v{ACC}, v{ACC + 1}")
            A(f"v_add_f32 v{ACC + 2}, v{ACC + 2}, v{ACC + 3}")
            A(f"v_add_f32 v{ACC}, v{ACC}, v{ACC + 2}")
            A("v_lshlrev_b32 v14, 16, v14")
            A(f"v_cvt_pk_bf16_f32 v{ACC}, v{ACC}, v{ACC}")
            A(f"v_lshlrev_b32 v{ACC}, 16, v{ACC}")
            A(f"v_add_f32 v{ACC}, v{ACC}, v14")
            A(f"v_cvt_pk_bf16_f32 v{ACC}, v{ACC}, v{ACC}")
            A(f"v_lshlrev_b32 v{ACC}, 16, v{ACC}")
            A(f"v_max_f32 v{ACC}, 0, v{ACC}")
            A(f"v_mul_f32 v{ACC}, v{ACC}, v{ACC}")
            A(f"v_cvt_pk_bf16_f32 v{ACC}, v{ACC}, v{ACC}")
            A(f"ds_write_b16 v11, v{ACC}")
            A("s_waitcnt lgkmcnt(0)")
            A(f"ds_read_b128 v[{PF}:{PF + 3}], v12")
            A(f"ds_read_b128 v[{PF + 4}:{PF + 7}], v12 offset:64")
            C("FP[b][f] row: 448 f32")
            A("s_lshl_b32 s35, s4, 5")
            A("s_add_u32 s35, s35, s34")
            A("s_mul_i32 s35, s35, 1792")
            A(f"s_add_u32 s35, s35, {W_FP}")
            A("s_add_u32 s35, s35, s98")
            self.srd(36, 32, 1792, 35)
            A("s_lshl_b32 s35, s3, 9")
            A("v_lshl_add_u32 v10, v2, 5, s35")
            A("s_waitcnt lgkmcnt(0)")
            for a in range(2):
                for t in range(8):
                    d = ACC + 4 * t
                    fr = w2_frag[(a, t)]
                    c = "0" if a == 0 else f"v[{d}:{d + 3}]"
                    A(f"v_mfma_f32_16x16x32_bf16 v[{d}:{d + 3}], v[{PF + 4 * a}:{PF + 4 * a + 3}], v[{fr}:{fr + 3}], {c}")
            A("s_nop 1")
            for t in range(8):
                A(f"v_min_u32 v{TP + t}, -2, v{ACC + 4 * t}")
                if t < 7:
                    pass
            A("s_mov_b64 exec, 0xffff")
            A(f"buffer_store_dwordx4 v[{TP}:{TP + 3}], v10, s[36:39], 0 offen {self.apst}")
            A(f"buffer_store_dwordx4 v[{TP + 4}:{TP + 7}], v10, s[36:39], 0 offen offset:16 {self.apst}")
            A("s_mov_b64 exec, -1")
            self.label("L_st_end")
            self.stamp(8)
            self.dump_stamps(12, 10)
            A("s_endpgm")

        if not self.adapt:
            v_and_tail()
        else:
            import copy
            import re
            variants = self.adapt
            for k in range(1, len(variants)):
                A(f"s_cmp_eq_u32 s96, {k}")
                A(f"s_cbranch_scc1 L_var{k}")
            snap = (list(free), dict(slot_of), list(order), dict(st), dict(cur), nxt[0], since[0])
            for k, dv in enumerate(variants):
                free[:] = snap[0]
                slot_of.clear(); slot_of.update(snap[1])
                order[:] = snap[2]
                st.clear(); st.update(snap[3])
                cur.clear(); cur.update(snap[4])
                nxt[0] = snap[5]; since[0] = snap[6]
                cur["D"] = dv
                self.dE_now = max(self.DE, dv) if self.DE else 0
                n0 = len(self.L)
                if k:
                    self.label(f"L_var{k}")
                v_and_tail()
                for i in range(n0, len(self.L)):
                    self.L[i] = re.sub(r"L_st_", f"L_st{k}_", self.L[i])

    def service(self):
        A, C = self.A, self.C
        self.label("L_service")
        C("================= service waves (4..7), s3 -> 0..3 in s35 =================")
        WO = 64
        W1 = 192
        ST = 16
        A("s_sub_u32 s35, s3, 4")
        A("v_cmp_gt_u32 s[52:53], 56, v0")
        A("v_lshlrev_b32 v4, 4, v0")
        A(f"v_mov_b32 v5, {L_FLAG}")
        A("v_mov_b32 v8, 0")
        A("v_mov_b32 v9, 0")
        A("v_mov_b32 v10, 0")
        A("v_mov_b32 v11, 0")
        A("s_waitcnt lgkmcnt(0)")
        self.wsadj()
        C("x rows 2s, 2s+1")
        self.srd(36, 8, 8 * 896)
        A("s_mul_i32 s48, s35, 1792")
        self.epoch_load()
        A(f"buffer_load_dwordx4 v[{ST}:{ST + 3}], v4, s[36:39], s48 offen")
        A(f"buffer_load_dwordx4 v[{ST + 4}:{ST + 7}], v4, s[36:39], s48 offen offset:896")
        A("s_cmp_lg_u32 s35, 0")
        A("s_cbranch_scc1 L_sv_nowq")
        C("S0: wq loads into WO area (free for now): 56 x dword; n16 = (wg&7)*32 + (wg>>3) in s54")
        self.srd(40, 14, 448 * 8192)
        A("s_and_b32 s54, s2, 7")
        if self.bal:
            A("s_mov_b32 s49, 20")
        else:
            A("s_lshl_b32 s49, s54, 2")
        A("s_lshr_b32 s48, s2, 3")
        A("s_add_u32 s49, s49, s48")
        A("s_and_b32 s49, s49, 31")
        A("s_lshl_b32 s54, s54, 5")
        A("s_add_u32 s54, s54, s49")
        A("v_lshrrev_b32 v6, 3, v2")
        A("v_mul_u32_u24 v6, 224, v6")
        A("v_lshl_add_u32 v6, v3, 3, v6")
        A("v_lshlrev_b32 v6, 13, v6")
        A("v_and_b32 v7, 7, v2")
        A("v_lshl_add_u32 v6, v7, 2, v6")
        A("s_lshl_b32 s48, s54, 5")
        for kk in range(7):
            for i in range(8):
                r = WO + kk * 8 + i
                A(f"s_add_u32 s49, s48, {(kk * 32 + i) * 8192}")
                A(f"buffer_load_dword v{r}, v6, s[40:43], s49 offen {self.qnt}")
        C("flags = 0, HN tail = 0")
        A("ds_write_b128 v5, v[8:11]")
        A("ds_write_b128 v5, v[8:11] offset:16")
        A(f"ds_write_b128 v4, v[8:11] offset:{L_HN}")
        self.label("L_sv_nowq")
        A("s_cmp_lg_u32 s35, 1")
        A("s_cbranch_scc1 L_sv_noclr")
        if self.now & 2:
            A("s_branch L_sv_noclr")
        C("S1: clear own hand-off slots with the sentinel")
        A("v_mov_b32 v12, -1")
        A("v_mov_b32 v13, -1")
        A("v_mov_b32 v14, -1")
        A("v_mov_b32 v15, -1")
        A("s_lshl_b32 s48, s7, 13")
        A("s_lshl_b32 s49, s6, 11")
        A("s_add_u32 s48, s48, s49")
        A(f"s_add_u32 s48, s48, {W_OP}")
        A("s_add_u32 s48, s48, s98")
        self.srd(44, 32, 2048, 48)
        A("buffer_store_dwordx4 v[12:15], v4, s[44:47], 0 offen sc1")
        A("buffer_store_dwordx4 v[12:15], v4, s[44:47], 0 offen offset:1024 sc1")
        A("s_lshl_b32 s48, s7, 7")
        A("s_lshl_b32 s49, s6, 4")
        A("s_add_u32 s48, s48, s49")
        A(f"s_add_u32 s48, s48, {W_ST}")
        A("s_add_u32 s48, s48, s98")
        self.srd(44, 32, 16, 48)
        A("buffer_store_dwordx4 v[12:15], v4, s[44:47], 0 offen sc1")
        A("s_mul_i32 s48, s7, 1792")
        A("s_lshl_b32 s49, s6, 9")
        A("s_add_u32 s48, s48, s49")
        A(f"s_add_u32 s48, s48, {W_AP}")
        A("s_add_u32 s48, s48, s98")
        self.srd(44, 32, 512, 48)
        A("s_cmp_eq_u32 s6, 3")
        A("s_cselect_b32 s46, 256, s46")
        A("buffer_store_dwordx4 v[12:15], v4, s[44:47], 0 offen sc1")
        A("s_max_i32 s49, s34, 0")
        A("s_lshl_b32 s48, s4, 5")
        A("s_add_u32 s48, s48, s49")
        A("s_mul_i32 s48, s48, 1792")
        A(f"s_add_u32 s48, s48, {W_FP}")
        A("s_add_u32 s48, s48, s98")
        self.srd(44, 32, 1792, 48)
        A("s_cmp_lt_i32 s34, 0")
        A("s_cselect_b32 s46, 0, s46")
        A("buffer_store_dwordx4 v[12:15], v4, s[44:47], 0 offen sc1")
        A("buffer_store_dwordx4 v[12:15], v4, s[44:47], 0 offen offset:1024 sc1")
        if self.dyn:
            self.pp_addr(6, 48)
            A(f"s_mov_b64 exec, s[50:51]")
            for k in range(4):
                A(f"global_store_dwordx4 v6, v[12:15], s[32:33] offset:{16 * k} sc1")
            A("s_mov_b64 exec, -1")
        self.label("L_sv_noclr")
        C("zero region: each service wave clears 1 KiB")
        A("s_lshl_b32 s48, s35, 10")
        A("v_add_u32 v6, s48, v4")
        A(f"ds_write_b128 v6, v[8:11] offset:{L_ZERO}")
        A("s_waitcnt lgkmcnt(0)")
        A("s_barrier")
        A("s_add_u32 s93, s93, 1")
        C("LN1 of 2 rows")
        A("s_cmp_lg_u32 s35, 0")
        A("s_cbranch_scc1 L_sv_w0")
        A("s_waitcnt vmcnt(56)")
        A("s_branch L_sv_w1")
        self.label("L_sv_w0")
        A(f"s_waitcnt vmcnt({10 if self.dyn else 6})")
        A("s_cmp_eq_u32 s35, 1")
        A("s_cbranch_scc1 L_sv_w1")
        A("s_waitcnt vmcnt(0)")
        self.label("L_sv_w1")
        X0, X1 = 24, 32
        self.unpack8(ST, X0)
        self.unpack8(ST + 4, X1)
        self.layernorm([([X0 + e for e in range(8)], ST), ([X1 + e for e in range(8)], ST + 4)], 52, 40)
        A("s_mul_i32 s48, s35, 1792")
        A("v_add_u32 v6, s48, v4")
        A("s_mov_b64 exec, s[52:53]")
        A(f"ds_write_b128 v6, v[{ST}:{ST + 3}] offset:{L_XN}")
        A(f"ds_write_b128 v6, v[{ST + 4}:{ST + 7}] offset:{L_XN + 896}")
        A("v_mov_b32 v7, 1")
        A("s_waitcnt lgkmcnt(0)")
        A("s_mov_b64 exec, 1")
        A("ds_add_u32 v5, v7")
        A("s_mov_b64 exec, -1")
        A("s_cmp_eq_u32 s35, 0")
        A("s_cbranch_scc1 L_sv_q")
        A("s_cmp_lg_u32 s35, 1")
        A("s_cbranch_scc1 L_sv_weights")
        C("S1: arrival flag (slots cleared; every service wave read the epoch before B0)")
        if self.dyn:
            A("s_cmp_lg_u32 s6, 0")
            A("s_cbranch_scc1 L_sv_notk")
            A("s_lshl_b32 s48, s7, 7")
            A(f"s_add_u32 s48, s48, {W_TK}")
            A("v_mov_b32 v6, s48")
            A("v_mov_b32 v7, 0")
            A("s_mov_b64 exec, 1")
            A("global_store_dword v6, v7, s[32:33] sc1")
            A("s_mov_b64 exec, -1")
            self.label("L_sv_notk")
        A("s_lshl_b32 s48, s4, 5")
        A("s_add_u32 s48, s48, s34")
        A("s_add_u32 s48, s48, 4")
        A("s_lshl_b32 s48, s48, 3")
        A(f"s_add_u32 s48, s48, {W_AR}")
        A("v_mov_b32 v6, s48")
        A("v_mov_b32 v12, s92")
        A("v_mov_b32 v13, s93")
        A("s_waitcnt vmcnt(0)")
        A("s_mov_b64 exec, 1")
        A("global_store_dwordx2 v6, v[12:13], s[32:33] sc1")
        A("s_mov_b64 exec, -1")
        A("s_branch L_sv_weights")
        self.label("L_sv_q")
        C("---- S0: q for 16 columns x 8 batches ----")
        QB = WO + 64
        A("v_mov_b32 v62, s92")
        A("v_mov_b32 v63, s93")
        A("s_mov_b32 s55, 0x05040302")
        C("A frag address: (rho&7)*896 + (rho>>3)*448 + g*16 (+kk*64)")
        A("v_and_b32 v6, 7, v2")
        A("v_mul_u32_u24 v6, 896, v6")
        A("v_lshl_add_u32 v6, v3, 4, v6")
        A("v_lshrrev_b32 v7, 3, v2")
        A("v_mul_u32_u24 v7, 448, v7")
        A("v_add_u32 v6, v6, v7")
        for kk in range(7):
            A(f"s_waitcnt vmcnt({48 - 8 * kk})")
            for u in range(2):
                dst = QB + kk * 8 + u * 4
                sel = "s56" if u == 0 else "s57"
                for r in range(4):
                    A(f"v_perm_b32 v{dst + r}, v{WO + kk * 8 + 2 * r + 1}, v{WO + kk * 8 + 2 * r}, {sel}")
        self.lds_spin(5, 0, 4, 12, 50)
        for kk in range(7):
            A(f"ds_read_b128 v[{ST + 4 * kk}:{ST + 4 * kk + 3}], v6 offset:{L_XN + 64 * kk}")
        C("QG store addressing: (4g+r)*32768 + n16*128 + jj*16")
        A(f"s_mov_b32 s48, {W_QG}")
        QS = 32768 + self.spread
        self.srd(44, 32, 8 * QS, 48)
        A(f"s_mov_b32 s49, {4 * QS}")
        A("v_mul_lo_u32 v6, s49, v3")
        A("v_lshl_add_u32 v6, v2, 4, v6")
        A("s_lshl_b32 s48, s54, 7")
        DQ = 48
        for kk in range(7):
            A(f"s_waitcnt lgkmcnt({6 - kk})")
            for u in range(2):
                d = DQ + 4 * u
                fr = QB + kk * 8 + u * 4
                c = "0" if kk == 0 else f"v[{d}:{d + 3}]"
                A(f"v_mfma_f32_16x16x32_bf16 v[{d}:{d + 3}], v[{ST + 4 * kk}:{ST + 4 * kk + 3}], v[{fr}:{fr + 3}], {c}")
        A("s_nop 7")
        A("s_nop 1")
        for e in range(8):
            A(f"v_mov_b32_dpp v{ST + e}, v{DQ + e} row_ror:8 row_mask:0xf bank_mask:0xf")
        A("s_nop 1")
        for e in range(8):
            A(f"v_permlane32_swap_b32 v{ST + e}, v{ST + 8 + e}")
        A("s_nop 1")
        for e in range(8):
            A(f"v_add_f32 v{DQ + e}, v{DQ + e}, v{ST + 8 + e}")
        for r in range(4):
            o = ST + 16 + 4 * r
            A(f"v_cvt_pk_bf16_f32 v{ST + r}, v{DQ + r}, v{DQ + 4 + r}")
            A(f"v_perm_b32 v{o}, v62, v{ST + r}, s56")
            A(f"v_mov_b32 v{o + 1}, v63")
            A(f"v_perm_b32 v{o + 2}, v62, v{ST + r}, s55")
            A(f"v_mov_b32 v{o + 3}, v63")
        A("s_mov_b64 exec, 0x00ff00ff")
        for r in range(4):
            o = ST + 16 + 4 * r
            A(f"s_add_u32 s49, s48, {r * QS}")
            A(f"buffer_store_dwordx4 v[{o}:{o + 3}], v6, s[44:47], s49 offen sc1")
        A("s_mov_b64 exec, -1")
        self.stamp(1)
        C("gather q granules: QG[b][hkv*512 + 8l ..]")
        A("v_lshlrev_b32 v6, 6, v0")
        A("s_lshl_b32 s48, s4, 15")
        A("s_lshl_b32 s49, s5, 12")
        A("s_add_u32 s48, s48, s49")
        A("s_add_u32 s48, s48, s98")
        A("v_lshlrev_b32 v61, 16, v62")
        if self.margin:
            self.lds_spin(5, 16, 1, 12, 50)
        A(f"s_mov_b32 s51, {self.poll_cap}")
        self.label("L_sv_qpoll")
        for k in range(4):
            A(f"buffer_load_dwordx4 v[{ST + 4 * k}:{ST + 4 * k + 3}], v6, s[44:47], s48 offen offset:{16 * k} sc1")
        A("s_waitcnt vmcnt(0)")
        for k in range(8):
            A(f"v_xor_b32 v{48 + k}, v61, v{ST + 2 * k}")
        A("v_or3_b32 v12, v48, v49, v50")
        A("v_or3_b32 v12, v12, v51, v52")
        A("v_or3_b32 v12, v12, v53, v54")
        A("v_or_b32 v12, v12, v55")
        A("v_lshrrev_b32 v12, 16, v12")
        for k in range(8):
            A(f"v_xor_b32 v{48 + k}, v63, v{ST + 2 * k + 1}")
        A("v_or3_b32 v12, v12, v48, v49")
        A("v_or3_b32 v12, v12, v50, v51")
        A("v_or3_b32 v12, v12, v52, v53")
        A("v_or3_b32 v12, v12, v54, v55")
        A("v_cmp_ne_u32 vcc, 0, v12")
        A("s_cbranch_vccz L_sv_qok")
        if self.qsleep:
            A(f"s_sleep {self.qsleep}")
        A("s_sub_u32 s51, s51, 1")
        A("s_cmp_lg_u32 s51, 0")
        A("s_cbranch_scc1 L_sv_qpoll")
        self.label("L_sv_qok")
        self.stamp(2)
        for k in range(4):
            A(f"v_perm_b32 v{48 + k}, v{ST + 4 * k + 2}, v{ST + 4 * k}, s56")
        self.label("L_sv_qskip")
        A(f"ds_write_b128 v4, v[48:51] offset:{L_Q}")
        A("v_mov_b32 v7, 1")
        A("s_waitcnt lgkmcnt(0)")
        A("ds_write_b32 v5, v7 offset:4")
        self.stamp(3)
        self.label("L_sv_weights")
        C("---- weights: wo frags (4 ksteps), w1 frags (4 ksteps) ----")
        if self.wdelay:
            self.lds_spin(5, 4, 1, 12, 50)
        if self.now & 1:
            A("s_branch L_sv_wskip")
        self.srd(40, 16, 4096 * 896)
        A(f"v_mul_u32_u24 v6, {8 * 896}, v3")
        A("v_lshl_add_u32 v6, v2, 4, v6")
        A("s_lshl_b32 s48, s5, 9")
        A("s_lshl_b32 s49, s35, 7")
        A("s_add_u32 s48, s48, s49")
        A("s_mul_i32 s48, s48, 896")
        A("s_lshl_b32 s49, s6, 8")
        A("s_add_u32 s48, s48, s49")
        A("s_cmp_eq_u32 s6, 3")
        A("s_cselect_b32 s50, 0x00ff00ff, -1")
        A("s_mov_b32 s51, s50")
        for kk in range(4):
            A("s_mov_b64 exec, s[50:51]")
            for i in range(8):
                if i % 4 == 0:
                    A(f"s_add_u32 s49, s48, {(kk * 32 + i) * 896}")
                r = ST + 4 * i
                if i >= self.wd:
                    A(f"s_waitcnt vmcnt({self.wd - 1})")
                A(f"buffer_load_dwordx4 v[{r}:{r + 3}], v6, s[40:43], s49 offen offset:{(i & 3) * 896} {self.wnt}")
            A("s_mov_b64 exec, -1")
            A("s_waitcnt vmcnt(0)")
            for c in range(4):
                for u in range(2):
                    dst = WO + kk * 32 + (2 * c + u) * 4
                    sel = "s56" if u == 0 else "s57"
                    for r in range(4):
                        A(f"v_perm_b32 v{dst + r}, v{ST + 4 * (2 * r + 1) + c}, v{ST + 4 * (2 * r) + c}, {sel}")
        if self.late & 1:
            A("s_branch L_sv_wskip")
        self.srd(40, 20, 448 * 3584)
        A(f"v_mul_u32_u24 v6, {8 * 3584}, v3")
        A("v_lshl_add_u32 v6, v2, 3, v6")
        A(f"s_mul_i32 s48, s35, {32 * 3584}")
        A("s_cmp_lt_i32 s34, 0")
        A("s_cbranch_scc1 L_sv_wskip")
        A("s_lshl_b32 s49, s34, 7")
        A("s_add_u32 s48, s48, s49")
        for kp in range(2):
            for kk in (2 * kp, 2 * kp + 1):
                for i in range(8):
                    if i % 2 == 0:
                        A(f"s_add_u32 s49, s48, {(kk * 128 + i) * 3584}")
                    r = ST + (kk & 1) * 16 + 2 * i
                    if (kk & 1) * 8 + i >= 2 * self.wd:
                        A(f"s_waitcnt vmcnt({2 * self.wd - 1})")
                    A(f"buffer_load_dwordx2 v[{r}:{r + 1}], v6, s[40:43], s49 offen offset:{(i & 1) * 3584} {self.wnt}")
            A("s_waitcnt vmcnt(0)")
            for kk in (2 * kp, 2 * kp + 1):
                base = ST + (kk & 1) * 16
                for c in range(2):
                    for u in range(2):
                        dst = W1 + kk * 16 + (2 * c + u) * 4
                        sel = "s56" if u == 0 else "s57"
                        for r in range(4):
                            A(f"v_perm_b32 v{dst + r}, v{base + 2 * (2 * r + 1) + c}, v{base + 2 * (2 * r) + c}, {sel}")
        self.label("L_sv_wskip")
        C("workgroup 0 / S2: once all 256 arrival flags are in, advance the epoch")
        A("s_cmp_lg_u32 s2, 0")
        A("s_cbranch_scc1 L_sv_noepw")
        A("s_cmp_lg_u32 s35, 2")
        A("s_cbranch_scc1 L_sv_noepw")
        A(f"v_add_u32 v6, {W_AR}, v4")
        A(f"s_mov_b32 s51, {self.poll_cap}")
        self.label("L_sv_epoll")
        A("global_load_dwordx4 v[16:19], v6, s[32:33] sc1")
        A("global_load_dwordx4 v[20:23], v6, s[32:33] offset:1024 sc1")
        A("s_waitcnt vmcnt(0)")
        for k in range(4):
            A(f"v_xor_b32 v{16 + 2 * k}, s92, v{16 + 2 * k}")
            A(f"v_xor_b32 v{17 + 2 * k}, s93, v{17 + 2 * k}")
        A("v_or3_b32 v16, v16, v17, v18")
        A("v_or3_b32 v16, v16, v19, v20")
        A("v_or3_b32 v16, v16, v21, v22")
        A("v_or_b32 v16, v16, v23")
        A("v_cmp_ne_u32 vcc, 0, v16")
        A("s_cbranch_vccz L_sv_eok")
        A("s_sleep 16")
        A("s_sub_u32 s51, s51, 1")
        A("s_cmp_lg_u32 s51, 0")
        A("s_cbranch_scc1 L_sv_epoll")
        self.label("L_sv_eok")
        A(f"v_mov_b32 v6, {W_EP}")
        A("v_mov_b32 v7, s93")
        A("s_mov_b64 exec, 1")
        A("global_store_dword v6, v7, s[32:33] offset:4 sc1")
        A("s_mov_b64 exec, -1")
        self.label("L_sv_noepw")
        A("s_cmp_lg_u32 s35, 0")
        A("s_cbranch_scc1 L_sv_tail")
        C("---- S0: softmax stats, exchange, P ----")
        self.stamp(4)
        self.lds_spin(5, 8, 4, 12, 50)
        self.stamp(5)
        if self.adapt:
            C("publish this workgroup's K-done time (only steers the V-phase queue depth)")
            A("s_memrealtime s[94:95]")
            A("s_lshl_b32 s48, s2, 2")
            A(f"s_add_u32 s48, s48, {W_TS}")
            A("v_mov_b32 v6, s48")
            A("s_waitcnt lgkmcnt(0)")
            A("v_mov_b32 v7, s94")
            A("s_mov_b64 exec, 1")
            A("global_store_dword v6, v7, s[32:33] sc1")
            A("s_mov_b64 exec, -1")
        A("v_lshlrev_b32 v6, 6, v0")
        for k in range(4):
            A(f"ds_read_b128 v[{48 + 4 * k}:{48 + 4 * k + 3}], v6 offset:{L_SC + 16 * k}")
        A("s_lshl_b32 s48, s7, 7")
        A(f"s_add_u32 s48, s48, {W_ST}")
        A("s_add_u32 s48, s48, s98")
        self.srd(44, 32, 64, 48)
        A("s_mov_b32 s50, 0x3db8aa3b")
        A("s_waitcnt lgkmcnt(0)")
        H0, H1 = 16, 32
        for k in range(16):
            A(f"v_lshlrev_b32 v{H0 + k}, 16, v{48 + k}")
            A(f"v_and_b32 v{H1 + k}, 0xffff0000, v{48 + k}")
        for h, base in ((0, H0), (1, H1)):
            m = 8 + h
            A(f"v_max3_f32 v{m}, v{base}, v{base + 1}, v{base + 2}")
            for k in range(3, 15, 2):
                A(f"v_max3_f32 v{m}, v{m}, v{base + k}, v{base + k + 1}")
            A(f"v_max_f32 v{m}, v{m}, v{base + 15}")
        self.allreduce("max", [8, 9], [12, 13])
        for h, base in ((0, H0), (1, H1)):
            m = 8 + h
            sreg = 10 + h
            for k in range(16):
                A(f"v_sub_f32 v{48 + k}, v{base + k}, v{m}")
            for k in range(16):
                A(f"v_mul_f32 v{48 + k}, s50, v{48 + k}")
            for k in range(16):
                A(f"v_exp_f32 v{48 + k}, v{48 + k}")
            A("s_nop 0")
            A(f"v_add_f32 v{sreg}, v48, v49")
            for k in range(2, 16):
                A(f"v_add_f32 v{sreg}, v{sreg}, v{48 + k}")
        self.allreduce("add", [10, 11], [12, 13])
        C("publish (m0 | xcc, m1, l0, l1) = v8..v11 (m0 is a bf16 value: its low 16 bits are free)")
        A("s_getreg_b32 s91, hwreg(HW_REG_XCC_ID)")
        A("s_and_b32 s91, s91, 0xff")
        A("v_or_b32 v8, s91, v8")
        for k in range(4):
            A(f"v_min_u32 v{8 + k}, -2, v{8 + k}")
        A("s_lshl_b32 s48, s6, 4")
        A("v_mov_b32 v7, 0")
        A("s_mov_b64 exec, 1")
        A("buffer_store_dwordx4 v[8:11], v7, s[44:47], s48 offen sc1")
        A("s_mov_b64 exec, -1")
        lds = [f"buffer_load_dwordx4 v[{48 + 4 * cc}:{48 + 4 * cc + 3}], v7, s[44:47], 0 offen offset:{16 * cc} sc1" for cc in range(4)]
        C("the 32 workgroups of this batch must have cleared their slots before any slot is polled")
        A("s_lshl_b32 s48, s4, 8")
        A(f"s_add_u32 s48, s48, {W_AR}")
        A("v_and_b32 v12, 31, v0")
        A("v_lshl_add_u32 v12, v12, 3, s48")
        A(f"s_mov_b32 s51, {self.poll_cap}")
        self.label("L_sv_apoll")
        A("global_load_dwordx2 v[14:15], v12, s[32:33] sc1")
        A("s_waitcnt vmcnt(0)")
        A("v_xor_b32 v14, s92, v14")
        A("v_xor_b32 v15, s93, v15")
        A("v_or_b32 v14, v14, v15")
        A("v_cmp_ne_u32 vcc, 0, v14")
        A("s_cbranch_vccz L_sv_aok")
        A("s_sleep 8")
        A("s_sub_u32 s51, s51, 1")
        A("s_cmp_lg_u32 s51, 0")
        A("s_cbranch_scc1 L_sv_apoll")
        self.label("L_sv_aok")
        if self.margin:
            self.lds_spin(5, 20, 1, 12, 51)
        if self.adapt:
            A(f"v_add_u32 v13, {W_TS}, v4")
            A("global_load_dwordx4 v[8:11], v13, s[32:33] sc1")
        self.poll_sentinel(lds, [48 + i for i in range(16)], 12, 51, retry_sleep=self.ssleep)
        self.stamp(6)
        if self.adapt:
            C("how many workgroups finished K more than 2us / 1us before this one, or less than 1us after it")
            t1, t2 = self.athr
            for (sd, off) in ((88, -t2), (89, -t1), (90, t1)):
                A(f"s_add_u32 s48, s94, {off & 0xffffffff}")
                A(f"s_mov_b32 s{sd}, 0")
                for k in range(4):
                    A(f"v_sub_u32 v12, s48, v{8 + k}")
                    A("v_cmp_gt_u32 vcc, 0x1000, v12")
                    A("s_bcnt1_i32_b64 s49, vcc")
                    A(f"s_add_u32 s{sd}, s{sd}, s49")
            A("s_mov_b32 s48, 0")
            A("s_cmp_lt_u32 s90, 128")
            A("s_cselect_b32 s48, 1, s48")
            A("s_cmp_ge_u32 s89, 128")
            A("s_cselect_b32 s48, 2, s48")
            A("s_cmp_ge_u32 s88, 128")
            A("s_cselect_b32 s48, 3, s48")
            A("v_mov_b32 v12, s48")
            A("ds_write_b32 v5, v12 offset:36")
        C("all four members on one XCD? (same answer in every member) -> LDS word for the o hand-off store flavour")
        A("v_xor_b32 v12, v48, v52")
        A("v_xor_b32 v13, v48, v56")
        A("v_xor_b32 v14, v48, v60")
        A("v_or3_b32 v12, v12, v13, v14")
        A("v_and_b32 v12, 0xffff, v12")
        A("ds_write_b32 v5, v12 offset:32")
        for cc in range(4):
            A(f"v_and_b32 v{48 + 4 * cc}, 0xffff0000, v{48 + 4 * cc}")
        for h in range(2):
            A(f"v_max3_f32 v{8 + h}, v{48 + h}, v{52 + h}, v{56 + h}")
            A(f"v_max_f32 v{8 + h}, v{8 + h}, v{60 + h}")
        for h in range(2):
            for cc in range(4):
                A(f"v_sub_f32 v{48 + 4 * cc + h}, v{48 + 4 * cc + h}, v{8 + h}")
                A(f"v_mul_f32 v{48 + 4 * cc + h}, s50, v{48 + 4 * cc + h}")
                A(f"v_exp_f32 v{48 + 4 * cc + h}, v{48 + 4 * cc + h}")
            A("s_nop 0")
            A(f"v_mul_f32 v{10 + h}, v{48 + h}, v{50 + h}")
            for cc in range(1, 4):
                A(f"v_fmac_f32 v{10 + h}, v{48 + 4 * cc + h}, v{50 + 4 * cc + h}")
            A(f"v_rcp_f32 v{10 + h}, v{10 + h}")
        for h, base in ((0, H0), (1, H1)):
            for k in range(16):
                A(f"v_sub_f32 v{base + k}, v{base + k}, v{8 + h}")
            for k in range(16):
                A(f"v_mul_f32 v{base + k}, s50, v{base + k}")
            for k in range(16):
                A(f"v_exp_f32 v{base + k}, v{base + k}")
            A("s_nop 0")
            for k in range(16):
                A(f"v_mul_f32 v{base + k}, v{base + k}, v{10 + h}")
            for par in range(2):
                for d in range(4):
                    A(f"v_cvt_pk_bf16_f32 v{48 + h * 8 + par * 4 + d}, v{base + 4 * d + par}, v{base + 4 * d + 2 + par}")
        for k in range(4):
            A(f"ds_write_b128 v6, v[{48 + 4 * k}:{48 + 4 * k + 3}] offset:{L_P + 16 * k}")
        A("v_mov_b32 v7, 1")
        A("s_waitcnt lgkmcnt(0)")
        A("ds_write_b32 v5, v7 offset:12")
        self.stamp(7)
        if self.dyn:
            C("publish the pool part of P, then gather the cluster's pool P into LDS")
            NPL = 16 - self.RS
            self.pp_addr(6, 48)
            for k in range(16):
                A(f"v_min_u32 v{48 + k}, -2, v{48 + k}")
            A("s_mov_b64 exec, s[50:51]")
            for k in range(4):
                A(f"global_store_dwordx4 v6, v[{48 + 4 * k}:{48 + 4 * k + 3}], s[32:33] offset:{16 * k} sc1")
            A("s_mov_b64 exec, -1")
            A("s_lshl_b32 s48, s7, 13")
            A(f"s_add_u32 s48, s48, {W_PP}")
            self.srd(44, 32, 8192, 48)
            A("s_mov_b32 s48, 4096")
            self.lds_spin(5, 28, 1, 12, 50)
            lds = [f"buffer_load_dwordx4 v[{16 + 4 * k}:{16 + 4 * k + 3}], v4, s[44:47], {'0' if k < 4 else 's48'} offen offset:{1024 * (k & 3)} sc1" for k in range(NPL)]
            self.poll_sentinel(lds, [16 + i for i in range(4 * NPL)], 12, 51, retry_sleep=self.ssleep)
            for k in range(NPL):
                A(f"ds_write_b128 v4, v[{16 + 4 * k}:{16 + 4 * k + 3}] offset:{L_PP + 1024 * k}")
            A("v_mov_b32 v7, 1")
            A("s_waitcnt lgkmcnt(0)")
            A("ds_write_b32 v5, v7 offset:24")
        C("preload x row b (for h) and b2")
        self.srd(36, 8, 8 * 896)
        A("s_mul_i32 s48, s4, 896")
        A("buffer_load_dwordx4 v[56:59], v4, s[36:39], s48 offen")
        self.srd(36, 26, 896)
        A("v_and_b32 v7, 3, v0")
        A("v_lshlrev_b32 v7, 3, v7")
        A("s_max_i32 s48, s34, 0")
        A("s_lshl_b32 s48, s48, 5")
        A("buffer_load_dwordx2 v[60:61], v7, s[36:39], s48 offen")
        A("s_waitcnt vmcnt(0)")
        self.label("L_sv_tail")
        C("---- tail ----")
        A("v_lshlrev_b32 v6, 4, v3")
        A("s_lshl_b32 s48, s35, 8")
        A("v_add_u32 v6, s48, v6")
        if self.late & 1:
            self.srd(40, 20, 448 * 3584)
            A("s_cmp_lt_i32 s34, 0")
            A("s_cselect_b32 s42, 0, s42")
            A(f"v_mul_u32_u24 v63, {8 * 3584}, v3")
            A("v_lshl_add_u32 v63, v2, 3, v63")
            A(f"s_mul_i32 s88, s35, {32 * 3584}")
            A("s_max_i32 s49, s34, 0")
            A("s_lshl_b32 s49, s49, 7")
            A("s_add_u32 s88, s88, s49")
        A("s_barrier")
        A("s_barrier")
        for kk in range(4):
            A(f"ds_read_b128 v[{ST + 4 * kk}:{ST + 4 * kk + 3}], v6 offset:{L_O + 64 * kk}")
        A("s_lshl_b32 s48, s35, 9")
        A("v_lshl_add_u32 v7, v2, 5, s48")
        DT = 24
        accs = [32, 36, 40, 44, 48, 52, 8, 12]
        for kk in range(4):
            A(f"s_waitcnt lgkmcnt({3 - kk})")
            for t in range(8):
                d = accs[t]
                fr = WO + kk * 32 + t * 4
                c = "0" if kk == 0 else f"v[{d}:{d + 3}]"
                A(f"v_mfma_f32_16x16x32_bf16 v[{d}:{d + 3}], v[{ST + 4 * kk}:{ST + 4 * kk + 3}], v[{fr}:{fr + 3}], {c}")
        A("s_nop 1")
        for t in range(8):
            A(f"v_mov_b32 v{ST + t}, v{accs[t]}")
        A(f"ds_write_b128 v7, v[{ST}:{ST + 3}] offset:{L_T1}")
        A(f"ds_write_b128 v7, v[{ST + 4}:{ST + 7}] offset:{L_T1 + 16}")
        A("s_waitcnt lgkmcnt(0)")
        A("s_barrier")
        W1F = W1

        def w1_loads():
            for kk in range(4):
                for i in range(8):
                    if i % 2 == 0:
                        A(f"s_add_u32 s89, s88, {(kk * 128 + i) * 3584}")
                    r = W1 + kk * 16 + 2 * i
                    A(f"buffer_load_dwordx2 v[{r}:{r + 1}], v63, s[40:43], s89 offen offset:{(i & 1) * 3584} {self.wnt}")

        def w1_perms():
            for kk in range(4):
                A(f"s_waitcnt vmcnt({24 - 8 * kk})")
                base = W1 + kk * 16
                for c in range(2):
                    for u in range(2):
                        dst = WO + 64 + kk * 16 + (2 * c + u) * 4
                        sel = "s56" if u == 0 else "s57"
                        for r in range(4):
                            A(f"v_perm_b32 v{dst + r}, v{base + 2 * (2 * r + 1) + c}, v{base + 2 * (2 * r) + c}, {sel}")
        if self.late & 1:
            W1F = WO + 64
            A("s_cmp_eq_u32 s35, 0")
            A("s_cbranch_scc1 L_sv_s0p4")
            w1_loads()
            w1_perms()
            A("s_branch L_sv_skip2")
            self.label("L_sv_s0p4")
        A("s_cmp_lg_u32 s35, 0")
        A("s_cbranch_scc1 L_sv_skip2")
        self.stamp(8)
        C("S0: P4: lanes<28: sum 4 waves, publish AP[b][hkv][112c + 4l]")
        for w in range(4):
            A(f"ds_read_b128 v[{ST + 4 * w}:{ST + 4 * w + 3}], v4 offset:{L_T1 + 512 * w}")
        A("s_mul_i32 s48, s4, 14336")
        A(f"s_add_u32 s48, s48, {W_AP}")
        A("s_add_u32 s48, s48, s98")
        self.srd(44, 32, 14336, 48)
        A("s_mul_i32 s48, s5, 1792")
        A("s_lshl_b32 s49, s6, 9")
        A("s_add_u32 s48, s48, s49")
        A("s_cmp_eq_u32 s6, 3")
        A("s_cselect_b32 s50, 0xffff, -1")
        A("s_mov_b32 s51, 0")
        A("v_lshlrev_b32 v7, 5, v0")
        A("s_waitcnt lgkmcnt(0)")
        for e in (0, 2):
            A(f"v_pk_add_f32 v[{ST + e}:{ST + e + 1}], v[{ST + e}:{ST + e + 1}], v[{ST + 4 + e}:{ST + 5 + e}]")
            A(f"v_pk_add_f32 v[{ST + 8 + e}:{ST + 9 + e}], v[{ST + 8 + e}:{ST + 9 + e}], v[{ST + 12 + e}:{ST + 13 + e}]")
        for e in (0, 2):
            A(f"v_pk_add_f32 v[{ST + e}:{ST + e + 1}], v[{ST + e}:{ST + e + 1}], v[{ST + 8 + e}:{ST + 9 + e}]")
        A("s_mov_b64 exec, s[50:51]")
        A(f"buffer_store_dwordx4 v[{ST}:{ST + 3}], v4, s[44:47], s48 offen {self.apst}")
        A("s_mov_b64 exec, -1")
        A("s_cmp_lt_i32 s34, 0")
        A("s_cbranch_scc1 L_sv_skip2")
        if self.late & 1:
            w1_loads()
            w1_perms()
        C("P5: lanes<56: gather AP[b][h'][8l..8l+8] (wo frags are dead now)")
        A("s_mov_b64 exec, s[52:53]")
        G = WO
        for hh in range(1, 4):
            A(f"s_mov_b32 s{99 + hh - 3 * (hh > 2) * 0 if False else 36 + hh}, {hh * 3584}")
        lds = []
        for hh in range(8):
            so = "0" if hh < 2 else f"s{36 + hh // 2}"
            for u in range(2):
                r = G + hh * 8 + u * 4
                lds.append(f"buffer_load_dwordx4 v[{r}:{r + 3}], v7, s[44:47], {so} offen offset:{(hh & 1) * 1792 + 16 * u} sc1")
        if not self.fastp5:
            self.poll_sentinel(lds, [G + i for i in range(64)], 12, 51, retry_sleep=self.tsleep)
            A("s_mov_b64 exec, -1")
            self.stamp(9)
            for e in range(8):
                for hh in range(0, 8, 2):
                    A(f"v_add_f32 v{G + hh * 8 + e}, v{G + hh * 8 + e}, v{G + hh * 8 + 8 + e}")
            for e in range(8):
                A(f"v_add_f32 v{G + e}, v{G + e}, v{G + 16 + e}")
                A(f"v_add_f32 v{G + 32 + e}, v{G + 32 + e}, v{G + 48 + e}")
            for e in range(8):
                A(f"v_add_f32 v{G + e}, v{G + e}, v{G + 32 + e}")
            for e in range(4):
                A(f"v_cvt_pk_bf16_f32 v{ST + e}, v{G + 2 * e}, v{G + 2 * e + 1}")
            self.unpack8(ST, G)
            self.unpack8(56, G + 8)
            for e in range(8):
                A(f"v_add_f32 v{G + e}, v{G + e}, v{G + 8 + e}")
            for e in range(4):
                A(f"v_cvt_pk_bf16_f32 v{ST + e}, v{G + 2 * e}, v{G + 2 * e + 1}")
            self.unpack8(ST, G)
            self.layernorm([([G + e for e in range(8)], ST)], 52, G + 16)
        else:
            X = 32
            def pk(d, x, y):
                A(f"v_pk_add_f32 v[{d}:{d + 1}], v[{x}:{x + 1}], v[{y}:{y + 1}]")
            A(f"s_mov_b32 s51, {self.poll_cap}")
            self.unpack8(56, X)
            if self.rowpoll:
                NG = self.rowpoll
                RP = 8 // NG
                A("s_mov_b32 s50, 0")
                self.label("L_sv_appoll")
                for p in range(NG):
                    A(f"s_bitcmp1_b32 s50, {p}")
                    A(f"s_cbranch_scc1 L_ap_i{p}")
                    for x in lds[2 * RP * p:2 * RP * (p + 1)]:
                        A(x)
                    self.label(f"L_ap_i{p}")
                A("s_waitcnt vmcnt(0)")
                for p in range(NG):
                    A(f"s_bitcmp1_b32 s50, {p}")
                    A(f"s_cbranch_scc1 L_ap_c{p}")
                    base = G + p * RP * 8
                    if RP == 2:
                        for e in range(0, 8, 2):
                            pk(base + e, base + e, base + 8 + e)
                    pk(40, base, base + 2)
                    pk(42, base + 4, base + 6)
                    pk(40, 40, 42)
                    A("v_cmp_u_f32 vcc, v40, v41")
                    A(f"s_cbranch_vccnz L_ap_c{p}")
                    A(f"s_bitset1_b32 s50, {p}")
                    self.label(f"L_ap_c{p}")
                A(f"s_cmp_eq_u32 s50, {(1 << NG) - 1}")
                A("s_cbranch_scc1 L_ap_all")
                A("s_sub_u32 s51, s51, 1")
                A("s_cmp_lg_u32 s51, 0")
                A("s_cbranch_scc1 L_sv_appoll")
                self.label("L_ap_all")
                if RP == 1:
                    for hh in range(0, 8, 2):
                        for e in range(0, 8, 2):
                            pk(G + hh * 8 + e, G + hh * 8 + e, G + hh * 8 + 8 + e)
                for e in range(0, 8, 2):
                    pk(G + e, G + e, G + 16 + e)
                    pk(G + 32 + e, G + 32 + e, G + 48 + e)
                for e in range(0, 8, 2):
                    pk(G + e, G + e, G + 32 + e)
            else:
                self.label("L_sv_appoll")
                for x in lds:
                    A(x)
                C("the sentinel is a NaN pattern: sum first, a NaN in the sums means 'not all there yet'")
                for hh in range(0, 8, 2):
                    A(f"s_waitcnt vmcnt({12 - 2 * hh})")
                    for e in range(0, 8, 2):
                        pk(G + hh * 8 + e, G + hh * 8 + e, G + hh * 8 + 8 + e)
                    if hh == 2:
                        for e in range(0, 8, 2):
                            pk(G + e, G + e, G + 16 + e)
                for e in range(0, 8, 2):
                    pk(G + 32 + e, G + 32 + e, G + 48 + e)
                for e in range(0, 8, 2):
                    pk(G + e, G + e, G + 32 + e)
                pk(G + 8, G, G + 2)
                pk(G + 10, G + 4, G + 6)
                pk(G + 8, G + 8, G + 10)
                A(f"v_cmp_u_f32 vcc, v{G + 8}, v{G + 9}")
                A("s_cbranch_vccz L_sv_apok")
                A("s_sub_u32 s51, s51, 1")
                A("s_cmp_lg_u32 s51, 0")
                A("s_cbranch_scc1 L_sv_appoll")
            self.label("L_sv_apok")
            A("s_mov_b64 exec, -1")
            self.stamp(9)
            for e in range(4):
                A(f"v_cvt_pk_bf16_f32 v{ST + e}, v{G + 2 * e}, v{G + 2 * e + 1}")
            self.unpack8(ST, G)
            for e in range(0, 8, 2):
                pk(G + e, G + e, X + e)
            for e in range(4):
                A(f"v_cvt_pk_bf16_f32 v{ST + e}, v{G + 2 * e}, v{G + 2 * e + 1}")
            self.unpack8(ST, G)
            C("LayerNorm, one reduction round: sums of d = h - c and d^2 with c = h[0] (a data point, so no harmful cancellation)")
            A(f"v_readfirstlane_b32 s50, v{G}")
            D_ = G + 8
            S1, S2, T1_, T2_ = G + 16, G + 17, G + 18, G + 19
            A("s_nop 1")
            for e in range(8):
                A(f"v_subrev_f32 v{D_ + e}, s50, v{G + e}")
            pk(G + 20, D_, D_ + 2)
            pk(G + 22, D_ + 4, D_ + 6)
            A(f"v_mul_f32 v{S2}, v{D_}, v{D_}")
            A(f"v_mul_f32 v{T2_}, v{D_ + 1}, v{D_ + 1}")
            pk(G + 20, G + 20, G + 22)
            for e in range(2, 8, 2):
                A(f"v_fmac_f32 v{S2}, v{D_ + e}, v{D_ + e}")
                A(f"v_fmac_f32 v{T2_}, v{D_ + e + 1}, v{D_ + e + 1}")
            A(f"v_add_f32 v{S1}, v{G + 20}, v{G + 21}")
            A(f"v_add_f32 v{S2}, v{S2}, v{T2_}")
            A(f"v_cndmask_b32 v{S1}, 0, v{S1}, s[52:53]")
            A(f"v_cndmask_b32 v{S2}, 0, v{S2}, s[52:53]")
            self.allreduce("add", [S1, S2], [T1_, T2_])
            A(f"v_mul_f32 v{S1}, 0x3b124925, v{S1}")
            A(f"v_mul_f32 v{S2}, 0x3b124925, v{S2}")
            A(f"v_fma_f32 v{S2}, -v{S1}, v{S1}, v{S2}")
            A(f"v_add_f32 v{S1}, s50, v{S1}")
            A(f"v_max_f32 v{S2}, 0, v{S2}")
            A(f"v_cvt_pk_bf16_f32 v{T1_}, v{S1}, v{S2}")
            A(f"v_lshlrev_b32 v{S1}, 16, v{T1_}")
            A(f"v_and_b32 v{S2}, 0xffff0000, v{T1_}")
            A(f"v_add_f32 v{S2}, 0x3727c5ac, v{S2}")
            A(f"v_cvt_pk_bf16_f32 v{S2}, v{S2}, v{S2}")
            A(f"v_lshlrev_b32 v{S2}, 16, v{S2}")
            A(f"v_sqrt_f32 v{S2}, v{S2}")
            for e in range(8):
                A(f"v_sub_f32 v{D_ + e}, v{G + e}, v{S1}")
            A(f"v_cvt_pk_bf16_f32 v{S2}, v{S2}, v{S2}")
            A(f"v_lshlrev_b32 v{S2}, 16, v{S2}")
            A(f"v_rcp_f32 v{S2}, v{S2}")
            for e in range(4):
                A(f"v_cvt_pk_bf16_f32 v{ST + e}, v{D_ + 2 * e}, v{D_ + 2 * e + 1}")
            self.unpack8(ST, D_)
            for e in range(8):
                A(f"v_mul_f32 v{D_ + e}, v{D_ + e}, v{S2}")
            for e in range(4):
                A(f"v_cvt_pk_bf16_f32 v{ST + e}, v{D_ + 2 * e}, v{D_ + 2 * e + 1}")
        A("s_mov_b64 exec, s[52:53]")
        A(f"ds_write_b128 v4, v[{ST}:{ST + 3}] offset:{L_HN}")
        A(f"ds_write_b128 v7, v[{G}:{G + 3}] offset:{L_H}")
        A(f"ds_write_b128 v7, v[{G + 4}:{G + 7}] offset:{L_H + 16}")
        A("s_mov_b64 exec, -1")
        A("s_waitcnt lgkmcnt(0)")
        self.label("L_sv_skip2")
        A("s_barrier")
        C("T2a: ksteps s, s+4, s+8, s+12")
        A("v_lshlrev_b32 v6, 4, v3")
        A("s_lshl_b32 s48, s35, 6")
        A("v_add_u32 v6, s48, v6")
        for kk in range(4):
            A(f"ds_read_b128 v[{ST + 4 * kk}:{ST + 4 * kk + 3}], v6 offset:{L_HN + 256 * kk}")
        A("s_lshl_b32 s48, s35, 8")
        A("v_lshl_add_u32 v7, v2, 4, s48")
        for kk in range(4):
            A(f"s_waitcnt lgkmcnt({3 - kk})")
            for t in range(4):
                d = 32 + 4 * t
                fr = W1F + kk * 16 + t * 4
                c = "0" if kk == 0 else f"v[{d}:{d + 3}]"
                A(f"v_mfma_f32_16x16x32_bf16 v[{d}:{d + 3}], v[{ST + 4 * kk}:{ST + 4 * kk + 3}], v[{fr}:{fr + 3}], {c}")
        A("s_nop 5")
        for t in range(4):
            A(f"v_mov_b32 v{ST + t}, v{32 + 4 * t}")
        A(f"ds_write_b128 v7, v[{ST}:{ST + 3}] offset:{L_R1}")
        A("s_waitcnt lgkmcnt(0)")
        A("s_barrier")
        A("s_cmp_lg_u32 s35, 0")
        A("s_cbranch_scc1 L_end")
        self.stamp(10)
        A("s_cmp_lt_i32 s34, 0")
        A("s_cbranch_scc1 L_sv_fin")
        C("P8: final reduce: FP[b][src][16f + 4q]; lane l: src = l>>2 (+16), q = l&3")
        A("s_mul_i32 s48, s4, 57344")
        A(f"s_add_u32 s48, s48, {W_FP}")
        A("s_add_u32 s48, s48, s98")
        self.srd(44, 32, 28 * 1792, 48)
        A("v_lshrrev_b32 v6, 2, v0")
        A("v_mul_u32_u24 v6, 1792, v6")
        A("v_and_b32 v7, 3, v0")
        A("v_lshl_add_u32 v6, v7, 4, v6")
        A("s_lshl_b32 s48, s34, 6")
        A(f"s_add_u32 s49, s48, {16 * 1792}")
        A("v_lshl_add_u32 v8, v7, 4, s48")
        A(f"ds_read_b128 v[40:43], v8 offset:{L_H}")
        self.srd(36, 28, 7168)
        lds = [f"buffer_load_dwordx4 v[{ST}:{ST + 3}], v6, s[44:47], s48 offen sc1",
               f"buffer_load_dwordx4 v[{ST + 4}:{ST + 7}], v6, s[44:47], s49 offen sc1"]
        A(f"s_mov_b32 s51, {self.poll_cap}")
        self.label("L_sv_fppoll")
        for x in lds:
            A(x)
        A("s_waitcnt vmcnt(0)")
        for e in (0, 2):
            A(f"v_pk_add_f32 v[{ST + e}:{ST + e + 1}], v[{ST + e}:{ST + e + 1}], v[{ST + 4 + e}:{ST + 5 + e}]")
        A(f"v_pk_add_f32 v[{ST + 4}:{ST + 5}], v[{ST}:{ST + 1}], v[{ST + 2}:{ST + 3}]")
        A(f"v_cmp_u_f32 vcc, v{ST + 4}, v{ST + 5}")
        A("s_cbranch_vccz L_sv_fpok")
        A("s_sub_u32 s51, s51, 1")
        A("s_cmp_lg_u32 s51, 0")
        A("s_cbranch_scc1 L_sv_fppoll")
        self.label("L_sv_fpok")
        self.stamp(11)
        for ctrl in ("row_ror:4", "row_ror:8"):
            A("s_nop 1")
            for e in range(4):
                A(f"v_add_f32_dpp v{ST + e}, v{ST + e}, v{ST + e} {ctrl} row_mask:0xf bank_mask:0xf")
        for sw in ("v_permlane16_swap_b32", "v_permlane32_swap_b32"):
            for e in range(4):
                A(f"v_mov_b32 v{ST + 4 + e}, v{ST + e}")
            A("s_nop 1")
            for e in range(4):
                A(f"{sw} v{ST + e}, v{ST + 4 + e}")
            A("s_nop 1")
            for e in range(4):
                A(f"v_add_f32 v{ST + e}, v{ST + e}, v{ST + 4 + e}")
        A(f"v_cvt_pk_bf16_f32 v{ST + 4}, v{ST}, v{ST + 1}")
        A(f"v_cvt_pk_bf16_f32 v{ST + 5}, v{ST + 2}, v{ST + 3}")
        for e in range(2):
            A(f"v_lshlrev_b32 v{ST + 2 * e}, 16, v{ST + 4 + e}")
            A(f"v_and_b32 v{ST + 2 * e + 1}, 0xffff0000, v{ST + 4 + e}")
            A(f"v_lshlrev_b32 v{32 + 2 * e}, 16, v{60 + e}")
            A(f"v_and_b32 v{32 + 2 * e + 1}, 0xffff0000, v{60 + e}")
        for e in range(4):
            A(f"v_add_f32 v{ST + e}, v{ST + e}, v{32 + e}")
        A(f"v_cvt_pk_bf16_f32 v{ST + 4}, v{ST}, v{ST + 1}")
        A(f"v_cvt_pk_bf16_f32 v{ST + 5}, v{ST + 2}, v{ST + 3}")
        for e in range(2):
            A(f"v_lshlrev_b32 v{ST + 2 * e}, 16, v{ST + 4 + e}")
            A(f"v_and_b32 v{ST + 2 * e + 1}, 0xffff0000, v{ST + 4 + e}")
        A("s_waitcnt lgkmcnt(0)")
        for e in range(4):
            A(f"v_add_f32 v{ST + e}, v{ST + e}, v{40 + e}")
        A(f"v_cvt_pk_bf16_f32 v{ST + 4}, v{ST}, v{ST + 1}")
        A(f"v_cvt_pk_bf16_f32 v{ST + 5}, v{ST + 2}, v{ST + 3}")
        A("v_lshlrev_b32 v7, 3, v7")
        A("s_mul_i32 s48, s4, 896")
        A("s_lshl_b32 s49, s34, 5")
        A("s_add_u32 s48, s48, s49")
        A("s_mov_b64 exec, 0xf")
        A(f"buffer_store_dwordx2 v[{ST + 4}:{ST + 5}], v7, s[36:39], s48 offen")
        A("s_mov_b64 exec, -1")
        self.label("L_sv_fin")
        self.stamp(12)
        self.dump_stamps(13, 8)


if __name__ == "__main__":
    import argparse
    ap = argparse.ArgumentParser()
    ap.add_argument("-o", default=f"cdna_kernels/{NAME}.s")
    ap.add_argument("--D", type=int, default=5)
    ap.add_argument("--R", type=int, default=42)
    ap.add_argument("--stamps", action="store_true")
    ap.add_argument("--wnt", default="")
    ap.add_argument("--knt", default="nt")
    ap.add_argument("--nowdelay", action="store_true")
    ap.add_argument("--qnt", default="nt")
    ap.add_argument("--wd", type=int, default=8)
    ap.add_argument("--now", type=int, default=0)
    ap.add_argument("--DV", type=int, default=0)
    ap.add_argument("--wsoff", type=lambda x: int(x, 0), default=0)
    ap.add_argument("--qsleep", type=int, default=0)
    ap.add_argument("--ssleep", type=int, default=0)
    ap.add_argument("--DE", type=int, default=0)
    ap.add_argument("--tsleep", type=int, default=0)
    ap.add_argument("--margin", type=int, default=12)
    ap.add_argument("--w2pos", type=int, default=8)
    ap.add_argument("--yrot", type=int, default=0)
    ap.add_argument("--ilv", type=int, default=0)
    ap.add_argument("--RS", type=int, default=16)
    ap.add_argument("--kmargin", type=int, default=18)
    ap.add_argument("--cap", type=int, default=200000)
    ap.add_argument("--Dh", type=int, default=0)
    ap.add_argument("--cmap", type=int, default=2)
    ap.add_argument("--vnt", default=None)
    ap.add_argument("--eager", type=int, default=4)
    ap.add_argument("--opst", default="")
    ap.add_argument("--bal", type=int, default=1)
    ap.add_argument("--apst", default="sc1")
    ap.add_argument("--spread", type=lambda x: int(x, 0), default=0)
    ap.add_argument("--late", type=int, default=0)
    ap.add_argument("--DS", type=int, default=0)
    ap.add_argument("--fastp5", type=int, default=1)
    ap.add_argument("--rowpoll", type=int, default=0)
    ap.add_argument("--prio", type=int, default=0)
    ap.add_argument("--adapt", default="")
    ap.add_argument("--athr", default="100,200")
    ap.add_argument("--NS", type=int, default=0)
    ap.add_argument("--NE", type=int, default=0)
    a = ap.parse_args()
    g = Gen(D=a.D, R=a.R, stamps=a.stamps, wnt=a.wnt, knt=a.knt, wdelay=not a.nowdelay, qnt=a.qnt, wd=a.wd, now=a.now, DV=a.DV, wsoff=a.wsoff, qsleep=a.qsleep, ssleep=a.ssleep, DE=a.DE, NE=a.NE, tsleep=a.tsleep, margin=a.margin, w2pos=a.w2pos, yrot=a.yrot, ilv=a.ilv, RS=a.RS, kmargin=a.kmargin, poll_cap=a.cap, Dh=a.Dh, cmap=a.cmap, vnt=a.vnt, eager=a.eager, opst=a.opst, bal=a.bal, apst=a.apst, spread=a.spread, late=a.late, DS=a.DS, NS=a.NS, fastp5=a.fastp5, rowpoll=a.rowpoll, prio=a.prio, adapt=[int(x) for x in a.adapt.split(",")] if a.adapt else None, athr=tuple(int(x) for x in a.athr.split(",")))
    open(a.o, "w").write(g.build())
```
